```python
import torch

def _softmax(x, axis=-1):
    return torch.softmax(x, dim=axis)
def _gelu(x):
    return torch.nn.functional.gelu(x, approximate="tanh")
def _silu(x):
    return torch.nn.functional.silu(x)
def _sigmoid(x):
    return torch.sigmoid(x)
def _layernorm(x, axis=-1, eps=1e-5):
    m = x.mean(dim=axis, keepdim=True)
    v = x.var(dim=axis, keepdim=True, unbiased=False)
    return (x - m) / torch.sqrt(v + eps)
def _scatter_add(tgt, idx, src, axis=0):
    return tgt.clone().index_add_(axis, idx, src)
def _segment_sum(src, seg, n):
    out = torch.zeros((n,) + src.shape[1:], dtype=src.dtype)
    return out.index_add_(0, seg, src)
def _pad(x, pw):
    flat = tuple(v for pair in reversed(pw) for v in pair)
    return torch.nn.functional.pad(x, flat)

kernel_name = 'recurrent_scan__linear_attn_block__glu_gated_geglu__prompt'

def setup_inputs():

    _w = (lambda a: (lambda t: t.to(torch.bfloat16) if t.is_floating_point() else t)(torch.as_tensor(a)))
    def _A_setup():
        B, S, D = 1, 2048, 512
        return {
            "x": _w((lambda *s: torch.randn(*s, dtype=torch.bfloat16) * 0.05)(B, S, D)),
            "wqkv": _w((lambda *s: torch.randn(*s, dtype=torch.bfloat16) * 0.8)(D, 3 * D)),
            "wo": _w((lambda *s: torch.randn(*s, dtype=torch.bfloat16) * 0.8)(D, D)),
        }
    _A_in = _A_setup()

    def _B_setup():
        B, S, Dm, Df = 1, 2048, 512, 1376
        return {
            "x": _w((lambda *s: torch.randn(*s, dtype=torch.bfloat16) * 0.05)(B, S, Dm)),
            "w_gate": _w((lambda *s: torch.randn(*s, dtype=torch.bfloat16) * 0.2)(Dm, Df) * (Dm ** -0.5)),
            "w_up": _w((lambda *s: torch.randn(*s, dtype=torch.bfloat16) * 0.2)(Dm, Df) * (Dm ** -0.5)),
            "w_down": _w((lambda *s: torch.randn(*s, dtype=torch.bfloat16) * 0.2)(Df, Dm) * (Df ** -0.5)),
        }
    _B_in = _B_setup()

    return {
        "A_x": _A_in["x"],
        "A_wqkv": _A_in["wqkv"],
        "A_wo": _A_in["wo"],
        "B_x": _B_in["x"],
        "B_w_gate": _B_in["w_gate"],
        "B_w_up": _B_in["w_up"],
        "B_w_down": _B_in["w_down"],
    }

def reference(A_x, A_wqkv, A_wo, B_x, B_w_gate, B_w_up, B_w_down):
    def _A_ref(x, wqkv, wo):
        B, S, D = x.shape
        H = 32; Dh = D // H
        qkv = (lambda x, *d: x.permute(*d))((x @ wqkv).reshape(B, S, 3, H, Dh), 2, 0, 3, 1, 4)
        q, k, v = qkv[0], qkv[1], qkv[2]
        phi = lambda t: torch.where(t > 0, t + 1, torch.exp(t)) + 1e-6
        pq, pk = phi(q), phi(k)
        kv = torch.einsum("bhsd,bhse->bhde", pk, v)
        z = torch.einsum("bhsd->bhd", pk)
        num = torch.einsum("bhqd,bhde->bhqe", pq, kv)
        den = torch.einsum("bhqd,bhd->bhq", pq, z)[..., None] + 1e-6
        o = num / den
        return (lambda x, *d: x.permute(*d))(o, 0, 2, 1, 3).reshape(B, S, D) @ wo

    def _B_ref(x, w_gate, w_up, w_down):
        g = torch.einsum("bsd,df->bsf", x, w_gate)
        u = torch.einsum("bsd,df->bsf", x, w_up)
        h = _gelu(g) * u
        return torch.einsum("bsf,fd->bsd", h, w_down)

    x = A_x
    xn = _layernorm(x, axis=-1)
    s = _A_ref(xn, A_wqkv, A_wo)
    g = _silu(_B_ref(xn, B_w_gate, B_w_up, B_w_down))
    return x + s * g
```

```python
import sys
STAMP = "--stamp" in sys.argv
OUT = [a for a in sys.argv[1:] if not a.startswith("--")]
OUT = OUT[0] if OUT else "recurrent_scan__linear_attn_block__glu_gated_geglu__prompt.s"

L = []
def e(s): L.append("    " + s)
def lab(s): L.append(s + ":")
def cm(s): L.append("    ; " + s)
def vr(b, n): return f"v[{b}:{b+n-1}]"
def sr(b, n): return f"s[{b}:{b+n-1}]"

NKS = 118
T_BYTES = 64 * NKS * 1024
KV_OFF = 0x800000
KV_BYTES = 32 * 1088
WS_USED = KV_OFF + KV_BYTES
STAMP_OFF = 0x8000000
LOG2E = 1.4426950408889634
import struct
def fbits(x): return "0x%08x" % struct.unpack("<I", struct.pack("<f", x))[0]

def srd(d, lo, hi, size):
    e(f"s_mov_b32 s{d}, s{lo}"); e(f"s_mov_b32 s{d+1}, s{hi}")
    e(f"s_mov_b32 s{d+2}, {size}"); e(f"s_mov_b32 s{d+3}, 0x00020000")

class Stamps:
    def __init__(self, base): self.base = base; self.n = 0
    def mark(self):
        if STAMP:
            e(f"s_memtime s[{self.base+2*self.n}:{self.base+2*self.n+1}]"); self.n += 1
    def real(self):
        if STAMP:
            e(f"s_memrealtime s[{self.base+2*self.n}:{self.base+2*self.n+1}]"); self.n += 1
    def dump(self, swave, ws_lo, ws_hi, off, label):
        if not STAMP: return
        e("s_waitcnt lgkmcnt(0)")
        e(f"s_cmp_lg_u32 s{swave}, 0"); e(f"s_cbranch_scc1 {label}")
        srd(4, ws_lo, ws_hi, "0x10000000")
        for j in range(16):
            e(f"v_mov_b32 v{8+j}, s{self.base+j}" if j < 2*self.n else f"v_mov_b32 v{8+j}, 0")
        e("s_lshl_b32 s3, s2, 6"); e(f"s_add_u32 s3, s3, {off}")
        e("v_mov_b32 v3, 0"); e("s_mov_b64 exec, 1")
        for j in range(4):
            e(f"buffer_store_dwordx4 v[{8+4*j}:{11+4*j}], v3, s[4:7], s3 offen offset:{16*j}")

def interleave(mf, fill):
    n = len(mf)
    tot = sum(len(g) for g in fill)
    done = 0; gi = 0
    for i, m in enumerate(mf):
        e(m)
        target = tot * (i + 1) / n
        while gi < len(fill) and (done + len(fill[gi]) / 2 <= target or i == n - 1):
            for x in fill[gi]: e(x)
            done += len(fill[gi]); gi += 1

XST = 16384; WBASE = 32768; SEGB = 18560; WST = 36992
V_VX, V_VW, V_VW9, V_XW, V_XA, V_WA = 10, 11, 12, 13, 14, 18
V_NA = 19
V_UT = 24
V_PK = 40
V_SET = [48, 68]
V_ACC = 88
V_XR = 168
S_WAVE, S_TG, S_UG, S_MB, S_T, S_STR, S_U0, S_CNT = 40, 41, 42, 43, 44, 45, 46, 47
S_DMAW, S_KW, S_KW2, S_C9, S_KW9A, S_XI, S_MASK, S_ONES = 48, 49, 50, 51, 52, 53, 54, 55
S_RST, S_DST, S_TYPE, S_STR64, S_STR32, S_TMP, S_TMP2, S_ZERO = 56, 57, 58, 59, 60, 61, 62, 63

def k1_dma(lbl):
    g = []
    g.append(f"s_add_u32 s{S_KW2}, s{S_KW}, s{S_STR32}")
    g.append(f"s_mov_b32 m0, s{S_DMAW}")
    g.append(f"s_add_u32 s{S_TMP}, s{S_KW}, s{S_KW9A}")
    g.append(f"buffer_load_dwordx4 v{V_VW}, s[8:11], s{S_KW} offen lds")
    g.append(f"s_add_u32 m0, s{S_DMAW}, {SEGB}")
    g.append("s_nop 0")
    g.append(f"buffer_load_dwordx4 v{V_VW}, s[12:15], s{S_KW} offen lds")
    g.append(f"s_add_u32 m0, s{S_DMAW}, 9216")
    g.append(f"s_add_u32 s{S_KW}, s{S_KW}, s{S_STR64}")
    g.append(f"buffer_load_dwordx4 v{V_VW}, s[8:11], s{S_KW2} offen lds")
    g.append(f"s_add_u32 m0, s{S_DMAW}, {SEGB+9216}")
    g.append(f"s_cmp_lt_u32 s{S_WAVE}, 4")
    g.append(f"buffer_load_dwordx4 v{V_VW}, s[12:15], s{S_KW2} offen lds")
    if lbl is not None:
        g.append(f"s_cbranch_scc1 {lbl}")
        g.append(f"s_add_u32 m0, s{S_DMAW}, s{S_C9}")
        g.append("s_nop 0")
        g.append(f"buffer_load_dwordx4 v{V_VW9}, s[16:19], s{S_TMP} offen lds")
        g.append(f"{lbl}:")
    g.append(f"s_add_u32 s{S_DST}, s{S_DST}, 1")
    g.append(f"s_cmp_eq_u32 s{S_DST}, 3")
    g.append(f"s_cselect_b32 s{S_TMP}, {-2*WST & 0xffffffff}, {WST}".replace(str(WST), f"s{S_TMP2}") )
    g.append(f"s_cselect_b32 s{S_DST}, 0, s{S_DST}")
    g.append(f"s_add_u32 s{S_DMAW}, s{S_DMAW}, s{S_TMP}")
    return g

def k1_reads(st, p, var):
    b = V_SET[st]
    r = []
    r.append(f"ds_read_b128 {vr(b,4)}, v{V_XA+p}")
    r.append(f"ds_read_b64_tr_b16 {vr(b+8,2)}, v{V_WA} offset:{p*4608}")
    r.append(f"ds_read_b64_tr_b16 {vr(b+10,2)}, v{V_WA} offset:{p*4608+1152}")
    r.append(f"ds_read_b128 {vr(b+4,4)}, v{V_XA+p} offset:4096")
    r.append(f"ds_read_b64_tr_b16 {vr(b+12,2)}, v{V_WA} offset:{p*4608+32}")
    r.append(f"ds_read_b64_tr_b16 {vr(b+14,2)}, v{V_WA} offset:{p*4608+1152+32}")
    if var in ("N5a", "N5b"):
        xo = 256 if var == "N5a" else 192
        r.append(f"ds_read_b64_tr_b16 {vr(b+16,2)}, v{V_WA} offset:{p*4608+xo}")
        r.append(f"ds_read_b64_tr_b16 {vr(b+18,2)}, v{V_WA} offset:{p*4608+1152+xo}")
    return r

def k1_mfma(st, var):
    b = V_SET[st]
    m = []
    for a, f in ((0, 0), (0, 1), (1, 0), (1, 1)):
        acc = V_ACC + 16 * (2 * a + f)
        W = vr(b + 8 + 4 * a, 4); X = vr(b + 4 * f, 4)
        if var == "S4": m.append(f"v_mfma_f32_32x32x16_bf16 {vr(acc,16)}, {X}, {W}, {vr(acc,16)}")
        else: m.append(f"v_mfma_f32_32x32x16_bf16 {vr(acc,16)}, {W}, {X}, {vr(acc,16)}")
    if var in ("N5a", "N5b"):
        acc = V_ACC + 64; f = 0 if var == "N5a" else 1
        m.append(f"v_mfma_f32_32x32x16_bf16 {vr(acc,16)}, {vr(b+16,4)}, {vr(b+4*f,4)}, {vr(acc,16)}")
    return m

def k1_unpack(indexed):
    g = []
    if indexed:
        g.append(f"s_set_gpr_idx_on s{S_XI}, gpr_idx(SRC1)"); g.append("s_nop 0")
    for j in range(8):
        g.append(f"v_lshlrev_b32 v{V_UT+2*j}, 16, v{V_XR+j}")
        g.append(f"v_and_b32 v{V_UT+2*j+1}, s{S_MASK}, v{V_XR+j}")
    if indexed:
        g.append("s_set_gpr_idx_off"); g.append(f"s_add_u32 s{S_XI}, s{S_XI}, 8")
    return g
def k1_norm():
    g = []
    for j in range(8):
        a = V_NA + 2 * (j // 4)
        g.append([f"v_fma_f32 v{V_UT+2*j}, v{V_UT+2*j}, v{a}, v{a+1}",
                  f"v_fma_f32 v{V_UT+2*j+1}, v{V_UT+2*j+1}, v{a}, v{a+1}",
                  f"v_cvt_pk_bf16_f32 v{V_PK+j}, v{V_UT+2*j}, v{V_UT+2*j+1}"])
    return g
def k1_xwrite():
    return [f"ds_write_b128 v{V_XW}, {vr(V_PK,4)}", f"ds_write_b128 v{V_XW}, {vr(V_PK+4,4)} offset:8192",
            f"v_xor_b32 v{V_XW}, {XST}, v{V_XW}"]

def k1_loop(var):
    lab(f"K1_{var}")
    for x in k1_reads(0, 0, var): e(x)
    lab(f"K1_{var}_loop")
    e("s_waitcnt lgkmcnt(0)")
    interleave(k1_mfma(0, var), [[x] for x in k1_reads(1, 1, var)] + [k1_unpack(True)])
    e("s_waitcnt lgkmcnt(0)")
    interleave(k1_mfma(1, var), [[x] for x in k1_reads(0, 2, var)] + k1_norm())
    e("s_waitcnt lgkmcnt(0)")
    adv = [f"s_add_u32 s{S_RST}, s{S_RST}, 1", f"s_cmp_eq_u32 s{S_RST}, 3",
           f"s_cselect_b32 s{S_ZERO+1}, {-2*WST & 0xffffffff}, s{S_TMP2}", f"s_cselect_b32 s{S_RST}, 0, s{S_RST}"]
    interleave(k1_mfma(0, var), [[x] for x in k1_reads(1, 3, var)] + [k1_xwrite()] + [adv] +
               [[f"v_xor_b32 v{V_XA+p}, {XST}, v{V_XA+p}" for p in range(4)] + [f"v_add_u32 v{V_WA}, s{S_ZERO+1}, v{V_WA}"]])
    m = k1_mfma(1, var)
    e(f"s_cmp_ge_u32 s{S_CNT}, 6")
    e("s_waitcnt lgkmcnt(0)")
    e(m[0]); e(m[1])
    e(f"s_cbranch_scc1 K1_{var}_rare")
    e("s_waitcnt vmcnt(4)")
    lab(f"K1_{var}_back")
    e("s_barrier")
    for x in k1_reads(0, 0, var): e(x)
    e(m[2])
    e(f"s_cmp_ge_u32 s{S_CNT}, 5")
    e(f"s_cbranch_scc1 K1_{var}_nodma")
    d = k1_dma(None if var in ("N5a", "N5b") else f"K1_{var}_no9")
    for x in d:
        if x.endswith(":"): L.append(x)
        else: e(x)
    lab(f"K1_{var}_nodma")
    e(f"s_add_u32 s{S_CNT}, s{S_CNT}, 1")
    e(f"s_cmp_lt_u32 s{S_CNT}, 8")
    for x in m[3:]: e(x)
    e(f"s_cbranch_scc1 K1_{var}_loop")
    e("s_branch K1_EPI")
    lab(f"K1_{var}_rare")
    e("s_waitcnt vmcnt(0)")
    if var == "S4":
        e(f"s_cmp_eq_u32 s{S_ZERO}, 1")
        e(f"s_cbranch_scc0 K1_{var}_back")
        e(f"s_mov_b32 s{S_ZERO}, 0")
        e("v_mov_b32 v2, 1")
        e(f"s_sub_u32 s{S_TMP}, s{S_T}, 10"); e(f"s_lshl_b32 s{S_TMP}, s{S_TMP}, 2")
        e("s_mov_b64 exec, 1")
        e(f"buffer_store_dword v2, off, s[24:27], s{S_TMP} sc0 sc1")
        e("s_mov_b64 exec, -1")
    e(f"s_branch K1_{var}_back")

def rbf(dst, src):
    e(f"v_cvt_pk_bf16_f32 v{dst}, v{src}, v{src}")
    e(f"v_and_b32 v{dst}, s{S_MASK}, v{dst}")

def kernel1():
    st = Stamps(80)
    L.append(".globl p1_kernel"); L.append(".p2align 8"); L.append(".type p1_kernel,@function"); lab("p1_kernel")
    st.real(); st.mark()
    e("s_load_dwordx4 s[28:31], s[0:1], 0")
    e("s_load_dwordx4 s[32:35], s[0:1], 32")
    e("s_load_dwordx4 s[36:39], s[0:1], 64")
    e("s_cmp_ge_u32 s2, 256"); e("s_cbranch_scc1 K1_END")
    e("v_lshrrev_b32 v2, 6, v0"); e("v_and_b32 v1, 63, v0")
    e(f"v_readfirstlane_b32 s{S_WAVE}, v2")
    e("s_and_b32 s3, s2, 7"); e(f"s_lshr_b32 s{S_TMP}, s2, 3")
    e(f"s_and_b32 s{S_MB}, s3, 1"); e(f"s_lshl_b32 s{S_MB}, s{S_MB}, 3")
    e(f"s_and_b32 s{S_TMP2}, s{S_TMP}, 7"); e(f"s_add_u32 s{S_MB}, s{S_MB}, s{S_TMP2}")
    e("s_lshr_b32 s3, s3, 1"); e("s_lshl_b32 s3, s3, 2"); e(f"s_lshr_b32 s{S_TMP}, s{S_TMP}, 3"); e(f"s_add_u32 s3, s3, s{S_TMP}")
    e("s_lshl_b32 s3, s3, 2")
    tab = [4, 5, 0, 10, 6, 7, 1, 11, 8, 2, 12, 14, 9, 3, 13, 15]
    tv = sum(t << (4 * i) for i, t in enumerate(tab))
    e(f"s_mov_b32 s64, {tv & 0xffffffff:#x}"); e(f"s_mov_b32 s65, {tv >> 32:#x}")
    e("s_lshr_b64 s[64:65], s[64:65], s3"); e(f"s_and_b32 s{S_T}, s64, 15")
    e(f"s_and_b32 s{S_TG}, s{S_WAVE}, 1"); e(f"s_lshr_b32 s{S_UG}, s{S_WAVE}, 1")
    e(f"s_lshl_b32 s{S_U0}, s{S_T}, 3")
    e(f"s_mul_i32 s3, s{S_T}, 9"); e("s_sub_u32 s3, s3, 4")
    e(f"s_cmp_ge_u32 s{S_T}, 4"); e(f"s_cselect_b32 s{S_U0}, s3, s{S_U0}"); e(f"s_cselect_b32 s{S_TYPE}, 1, 0")
    e(f"s_lshl_b32 s64, s{S_U0}, 5"); e("s_mov_b32 s65, s64")
    e(f"s_lshl_b32 s3, s{S_T}, 8"); e(f"s_sub_u32 s3, s3, {10*256-1024}"); e(f"s_add_u32 s66, s3, 1024")
    e(f"s_cmp_ge_u32 s{S_T}, 10"); e("s_cselect_b32 s64, s3, s64"); e("s_cselect_b32 s65, s66, s65")
    e(f"s_cselect_b32 s{S_TYPE}, 2, s{S_TYPE}"); e(f"s_movk_i32 s3, 2752"); e(f"s_cselect_b32 s{S_STR}, 3072, s3")
    e(f"s_lshl_b32 s3, s{S_T}, 9"); e(f"s_sub_u32 s3, s3, {14*512}"); e("s_add_u32 s66, s3, 256")
    e(f"s_lshl_b32 s67, s{S_T}, 4"); e(f"s_sub_u32 s67, s67, {14*16-86}")
    e(f"s_cmp_ge_u32 s{S_T}, 14"); e("s_cselect_b32 s64, s3, s64"); e("s_cselect_b32 s65, s66, s65")
    e(f"s_cselect_b32 s{S_TYPE}, 3, s{S_TYPE}"); e(f"s_cselect_b32 s{S_U0}, s67, s{S_U0}")
    e(f"s_lshl_b32 s{S_STR64}, s{S_STR}, 6"); e(f"s_lshl_b32 s{S_STR32}, s{S_STR}, 5")
    e(f"s_mov_b32 s{S_MASK}, 0xffff0000"); e(f"s_mov_b32 s{S_ONES}, 0x3f803f80")
    e("v_lshrrev_b32 v3, 3, v0")
    e("v_and_b32 v4, 7, v0")
    e(f"v_lshlrev_b32 v{V_VX}, 10, v3"); e(f"v_lshl_add_u32 v{V_VX}, v4, 4, v{V_VX}")
    e("v_bfe_u32 v5, v3, 1, 3"); e("v_xor_b32 v5, v5, v4")
    e(f"v_lshlrev_b32 v{V_XW}, 7, v3"); e(f"v_lshl_add_u32 v{V_XW}, v5, 4, v{V_XW}")
    e(f"s_cmp_eq_u32 s{S_TYPE}, 1"); e("s_cselect_b32 s66, 17, 15")
    for dst, src in ((V_VW, 0), (V_VW9, 6)):
        if src == 6: e("v_add_u32 v6, 512, v1")
        e(f"v_mul_u32_u24 v3, 3641, v{src}"); e("v_lshrrev_b32 v3, 16, v3")
        e("v_mul_u32_u24 v4, 18, v3"); e(f"v_sub_u32 v4, v{src}, v4"); e("v_min_u32 v4, s66, v4")
        e(f"v_mul_u32_u24 v3, s{S_STR}, v3"); e(f"v_lshl_add_u32 v{dst}, v4, 4, v3")
    e("s_waitcnt lgkmcnt(0)")
    srd(20, 38, 39, WS_USED); srd(24, 36, 37, 256)
    e(f"s_mov_b32 s{S_ZERO}, 0")
    e(f"s_cmp_eq_u32 s{S_TYPE}, 2"); e("s_cbranch_scc0 K1_nozero")
    e(f"s_cmp_eq_u32 s{S_MB}, 0"); e("s_cbranch_scc0 K1_nozero")
    e(f"s_cmp_eq_u32 s{S_WAVE}, 7"); e("s_cbranch_scc0 K1_nozero")
    e(f"s_mov_b32 s{S_ZERO}, 1")
    for j in range(4): e(f"v_mov_b32 v{4+j}, 0")
    e("v_lshlrev_b32 v3, 4, v1")
    e(f"s_sub_u32 s3, s{S_T}, 10"); e("s_mul_i32 s3, s3, 8704"); e(f"s_add_u32 s3, s3, {KV_OFF}")
    for j in range(8):
        if j == 4: e("s_add_u32 s3, s3, 4096")
        e(f"buffer_store_dwordx4 v[4:7], v3, s[20:23], s3 offen offset:{1024*(j%4)} sc0 sc1")
    e("s_add_u32 s3, s3, 4096"); e("s_mov_b64 exec, 0xffffffff")
    e(f"buffer_store_dwordx4 v[4:7], v3, s[20:23], s3 offen sc0 sc1")
    e("s_mov_b64 exec, -1")
    lab("K1_nozero")
    e(f"s_lshl_b32 s3, s{S_MB}, 17")
    e("s_add_u32 s4, s28, s3"); e("s_addc_u32 s5, s29, 0"); e("s_mov_b32 s6, 0x20000"); e("s_mov_b32 s7, 0x00020000")
    e(f"s_mov_b32 s3, 0x10000")
    for c in range(8):
        e(f"buffer_load_dwordx4 {vr(V_XR+8*c,4)}, v{V_VX}, s[4:7], 0 offen offset:{128*c}")
        e(f"buffer_load_dwordx4 {vr(V_XR+8*c+4,4)}, v{V_VX}, s[4:7], s3 offen offset:{128*c}")
    e(f"s_cmp_ge_u32 s{S_TYPE}, 2")
    e("s_cselect_b64 s[8:9], s[30:31], s[32:33]"); e("s_cselect_b64 s[12:13], s[30:31], s[34:35]")
    e(f"s_mov_b32 s3, {512*2752}"); e(f"s_cselect_b32 s3, {512*3072}, s3")
    e("s_add_u32 s8, s8, s64"); e("s_addc_u32 s9, s9, 0"); e("s_sub_u32 s10, s3, s64"); e("s_mov_b32 s11, 0x00020000")
    e("s_add_u32 s12, s12, s65"); e("s_addc_u32 s13, s13, 0"); e("s_sub_u32 s14, s3, s65"); e("s_mov_b32 s15, 0x00020000")
    e(f"s_cmp_eq_u32 s{S_TG}, 1")
    e("s_cselect_b64 s[16:17], s[12:13], s[8:9]"); e("s_cselect_b32 s18, s14, s10"); e("s_mov_b32 s19, 0x00020000")
    e(f"s_cselect_b32 s{S_C9}, {SEGB}, 0")
    e(f"s_and_b32 s3, s{S_UG}, 1")
    e(f"s_mul_i32 s{S_KW9A}, s3, s{S_STR32}")
    e(f"s_mul_i32 s3, s3, 9216"); e(f"s_add_u32 s{S_C9}, s{S_C9}, s3")
    e(f"s_lshl_b32 s3, s{S_WAVE}, 10"); e(f"s_add_u32 s{S_DMAW}, s3, {WBASE}")
    e(f"s_sub_u32 s{S_C9}, s{S_C9}, s3"); e(f"s_add_u32 s{S_C9}, s{S_C9}, 8192")
    e(f"s_mov_b32 s{S_KW}, 0"); e(f"s_mov_b32 s{S_DST}, 0"); e(f"s_mov_b32 s{S_TMP2}, {WST}")
    for c in range(3):
        for x in k1_dma(f"K1_pro_no9_{c}"):
            if x.endswith(":"): L.append(x)
            else: e(x)
    e("v_and_b32 v3, 31, v1"); e("v_lshrrev_b32 v4, 5, v1")
    e("v_bfe_u32 v5, v3, 1, 3"); e("v_xor_b32 v5, v5, v4")
    e(f"s_lshl_b32 s3, s{S_TG}, 13")
    e("v_lshlrev_b32 v3, 7, v3"); e("v_add_u32 v3, s3, v3")
    e(f"v_lshl_add_u32 v{V_XA}, v5, 4, v3")
    for p in range(1, 4): e(f"v_xor_b32 v{V_XA+p}, {32*p}, v{V_XA}")
    e("v_bfe_u32 v3, v1, 4, 1"); e(f"v_mul_u32_u24 v3, {SEGB}, v3")
    e("v_bfe_u32 v5, v1, 2, 2"); e("v_lshl_add_u32 v5, v4, 3, v5"); e("v_mul_u32_u24 v5, 288, v5")
    e("v_and_b32 v6, 3, v1"); e("v_lshlrev_b32 v6, 3, v6")
    e(f"s_lshl_b32 s3, s{S_UG}, 6"); e(f"s_add_u32 s3, s3, {WBASE}")
    e(f"v_add3_u32 v{V_WA}, v3, v5, v6"); e(f"v_add_u32 v{V_WA}, s3, v{V_WA}")
    for r in range(80): e(f"v_mov_b32 v{V_ACC+r}, 0")
    for r in range(4): e(f"v_mov_b32 v{2+r}, 0")
    e(f"s_mov_b32 s{S_CNT}, 0"); e(f"s_mov_b32 s{S_RST}, 0"); e(f"s_mov_b32 s{S_XI}, 8")
    st.mark()
    for i in range(16):
        e(f"s_waitcnt vmcnt({12 + 15 - i})")
        g = i & 1
        for j in range(4):
            r = V_XR + 4 * i + j
            e(f"v_dot2c_f32_bf16 v{2+2*g}, s{S_ONES}, v{r}")
            e(f"v_dot2c_f32_bf16 v{3+2*g}, v{r}, v{r}")
    st.mark()
    e("s_nop 2")
    for dpp in ("quad_perm:[1,0,3,2]", "quad_perm:[2,3,0,1]", "row_half_mirror"):
        for r in range(4): e(f"v_add_f32_dpp v{2+r}, v{2+r}, v{2+r} {dpp} row_mask:0xf bank_mask:0xf")
    e(f"s_mov_b32 s3, {fbits(1/512)}")
    for g in range(2):
        e(f"v_mul_f32 v{2+2*g}, s3, v{2+2*g}"); e(f"v_mul_f32 v{3+2*g}, s3, v{3+2*g}")
    for g in range(2): e(f"v_fma_f32 v{3+2*g}, -v{2+2*g}, v{2+2*g}, v{3+2*g}")
    for g in range(2): e(f"v_max_f32 v{3+2*g}, 0, v{3+2*g}")
    for g in range(2): rbf(2+2*g, 2+2*g)
    for g in range(2): rbf(3+2*g, 3+2*g)
    for g in range(2): e(f"v_add_f32 v{3+2*g}, {fbits(1e-5)}, v{3+2*g}")
    for g in range(2): rbf(3+2*g, 3+2*g)
    for g in range(2): e(f"v_sqrt_f32 v{3+2*g}, v{3+2*g}")
    e("s_nop 0")
    for g in range(2): rbf(3+2*g, 3+2*g)
    for g in range(2): e(f"v_rcp_f32 v{V_NA+2*g}, v{3+2*g}")
    e("s_nop 0")
    for g in range(2): e(f"v_mul_f32 v{V_NA+2*g+1}, -v{2+2*g}, v{V_NA+2*g}".replace("v_mul_f32", "v_mul_f32_e64"))
    for x in k1_unpack(False): e(x)
    for g in k1_norm():
        for x in g: e(x)
    for x in k1_xwrite(): e(x)
    e("s_waitcnt vmcnt(8) lgkmcnt(0)")
    e("s_barrier")
    st.mark()
    e(f"s_cmp_eq_u32 s{S_TYPE}, 2"); e("s_cbranch_scc1 K1_S4")
    e(f"s_cmp_eq_u32 s{S_TYPE}, 1"); e("s_cbranch_scc0 K1_N4")
    e(f"s_cmp_eq_u32 s{S_UG}, 0"); e("s_cbranch_scc1 K1_N5a")
    e(f"s_cmp_eq_u32 s{S_UG}, 1"); e("s_cbranch_scc1 K1_N5b")
    for var in ("N4", "N5a", "N5b", "S4"): k1_loop(var)
    lab("K1_EPI")
    st.mark()
    e("s_waitcnt lgkmcnt(0)")
    e("v_lshlrev_b32 v10, 4, v1")
    e(f"s_lshl_b32 s3, s{S_MB}, 2"); e(f"s_lshl_b32 s64, s{S_TG}, 1"); e("s_add_u32 s3, s3, s64")
    e(f"s_mul_i32 s64, s3, {NKS}"); e(f"s_add_u32 s64, s64, s{S_U0}")
    e(f"s_add_u32 s66, s3, s{S_UG}"); e(f"s_mul_i32 s66, s66, {NKS}"); e(f"s_add_u32 s66, s66, s{S_U0}"); e("s_add_u32 s66, s66, 8"); e("s_lshl_b32 s66, s66, 10")
    e(f"s_lshl_b32 s3, s{S_UG}, 1"); e("s_add_u32 s64, s64, s3"); e("s_lshl_b32 s64, s64, 10")
    e(f"s_add_u32 s65, s64, {NKS*1024}")
    e("s_nop 7")
    e(f"s_cmp_eq_u32 s{S_TYPE}, 2"); e("s_cbranch_scc1 K1_EPI_KV")
    e(f"s_cmp_eq_u32 s{S_TYPE}, 3"); e("s_cbranch_scc1 K1_EPI_Q")
    c0 = -2 * 0.7978845608028654 * LOG2E; c1 = c0 * 0.044715
    e(f"v_mov_b32 v12, {fbits(c1)}"); e(f"v_mov_b32 v13, {fbits(c0)}")
    def f_epi(acc, soff, imm, tb):
        t = tb; o = tb + 8
        pr = [(acc + 2 * j, acc + 8 + 2 * j, t + 2 * j) for j in range(4)]
        for g, u, tt in pr: e(f"v_pk_mul_f32 {vr(tt,2)}, {vr(g,2)}, {vr(g,2)}")
        for g, u, tt in pr: e(f"v_pk_fma_f32 {vr(tt,2)}, {vr(tt,2)}, v[12:13], v[12:13] op_sel:[0,0,1] op_sel_hi:[1,0,1]")
        for g, u, tt in pr: e(f"v_pk_mul_f32 {vr(tt,2)}, {vr(tt,2)}, {vr(g,2)}")
        for j in range(8): e(f"v_exp_f32 v{t+j}, v{t+j}")
        for g, u, tt in pr: e(f"v_pk_mul_f32 {vr(g,2)}, {vr(g,2)}, {vr(u,2)}")
        for g, u, tt in pr: e(f"v_pk_add_f32 {vr(tt,2)}, {vr(tt,2)}, 1.0 op_sel_hi:[1,0]")
        for j in range(8): e(f"v_rcp_f32 v{t+j}, v{t+j}")
        e("s_nop 0")
        for g, u, tt in pr: e(f"v_pk_mul_f32 {vr(g,2)}, {vr(g,2)}, {vr(tt,2)}")
        for j, (g, u, tt) in enumerate(pr): e(f"v_cvt_pk_bf16_f32 v{o+j}, v{g}, v{g+1}")
        e(f"buffer_store_dwordx4 {vr(o,4)}, v10, s[20:23], s{soff} offen offset:{imm}")
    for i, (a, f) in enumerate(((0, 0), (0, 1), (1, 0), (1, 1))):
        f_epi(V_ACC + 16 * i, 64 + f, 1024 * a, 24 + 12 * (i % 2))
    e(f"s_cmp_eq_u32 s{S_TYPE}, 1"); e("s_cbranch_scc0 K1_DONE")
    e(f"s_cmp_lt_u32 s{S_WAVE}, 4"); e("s_cbranch_scc0 K1_DONE")
    f_epi(V_ACC + 64, 66, 0, 24)
    e("s_branch K1_DONE")
    lab("K1_EPI_Q")
    e(f"s_mov_b32 s68, {fbits(LOG2E)}"); e(f"s_mov_b32 s69, {fbits(1e-6)}")
    e("s_add_u32 s66, s64, 8192"); e("s_add_u32 s67, s65, 8192")
    def phi(acc, t):
        for j in range(8): e(f"v_pk_mul_f32 {vr(t+2*j,2)}, {vr(acc+2*j,2)}, s[68:69] op_sel_hi:[1,0]")
        for j in range(16): e(f"v_exp_f32_e64 v{t+j}, v{t+j} clamp")
        for j in range(16): e(f"v_max_f32 v{acc+j}, s69, v{acc+j}")
        for j in range(8): e(f"v_pk_add_f32 {vr(acc+2*j,2)}, {vr(acc+2*j,2)}, {vr(t+2*j,2)}")
    for i, (a, f) in enumerate(((0, 0), (0, 1), (1, 0), (1, 1))):
        acc = V_ACC + 16 * i; o = 48 + 8 * (i % 2)
        phi(acc, 24)
        for j in range(8): e(f"v_cvt_pk_bf16_f32 v{o+j}, v{acc+2*j}, v{acc+2*j+1}")
        e(f"buffer_store_dwordx4 {vr(o,4)}, v10, s[20:23], s{64+f} offen offset:{1024*a}")
        e(f"buffer_store_dwordx4 {vr(o+4,4)}, v10, s[20:23], s{66+f} offen offset:{1024*a}")
    e("s_branch K1_DONE")
    lab("K1_EPI_KV")
    e(f"s_mov_b32 s68, {fbits(LOG2E)}"); e(f"s_mov_b32 s69, {fbits(1e-6)}")
    e("s_mov_b32 s70, 0x0000ffff"); e("s_mov_b32 s71, 0x0000ffff")
    e("s_mov_b32 s72, 0xffff0000"); e("s_mov_b32 s73, 0xffff0000")
    DK = V_XR
    for r in range(16): e(f"v_mov_b32 v{64+r}, s{S_ONES}")
    for i, (a, f) in enumerate(((0, 0), (0, 1), (1, 0), (1, 1))):
        acc = V_ACC + 16 * i; A = 48 + 8 * (i % 2); B = 64 + 8 * (i % 2)
        e("s_mov_b64 exec, s[70:71]")
        phi(acc, 24)
        e("s_mov_b64 exec, s[72:73]")
        for j in range(8): e(f"v_cvt_pk_bf16_f32 v{B+j}, v{acc+2*j}, v{acc+2*j+1}")
        e("s_mov_b64 exec, -1")
        for j in range(8): e(f"v_cvt_pk_bf16_f32 v{A+j}, v{acc+2*j}, v{acc+2*j+1}")
        e("s_nop 1")
        d = DK + 16 * a
        e(f"v_mfma_f32_32x32x16_bf16 {vr(d,16)}, {vr(A,4)}, {vr(B,4)}, " + ("0" if f == 0 else vr(d, 16)))
        e(f"v_mfma_f32_32x32x16_bf16 {vr(d,16)}, {vr(A+4,4)}, {vr(B+4,4)}, {vr(d,16)}")
    e(f"s_sub_u32 s{S_TMP}, s{S_T}, 10"); e(f"s_lshl_b32 s3, s{S_TMP}, 2")
    lab("K1_poll")
    e("buffer_load_dword v2, off, s[24:27], s3 sc0 sc1")
    e("s_waitcnt vmcnt(0)")
    e("v_readfirstlane_b32 s64, v2")
    e("s_cmp_eq_u32 s64, 0"); e("s_cbranch_scc0 K1_polled")
    e("s_sleep 4"); e("s_branch K1_poll")
    lab("K1_polled")
    e("v_and_b32 v3, 31, v1"); e("v_lshrrev_b32 v4, 5, v1")
    e("v_subrev_u32 v3, 15, v3"); e("v_lshlrev_b32 v3, 6, v3"); e("v_lshl_add_u32 v3, v4, 5, v3")
    e(f"s_mul_i32 s3, s{S_TG}, 8704"); e(f"s_mul_i32 s64, s{S_UG}, 2176"); e("s_add_u32 s3, s3, s64"); e(f"s_add_u32 s3, s3, {WBASE+2*WST}")
    e("v_add_u32 v3, s3, v3")
    e("s_mov_b32 s70, 0xffff8000"); e("s_mov_b32 s71, 0xffff8000")
    e("s_nop 7")
    e("s_mov_b64 exec, s[70:71]")
    for a in range(2):
        e(f"ds_write_b128 v3, {vr(DK+16*a,4)} offset:{1088*a}")
        e(f"ds_write_b128 v3, {vr(DK+16*a+4,4)} offset:{1088*a+16}")
    e("s_mov_b64 exec, -1")
    e("s_waitcnt lgkmcnt(0)"); e("s_barrier")
    e("v_lshlrev_b32 v3, 2, v0"); e(f"v_add_u32 v4, {WBASE+2*WST}, v3")
    for i in range(5):
        e(f"ds_read_b32 v{24+2*i}, v4 offset:{2048*i}"); e(f"ds_read_b32 v{25+2*i}, v4 offset:{2048*i+8704}")
    e(f"s_mul_i32 s3, s{S_TMP}, 8704"); e(f"s_add_u32 s3, s3, {KV_OFF}")
    e("s_add_u32 s4, s38, s3"); e("s_addc_u32 s5, s39, 0"); e("s_movk_i32 s6, 8704"); e("s_mov_b32 s7, 0x00020000")
    e("s_movk_i32 s64, 4096"); e("s_movk_i32 s65, 8192")
    e("s_waitcnt lgkmcnt(0)")
    for i in range(5): e(f"v_add_f32 v{24+2*i}, v{24+2*i}, v{25+2*i}")
    for i in range(5):
        so = ["0", "0", "s64", "s64", "s65"][i]
        e(f"buffer_atomic_add_f32 v{24+2*i}, v3, s[4:7], {so} offen offset:{2048*(i%2)}")
    lab("K1_DONE")
    if STAMP:
        st.mark(); e("s_waitcnt vmcnt(0)"); st.mark(); st.real()
        st.dump(S_WAVE, 38, 39, STAMP_OFF, "K1_END")
    lab("K1_END")
    e("s_endpgm")

def kernel2():
    st = Stamps(80)
    KVL = 131072
    SW, STM, SKQ = 40, 41, 42
    V_L16, V_DV, V_RA, V_KA, V_XRES = 10, 11, 12, 16, 20
    V_TOK = 32
    V_WF = 96
    V_ACC2 = 128
    V_O = 160
    V_KF = 224
    L.append(".globl p2_kernel"); L.append(".p2align 8"); L.append(".type p2_kernel,@function"); lab("p2_kernel")
    st.real(); st.mark()
    e("s_load_dwordx2 s[28:29], s[0:1], 0")
    e("s_load_dwordx2 s[30:31], s[0:1], 16")
    e("s_load_dwordx4 s[32:35], s[0:1], 48")
    e("s_load_dwordx2 s[38:39], s[0:1], 72")
    e("s_cmp_ge_u32 s2, 256"); e("s_cbranch_scc1 K2_END")
    e("v_lshrrev_b32 v2, 6, v0"); e("v_and_b32 v1, 63, v0")
    e(f"v_readfirstlane_b32 s{SW}, v2")
    e("s_and_b32 s3, s2, 7"); e("s_lshr_b32 s44, s2, 3")
    e("s_lshl_b32 s43, s3, 2"); e("s_and_b32 s3, s44, 3"); e("s_add_u32 s43, s43, s3")
    e("s_lshr_b32 s44, s44, 2")
    e(f"s_and_b32 s{STM}, s{SW}, 1"); e(f"s_lshr_b32 s{SKQ}, s{SW}, 1")
    e(f"s_mul_i32 s45, s{SKQ}, 28"); e(f"s_cmp_gt_u32 s{SKQ}, 0"); e("s_cselect_b32 s3, 2, 0"); e("s_cselect_b32 s46, 28, 30"); e("s_add_u32 s45, s45, s3")
    e(f"s_cmp_eq_u32 s{SKQ}, 3"); e("s_cselect_b32 s46, 32, s46")
    e(f"v_lshlrev_b32 v{V_L16}, 4, v1")
    e("v_lshrrev_b32 v3, 3, v1"); e("v_and_b32 v4, 7, v1"); e("v_bfe_u32 v5, v1, 4, 1"); e("v_lshlrev_b32 v5, 2, v5"); e("v_xor_b32 v4, v4, v5")
    e(f"s_lshl_b32 s3, s{STM}, 15")
    e("v_lshlrev_b32 v3, 10, v3"); e("v_lshl_add_u32 v3, v4, 4, v3"); e(f"v_add_u32 v{V_DV}, s3, v3")
    e("v_lshrrev_b32 v3, 3, v0"); e("v_and_b32 v4, 7, v0")
    e("v_lshlrev_b32 v17, 10, v3"); e("v_lshl_add_u32 v17, v4, 4, v17")
    e("s_lshl_b32 s47, s43, 16"); e("s_lshl_b32 s3, s44, 7"); e("s_add_u32 s47, s47, s3")
    e("s_waitcnt lgkmcnt(0)")
    e(f"s_add_u32 s4, s38, {KV_OFF}"); e("s_addc_u32 s5, s39, 0"); e(f"s_mov_b32 s6, {KV_BYTES}"); e("s_mov_b32 s7, 0x00020000")
    e(f"s_lshl_b32 s48, s{SW}, 10")
    for i in range(5):
        e(f"buffer_load_dwordx4 {vr(V_O+4*i,4)}, v{V_L16}, s[4:7], s48 offen")
        if i < 4: e("s_add_u32 s48, s48, 8192")
    srd(16, 28, 29, 2097152); srd(20, 34, 35, 2097152)
    e(f"buffer_load_dwordx4 {vr(V_XRES,4)}, v17, s[16:19], s47 offen")
    e("s_lshl_b32 s48, s45, 14")
    e(f"s_cmp_eq_u32 s{SKQ}, 3"); e("s_cselect_b64 s[8:9], s[30:31], s[32:33]"); e("s_cselect_b32 s48, 0, s48")
    e("s_add_u32 s48, s48, s3")
    e("s_add_u32 s8, s8, s48"); e("s_addc_u32 s9, s9, 0"); e("s_lshl_b32 s10, s46, 14"); e("s_sub_u32 s10, s10, s3"); e("s_mov_b32 s11, 0x00020000")
    e("s_lshl_b32 s48, s43, 1"); e(f"s_add_u32 s48, s48, s{STM}"); e(f"s_mul_i32 s48, s48, {NKS}"); e("s_add_u32 s48, s48, s45"); e("s_lshl_b32 s48, s48, 10")
    e("s_add_u32 s12, s38, s48"); e("s_addc_u32 s13, s39, 0"); e("s_lshl_b32 s14, s46, 10"); e("s_mov_b32 s15, 0x00020000")
    e(f"s_lshl_b32 s49, s{SW}, 12")
    def issue(c):
        for i in range(4):
            e(f"s_add_u32 m0, s49, {(c%4)*32768 + i*1024}")
            e(f"s_mov_b32 s48, {c*65536 + i*8192}")
            e(f"buffer_load_dwordx4 v{V_DV}, s[8:11], s48 offen lds")
        e(f"s_movk_i32 s48, {c*4096}")
        for i in range(4):
            e(f"buffer_load_dwordx4 {vr(V_TOK+16*(c%4)+4*i,4)}, v{V_L16}, s[12:15], s48 offen offset:{1024*i}")
    for c in range(4): issue(c)
    e("v_lshrrev_b32 v3, 5, v1"); e("v_bfe_u32 v4, v1, 2, 2"); e("v_lshl_add_u32 v3, v3, 2, v4"); e("v_lshlrev_b32 v3, 7, v3")
    e("v_bfe_u32 v4, v1, 3, 1"); e("v_lshl_add_u32 v3, v4, 6, v3")
    e("v_bfe_u32 v4, v1, 4, 1"); e("v_lshl_add_u32 v3, v4, 5, v3")
    e("v_and_b32 v4, 3, v1"); e("v_lshl_add_u32 v3, v4, 3, v3")
    e(f"s_lshl_b32 s3, s{SKQ}, 13"); e(f"v_add_u32 v{V_RA}, s3, v3")
    e(f"v_xor_b32 v{V_RA+1}, 64, v{V_RA}")
    e(f"v_add_u32 v{V_RA+2}, 0x10000, v{V_RA}"); e(f"v_add_u32 v{V_RA+3}, 0x10000, v{V_RA+1}")
    e("v_and_b32 v3, 31, v1"); e("v_max_u32 v3, 15, v3"); e("v_lshlrev_b32 v3, 5, v3"); e("v_lshrrev_b32 v4, 5, v1")
    e("v_lshl_add_u32 v3, v4, 4, v3"); e(f"v_add_u32 v{V_KA}, {KVL - 15*32}, v3")
    for r in range(32): e(f"v_mov_b32 v{V_ACC2+r}, 0")
    e(f"v_lshlrev_b32 v3, 3, v0"); e(f"v_add_u32 v3, {KVL}, v3")
    e("s_waitcnt vmcnt(33)")
    for i in range(5):
        e(f"v_cvt_pk_bf16_f32 v{V_O+4*i}, v{V_O+4*i}, v{V_O+4*i+1}")
        e(f"v_cvt_pk_bf16_f32 v{V_O+4*i+1}, v{V_O+4*i+2}, v{V_O+4*i+3}")
        e(f"ds_write_b64 v3, {vr(V_O+4*i,2)} offset:{4096*i}")
    st.mark()
    e(f"s_mov_b32 s50, {fbits(1e-6)}")
    e(f"s_cmp_eq_u32 s{SKQ}, 3"); e("s_cbranch_scc1 K2_S")
    def wreads(c):
        for k in range(4):
            for nf in range(2):
                ra = V_RA + nf + 2 * ((c % 4) // 2)
                for rd in range(2):
                    e(f"ds_read_b64_tr_b16 {vr(V_WF+8*k+4*nf+2*rd,2)}, v{ra} offset:{(c%2)*32768 + k*2048 + rd*1024}")
    def head(c):
        n = [24, 16, 16, 16, 16, 16, 8, 0][c]
        e(f"s_waitcnt vmcnt({n}) lgkmcnt(0)"); e("s_barrier")
    for c in range(8):
        head(c)
        wreads(c)
        if 1 <= c <= 4: issue(c + 3)
        for k in range(4):
            e(f"s_waitcnt lgkmcnt({12-4*k})")
            for nf in range(2):
                acc = V_ACC2 + 16 * nf
                e(f"v_mfma_f32_32x32x16_bf16 {vr(acc,16)}, {vr(V_WF+8*k+4*nf,4)}, {vr(V_TOK+16*(c%4)+4*k,4)}, {vr(acc,16)}")
    e("s_branch K2_FIN")
    lab("K2_S")
    for c in range(8):
        head(c)
        for k in range(4): e(f"ds_read_b128 {vr(V_KF+4*k,4)}, v{V_KA} offset:{544*(4*c+k)}")
        for k in range(4):
            e(f"s_waitcnt lgkmcnt({3-k})")
            e(f"v_mfma_f32_32x32x16_bf16 {vr(V_O+16*k,16)}, {vr(V_KF+4*k,4)}, {vr(V_TOK+16*(c%4)+4*k,4)}, 0")
        wreads(c)
        if 1 <= c <= 4: issue(c + 3)
        for k in range(4):
            o = V_O + 16 * k
            e(f"v_add_f32 v{o}, s50, v{o}")
        for k in range(4):
            o = V_O + 16 * k
            e(f"v_rcp_f32 v{o}, v{o}")
        for k in range(4):
            o = V_O + 16 * k
            for j in range(8): e(f"v_mul_f32 v{o+8+j}, v{o}, v{o+8+j}")
            for j in range(4): e(f"v_cvt_pk_bf16_f32 v{V_KF+4*k+j}, v{o+8+2*j}, v{o+9+2*j}")
        e("s_waitcnt lgkmcnt(0)"); e("s_nop 0")
        for k in range(4):
            for nf in range(2):
                acc = V_ACC2 + 16 * nf
                e(f"v_mfma_f32_32x32x16_bf16 {vr(acc,16)}, {vr(V_WF+8*k+4*nf,4)}, {vr(V_KF+4*k,4)}, {vr(acc,16)}")
    lab("K2_FIN")
    st.mark()
    e("v_and_b32 v3, 31, v1"); e("v_lshrrev_b32 v4, 5, v1"); e("v_and_b32 v5, 15, v1"); e("v_xor_b32 v4, v4, v5")
    e("v_lshlrev_b32 v3, 8, v3"); e("v_lshl_add_u32 v3, v4, 4, v3")
    e(f"s_lshl_b32 s3, s{SW}, 13"); e("v_add_u32 v3, s3, v3")
    for q in range(1, 8): e(f"v_xor_b32 v{24+q}, {q*32}, v3")
    e("v_mov_b32 v24, v3")
    e("v_lshrrev_b32 v4, 3, v0"); e("v_and_b32 v5, 7, v0"); e("v_lshlrev_b32 v5, 1, v5"); e("v_and_b32 v6, 15, v4"); e("v_xor_b32 v5, v5, v6")
    e("v_lshlrev_b32 v4, 8, v4"); e("v_lshl_add_u32 v4, v5, 4, v4"); e("v_xor_b32 v5, 16, v4")
    for q in range(8): e(f"ds_write_b128 v{24+q}, {vr(V_ACC2+4*q,4)}")
    e("s_waitcnt lgkmcnt(0)"); e("s_barrier")
    for k in range(4):
        e(f"ds_read_b128 {vr(32+8*k,4)}, v4 offset:{16384*k}"); e(f"ds_read_b128 {vr(36+8*k,4)}, v5 offset:{16384*k}")
    e(f"s_mov_b32 s52, {fbits(-LOG2E)}"); e("s_mov_b32 s54, 0xffff0000")
    for j in range(4):
        e(f"v_lshlrev_b32 v{72+2*j}, 16, v{V_XRES+j}"); e(f"v_and_b32 v{73+2*j}, s54, v{V_XRES+j}")
    e("s_waitcnt lgkmcnt(4)")
    for j in range(4): e(f"v_pk_add_f32 {vr(32+2*j,2)}, {vr(32+2*j,2)}, {vr(40+2*j,2)}")
    e("s_waitcnt lgkmcnt(2)")
    for j in range(4): e(f"v_pk_add_f32 {vr(32+2*j,2)}, {vr(32+2*j,2)}, {vr(48+2*j,2)}")
    for j in range(4): e(f"v_pk_mul_f32 {vr(64+2*j,2)}, {vr(32+2*j,2)}, s[52:53] op_sel_hi:[1,0]")
    for j in range(8): e(f"v_exp_f32 v{64+j}, v{64+j}")
    e("s_waitcnt lgkmcnt(0)")
    for j in range(4): e(f"v_pk_mul_f32 {vr(32+2*j,2)}, {vr(32+2*j,2)}, {vr(56+2*j,2)}")
    for j in range(4): e(f"v_pk_add_f32 {vr(64+2*j,2)}, {vr(64+2*j,2)}, 1.0 op_sel_hi:[1,0]")
    for j in range(8): e(f"v_rcp_f32 v{64+j}, v{64+j}")
    e("s_nop 0")
    for j in range(4): e(f"v_pk_fma_f32 {vr(32+2*j,2)}, {vr(32+2*j,2)}, {vr(64+2*j,2)}, {vr(72+2*j,2)}")
    for j in range(4): e(f"v_cvt_pk_bf16_f32 v{40+j}, v{32+2*j}, v{33+2*j}")
    e(f"buffer_store_dwordx4 v[40:43], v17, s[20:23], s47 offen")
    if STAMP:
        st.mark(); e("s_waitcnt vmcnt(0)"); st.mark(); st.real()
        st.dump(SW, 38, 39, STAMP_OFF + 16384, "K2_END")
    lab("K2_END")
    e("s_endpgm")

hdr = """; Two-phase fused block: p1 = LayerNorm + QKV/gate/up GEMM + phi/GEGLU epilogues + kv reduction,
; @launch kernel=p1_kernel grid=(256,1,1) block=(512,1,1) lds=163840
; @launch kernel=p2_kernel grid=(256,1,1) block=(512,1,1) lds=163840
.amdgcn_target "amdgcn-amd-amdhsa--gfx950"
.text"""
kernel1(); kernel2()
def kd(n):
    return f""".amdhsa_kernel {n}
  .amdhsa_next_free_vgpr 256
  .amdhsa_next_free_sgpr 102
  .amdhsa_accum_offset 256
  .amdhsa_group_segment_fixed_size 0
  .amdhsa_kernarg_size 80
  .amdhsa_user_sgpr_count 2
  .amdhsa_user_sgpr_kernarg_segment_ptr 1
  .amdhsa_system_sgpr_workgroup_id_x 1
.end_amdhsa_kernel"""
txt = hdr + "\n" + "\n".join(L) + '\n.section .rodata,"a"\n.p2align 6\n' + kd("p1_kernel") + "\n.p2align 6\n" + kd("p2_kernel") + "\n"
open(OUT, "w").write(txt)
```

```python
import sys, struct
STAMP = "--stamp" in sys.argv
OUT = [a for a in sys.argv[1:] if not a.startswith("--")]
NAME = "recurrent_scan__linear_attn_block__glu_gated_geglu__prompt"
OUT = OUT[0] if OUT else f"cdna_kernels/{NAME}.s"
X = set(a[2:] for a in sys.argv if a.startswith("--"))
def opt(name, dflt):
    r = [a[len(name)+3:] for a in sys.argv if a.startswith('--' + name + '=')]
    return r[0] if r else dflt

L = []
def e(s): L.append("    " + s)
def lab(s): L.append(s + ":")
def vr(b, n): return f"v[{b}:{b+n-1}]"
def fbits(x): return "0x%08x" % struct.unpack("<I", struct.pack("<f", x))[0]

NKS = 118
KV_OFF = 0x800000
KV_BYTES = 32 * 1088
FLG_OFF = KV_OFF + KV_BYTES
FLG_BYTES = 2048
WS_USED = FLG_OFF + FLG_BYTES
STAMP_OFF = 0x8000000
LOG2E = 1.4426950408889634
SC = "sc0 sc1"

def srd(d, lo, hi, size):
    e(f"s_mov_b32 s{d}, s{lo}"); e(f"s_mov_b32 s{d+1}, s{hi}")
    e(f"s_mov_b32 s{d+2}, {size}"); e(f"s_mov_b32 s{d+3}, 0x00020000")

class Stamps:
    def __init__(self): self.n = 0
    def mark(self, i=None):
        if STAMP:
            k = self.n if i is None else i
            e("s_memtime s[98:99]"); e("s_memrealtime s[100:101]"); e("s_waitcnt lgkmcnt(0)")
            e(f"v_writelane_b32 v255, s98, {2*k}"); e(f"v_writelane_b32 v255, s100, {2*k+1}")
            if i is None: self.n += 1
    def dump(self, swave, label):
        if not STAMP: return
        e(f"s_cmp_lg_u32 s{swave}, {opt('sw', '0')}"); e(f"s_cbranch_scc1 {label}")
        srd(4, 38, 39, "0x10000000")
        e("s_lshl_b32 s3, s2, 7"); e(f"s_add_u32 s3, s3, {STAMP_OFF}")
        e("v_lshlrev_b32 v3, 2, v1"); e("s_mov_b64 exec, 0xffffffff")
        e(f"buffer_store_dword v255, v3, s[4:7], s3 offen")
st = Stamps()

XST = 16384; WBASE = 32768; SEGB = 18560; WST = 36992; KVP = 146432; LCNT = 144000; WOA = 54 * 2048
V_VW = 10
V_VX, V_XW, V_DV = 19, 20, 21
V_NA = 22; V_ST = 30; V_UT = 40; V_PK = 72; V_XR = 96
V_XA, V_WA = 22, 26
V_SET = [32, 60]
V_ACC = 96
S_WAVE, S_TG, S_UH, S_MB, S_T, S_STR, S_U0, S_CNT = 40, 41, 42, 43, 44, 45, 46, 47
S_DMAW, S_KW, S_KS, S_HFO, S_Q, S_XI, S_MASK, S_ONES = 48, 49, 50, 51, 52, 53, 54, 55
S_RST, S_DST, S_TYPE, S_STR64, S_STR32, S_TMP, S_TMP2 = 56, 57, 58, 59, 60, 61, 62
S_RW, S_KWEND, S_RX = 72, 73, 63
S_MT, S_NT, S_R2, S_RY = 74, 75, 76, 91

def k1_dma():
    G = []
    for p in range(9):
        g = [f"s_add_u32 m0, s{S_DMAW}, {1024*p}"]
        g.append(f"s_add_u32 s{S_KS}, s{S_KW}, s{S_HFO}" if p in (0, 5) else "s_nop 0")
        g.append(f"buffer_load_dwordx4 v{V_VW+p}, s[8:11], s{S_KS} offen lds")
        G.append(g)
    G[-1] += [f"s_add_u32 s{S_KW}, s{S_KW}, s{S_STR64}", f"s_add_u32 s{S_DST}, s{S_DST}, 1",
              f"s_cmp_eq_u32 s{S_KW}, s{S_KWEND}", f"s_cselect_b32 s{S_KW}, 0, s{S_KW}",
              f"s_cmp_eq_u32 s{S_DST}, 3", f"s_cselect_b32 s{S_TMP}, {-2*WST & 0xffffffff}, s{S_TMP2}",
              f"s_cselect_b32 s{S_DST}, 0, s{S_DST}", f"s_add_u32 s{S_DMAW}, s{S_DMAW}, s{S_TMP}"]
    return G

def k1_reads(s_, p, var):
    b = V_SET[s_]
    offs = [0, 32, SEGB, SEGB + 32] if var == "S8" else [0, 32, 64, 96]
    if var == "N9a": offs.append(256)
    if var == "N9b": offs.append(128)
    def w(a): return [f"ds_read_b64_tr_b16 {vr(b+8+4*a,2)}, v{V_WA} offset:{p*4608+offs[a]}",
                      f"ds_read_b64_tr_b16 {vr(b+10+4*a,2)}, v{V_WA} offset:{p*4608+1152+offs[a]}"]
    r = [f"ds_read_b128 {vr(b,4)}, v{V_XA+p}"] + w(0) + [f"ds_read_b128 {vr(b+4,4)}, v{V_XA+p} offset:4096"]
    for a in range(1, len(offs)): r += w(a)
    return r

def mfma(d, a, b, c=None):
    return f"v_mfma_f32_32x32x16_bf16 {vr(d,16)}, {vr(a,4)}, {vr(b,4)}, " + (vr(d, 16) if c is None else c)

def k1_mfma(s_, var):
    b = V_SET[s_]
    m = []
    for a in range(4):
        for f in range(2):
            acc = V_ACC + 16 * (2 * a + f)
            W = b + 8 + 4 * a; X_ = b + 4 * f
            m.append(mfma(acc, X_, W) if var == "S8" else mfma(acc, W, X_))
    if var in ("N9a", "N9b"):
        m.append(mfma(V_ACC + 128, b + 24, b + (0 if var == "N9a" else 4)))
    return m

def k1_unpack(g):
    r = [f"s_set_gpr_idx_on s{S_XI}, gpr_idx(SRC1)", "s_nop 0"]
    for j in range(4 * g, 4 * g + 4):
        r.append(f"v_lshlrev_b32 v{V_UT+2*j}, 16, v{V_XR+j}")
        r.append(f"v_and_b32 v{V_UT+2*j+1}, s{S_MASK}, v{V_XR+j}")
    r.append("s_set_gpr_idx_off")
    return r
def k1_norm(g):
    r = []
    a = V_NA + 2 * g
    for j in range(4 * g, 4 * g + 4):
        r += [f"v_fma_f32 v{V_UT+2*j}, v{V_UT+2*j}, v{a}, v{a+1}", f"v_fma_f32 v{V_UT+2*j+1}, v{V_UT+2*j+1}, v{a}, v{a+1}"]
    for j in range(4 * g, 4 * g + 4):
        r.append(f"v_cvt_pk_bf16_f32 v{V_PK+j}, v{V_UT+2*j}, v{V_UT+2*j+1}")
    r.append(f"ds_write_b128 v{V_XW}, {vr(V_PK+4*g,4)} offset:{4096*g}")
    return r
def k1_xadv():
    return [f"v_xor_b32 v{V_XW}, {XST}, v{V_XW}", f"s_add_u32 s{S_XI}, s{S_XI}, 16", f"s_and_b32 s{S_XI}, s{S_XI}, 127"]

def layout(body):
    n = len(body)
    for i, it in enumerate(body):
        if it[0] == 'm' and it[2]:
            cnt = 0; j = i; w = None
            while True:
                j = (j - 1) % n
                o = body[j]
                if o[0] == 'w0': break
                if o[0] == 'l':
                    if o[2] in it[2]: w = cnt; break
                    cnt += 1
                if j == i: break
            if w is not None: e(f"s_waitcnt lgkmcnt({min(w, 15)})")
        if it[1].endswith(":"): L.append(it[1])
        else: e(it[1])

def k1_cons_loop(var):
    def need(p): return [[(p, 2)], [(p, 3)], [(p, 5)], [], [(p, 7)], [], [(p, 9)], [], [(p, 11)]]
    rs = [2, 2, 2, 2, 2, 2, 0, 0, 0]
    lab(f"K1_{var}")
    for x in k1_reads(0, 0, var): e(x)
    B = [('x', f"K1_{var}_loop:")]
    def stepx(s_, p, extra):
        mf = k1_mfma(s_, var); rd = k1_reads(s_ ^ 1, p + 1, var); ri = 0
        for i, m in enumerate(mf):
            B.append(('m', m, need(p)[i]))
            for _ in range(rs[i]):
                if ri < len(rd): B.append(('l', rd[ri], (p + 1, ri))); ri += 1
            for x in extra.get(i, []): B.append(('x', x))
    stepx(0, 0, {})
    stepx(1, 1, {6: [f"s_add_u32 s{S_RST}, s{S_RST}, 1", f"s_cmp_eq_u32 s{S_RST}, 3",
                     f"s_cselect_b32 s{S_TMP}, {-2*WST & 0xffffffff}, s{S_TMP2}", f"s_cselect_b32 s{S_RST}, 0, s{S_RST}"]})
    stepx(0, 2, {6: [f"v_xor_b32 v{V_XA+p}, {XST}, v{V_XA+p}" for p in range(3)],
                 7: [f"v_xor_b32 v{V_XA+3}, {XST}, v{V_XA+3}", f"v_add_u32 v{V_WA}, s{S_TMP}, v{V_WA}",
                     f"s_add_u32 s{S_CNT}, s{S_CNT}, 1", f"s_cmp_lt_u32 s{S_CNT}, 8"]})
    m = k1_mfma(1, var); nd = need(3)
    B.append(('m', m[0], nd[0])); B.append(('m', m[1], nd[1]))
    B.append(('w0', "s_waitcnt vmcnt(0) lgkmcnt(0)"))
    B.append(('x', "s_barrier"))
    r0 = k1_reads(0, 0, var); ri = 0
    for i in range(2, len(m)):
        B.append(('m', m[i], []))
        for _ in range(3 if i < 4 else 2):
            if ri < len(r0): B.append(('l', r0[ri], (0, ri))); ri += 1
    assert ri == len(r0)
    B.append(('x', f"s_cbranch_scc1 K1_{var}_loop"))
    layout(B)
    e("s_branch K1_EPI")

def kernel():
    A4 = opt('a', '2') == '4'
    L.append(f".globl {NAME}_kernel"); L.append(".p2align 8"); L.append(f".type {NAME}_kernel,@function"); lab(f"{NAME}_kernel")
    if STAMP: e("v_mov_b32 v255, 0")
    st.mark()
    e("s_load_dwordx4 s[28:31], s[0:1], 0")
    e("s_load_dwordx4 s[32:35], s[0:1], 32")
    e("s_load_dwordx4 s[36:39], s[0:1], 64")
    e("s_load_dwordx2 s[80:81], s[0:1], 16")
    e("s_load_dwordx4 s[84:87], s[0:1], 48")
    e("s_cmp_ge_u32 s2, 256"); e("s_cbranch_scc1 K_END")
    e("v_lshrrev_b32 v2, 6, v0"); e("v_and_b32 v1, 63, v0")
    e(f"v_readfirstlane_b32 s{S_WAVE}, v2")
    e("s_and_b32 s3, s2, 7"); e(f"s_lshr_b32 s{S_TMP}, s2, 3")
    e(f"s_lshl_b32 s{S_MT}, s3, 2"); e(f"s_and_b32 s66, s{S_TMP}, 3"); e(f"s_add_u32 s{S_MT}, s{S_MT}, s66"); e(f"s_lshr_b32 s{S_NT}, s{S_TMP}, 2")
    e(f"s_lshl_b32 s{S_R2}, s66, 1"); e(f"s_add_u32 s{S_R2}, s{S_R2}, s{S_NT}"); e(f"s_and_b32 s{S_R2}, s{S_R2}, {7 if opt('r2','1')=='1' else 0}")
    e(f"s_mul_i32 s{S_RY}, s66, {opt('rym','11')}"); e(f"s_mul_i32 s66, s{S_NT}, {opt('ryn','5')}"); e(f"s_add_u32 s{S_RY}, s{S_RY}, s66")
    if A4:
        e(f"s_and_b32 s{S_MB}, s3, 3"); e(f"s_lshl_b32 s{S_MB}, s{S_MB}, 2")
        e(f"s_and_b32 s64, s{S_TMP}, 3"); e(f"s_lshr_b32 s65, s{S_TMP}, 2")
        e("s_lshr_b32 s3, s3, 2"); e("s_lshl_b32 s3, s3, 3")
    else:
        e(f"s_and_b32 s{S_MB}, s3, 1"); e(f"s_lshl_b32 s{S_MB}, s{S_MB}, 3")
        e(f"s_and_b32 s64, s{S_TMP}, 7"); e(f"s_lshr_b32 s65, s{S_TMP}, 3")
        e("s_lshr_b32 s3, s3, 1"); e("s_lshl_b32 s3, s3, 2")
    e(f"s_add_u32 s{S_MB}, s{S_MB}, s64"); e("s_add_u32 s3, s3, s65")
    e(f"s_lshl_b32 s{S_RX}, s65, {0 if A4 else 1}"); e(f"s_and_b32 s{S_RX}, s{S_RX}, {int(opt('rx','7'))}")
    e(f"s_lshl_b32 s{S_RW}, s64, {1 if A4 else 0}"); e(f"s_and_b32 s{S_RW}, s{S_RW}, {int(opt('rw','0'))}")
    e(f"s_and_b32 s{S_Q}, s{S_WAVE}, 3")
    e("v_bfe_u32 v3, v0, 3, 5"); e("v_and_b32 v4, 7, v0")
    e(f"v_lshlrev_b32 v{V_VX}, 10, v3"); e(f"v_lshl_add_u32 v{V_VX}, v4, 4, v{V_VX}")
    e(f"s_lshl_b32 s70, s{S_RX}, 7"); e(f"s_lshl_b32 s71, s{S_MB}, 17")
    e("s_mov_b32 s6, 0x20000"); e("s_mov_b32 s7, 0x00020000")
    e("s_waitcnt lgkmcnt(0)")
    e("s_add_u32 s4, s28, s71"); e("s_addc_u32 s5, s29, 0")
    e(f"s_cmp_lt_u32 s{S_WAVE}, 4"); e("s_cbranch_scc1 K1_skipx")
    e("s_setprio 3")
    def xload(i):
        c, g = divmod(i, 4)
        if g == 0: so = "s70"
        else:
            e(f"s_add_u32 s71, s70, {32768*g}"); so = "s71"
        e(f"buffer_load_dwordx4 {vr(V_XR+4*i,4)}, v{V_VX}, s[4:7], {so} offen")
        if g == 3: e("s_add_u32 s70, s70, 128"); e("s_and_b32 s70, s70, 1023")
    XD = int(opt('xd', '8'))
    for i in range(XD): xload(i)
    lab("K1_skipx")
    e("s_lshl_b32 s3, s3, 2")
    tab = [4, 5, 0, 10, 6, 7, 1, 11, 8, 2, 12, 14, 9, 3, 13, 15]
    tv = sum(t << (4 * i) for i, t in enumerate(tab))
    e(f"s_mov_b32 s64, {tv & 0xffffffff:#x}"); e(f"s_mov_b32 s65, {tv >> 32:#x}")
    e("s_lshr_b64 s[64:65], s[64:65], s3"); e(f"s_and_b32 s{S_T}, s64, 15")
    e(f"s_and_b32 s{S_TG}, s{S_WAVE}, 1"); e(f"s_lshr_b32 s{S_UH}, s{S_Q}, 1")
    e(f"s_lshl_b32 s{S_U0}, s{S_T}, 3")
    e(f"s_mul_i32 s3, s{S_T}, 9"); e("s_sub_u32 s3, s3, 4")
    e(f"s_cmp_ge_u32 s{S_T}, 4"); e(f"s_cselect_b32 s{S_U0}, s3, s{S_U0}"); e(f"s_cselect_b32 s{S_TYPE}, 1, 0")
    e(f"s_lshl_b32 s64, s{S_U0}, 5"); e("s_mov_b32 s65, s64")
    e(f"s_lshl_b32 s3, s{S_T}, 8"); e(f"s_sub_u32 s3, s3, {10*256-1024}"); e(f"s_add_u32 s66, s3, 1024")
    e(f"s_cmp_ge_u32 s{S_T}, 10"); e("s_cselect_b32 s64, s3, s64"); e("s_cselect_b32 s65, s66, s65")
    e(f"s_cselect_b32 s{S_TYPE}, 2, s{S_TYPE}"); e(f"s_movk_i32 s3, 2752"); e(f"s_cselect_b32 s{S_STR}, 3072, s3")
    e(f"s_lshl_b32 s3, s{S_T}, 9"); e(f"s_sub_u32 s3, s3, {14*512}"); e("s_add_u32 s66, s3, 256")
    e(f"s_lshl_b32 s67, s{S_T}, 4"); e(f"s_sub_u32 s67, s67, {14*16-86}")
    e(f"s_cmp_ge_u32 s{S_T}, 14"); e("s_cselect_b32 s64, s3, s64"); e("s_cselect_b32 s65, s66, s65")
    e(f"s_cselect_b32 s{S_TYPE}, 3, s{S_TYPE}"); e(f"s_cselect_b32 s{S_U0}, s67, s{S_U0}")
    e(f"s_lshl_b32 s{S_STR64}, s{S_STR}, 6"); e(f"s_lshl_b32 s{S_STR32}, s{S_STR}, 5")
    e(f"s_mov_b32 s{S_MASK}, 0xffff0000"); e(f"s_mov_b32 s{S_ONES}, 0x3f803f80")
    e(f"s_cmp_eq_u32 s{S_TYPE}, 1"); e("s_cselect_b32 s66, 17, 15")
    for p in range(9):
        e(f"v_add_u32 v6, {64*p}, v1")
        e(f"v_mul_u32_u24 v5, 3641, v6"); e("v_lshrrev_b32 v5, 16, v5")
        e("v_mul_u32_u24 v7, 18, v5"); e(f"v_sub_u32 v7, v6, v7"); e("v_min_u32 v7, s66, v7")
        e(f"v_mul_u32_u24 v5, s{S_STR}, v5"); e(f"v_lshl_add_u32 v{V_VW+p}, v7, 4, v5")
    e("v_lshrrev_b32 v5, 3, v1"); e("v_bfe_u32 v6, v1, 4, 1"); e("v_lshlrev_b32 v6, 2, v6"); e("v_xor_b32 v6, v6, v4")
    e("v_lshlrev_b32 v5, 10, v5"); e(f"v_lshl_add_u32 v{V_DV}, v6, 4, v5")
    srd(20, 38, 39, WS_USED); srd(24, 36, 37, 256)
    e(f"s_cmp_eq_u32 s{S_TG}, 1")
    e("s_cselect_b64 s[8:9], s[34:35], s[32:33]"); e("s_cselect_b32 s64, s65, s64"); e(f"s_cselect_b32 s{S_DMAW}, {SEGB}, 0")
    e(f"s_cmp_ge_u32 s{S_TYPE}, 2")
    e("s_cselect_b64 s[8:9], s[30:31], s[8:9]")
    e(f"s_mov_b32 s3, {512*2752}"); e(f"s_cselect_b32 s3, {512*3072}, s3")
    e("s_add_u32 s8, s8, s64"); e("s_addc_u32 s9, s9, 0"); e("s_sub_u32 s10, s3, s64"); e("s_mov_b32 s11, 0x00020000")
    e(f"s_mul_i32 s{S_HFO}, s{S_UH}, s{S_STR32}")
    e(f"s_mul_i32 s3, s{S_UH}, 9216"); e(f"s_add_u32 s{S_DMAW}, s{S_DMAW}, s3"); e(f"s_add_u32 s{S_DMAW}, s{S_DMAW}, {WBASE}")
    e(f"s_lshl_b32 s{S_KWEND}, s{S_STR64}, 3"); e(f"s_mov_b32 s{S_TMP2}, {WST}")
    e(f"s_mov_b32 s{S_CNT}, 0")
    e(f"s_cmp_lt_u32 s{S_WAVE}, 4"); e("s_cbranch_scc1 K1_CONS")
    e(f"s_add_u32 s3, s{S_RW}, 1"); e("s_and_b32 s3, s3, 7"); e(f"s_mul_i32 s{S_KW}, s3, s{S_STR64}")
    e(f"s_mov_b32 s{S_DST}, 1"); e(f"s_add_u32 s{S_DMAW}, s{S_DMAW}, {WST}")
    e("v_bfe_u32 v5, v3, 1, 3"); e("v_xor_b32 v5, v5, v4")
    e(f"v_lshlrev_b32 v{V_XW}, 7, v3"); e(f"v_lshl_add_u32 v{V_XW}, v5, 4, v{V_XW}")
    for r in range(8): e(f"v_mov_b32 v{V_ST+r}, 0")
    e(f"s_sub_u32 s{S_XI}, s{S_RW}, s{S_RX}"); e(f"s_and_b32 s{S_XI}, s{S_XI}, 7"); e(f"s_lshl_b32 s{S_XI}, s{S_XI}, 4")
    WB = int(opt('wb', '28'))
    for i in range(32):
        if i + XD < 32: xload(i + XD)
        if i + XD == WB: e("s_barrier")
        e(f"s_waitcnt vmcnt({min(XD, 31 - i)})")
        g = i & 3
        for j in range(4):
            r = V_XR + 4 * i + j
            e(f"v_dot2c_f32_bf16 v{V_ST+2*g}, s{S_ONES}, v{r}")
            e(f"v_dot2c_f32_bf16 v{V_ST+2*g+1}, v{r}, v{r}")
    e("s_nop 2")
    for dpp in ("quad_perm:[1,0,3,2]", "quad_perm:[2,3,0,1]", "row_half_mirror"):
        for r in range(8): e(f"v_add_f32_dpp v{V_ST+r}, v{V_ST+r}, v{V_ST+r} {dpp} row_mask:0xf bank_mask:0xf")
    e(f"s_mov_b32 s3, {fbits(1/512)}")
    G4 = range(4)
    for r in range(8): e(f"v_mul_f32 v{V_ST+r}, s3, v{V_ST+r}")
    for g in G4: e(f"v_fma_f32 v{V_ST+1+2*g}, -v{V_ST+2*g}, v{V_ST+2*g}, v{V_ST+1+2*g}")
    for g in G4: e(f"v_max_f32 v{V_ST+1+2*g}, 0, v{V_ST+1+2*g}")
    for g in G4: e(f"v_cvt_pk_bf16_f32 v{V_ST+1+2*g}, v{V_ST+2*g}, v{V_ST+1+2*g}")
    for g in G4: e(f"v_lshlrev_b32 v{V_ST+2*g}, 16, v{V_ST+1+2*g}")
    for g in G4: e(f"v_and_b32 v{V_ST+1+2*g}, s{S_MASK}, v{V_ST+1+2*g}")
    for g in G4: e(f"v_add_f32 v{V_ST+1+2*g}, {fbits(1e-5)}, v{V_ST+1+2*g}")
    for g in G4: e(f"v_cvt_pk_bf16_f32 v{V_ST+1+2*g}, v{V_ST+1+2*g}, v{V_ST+1+2*g}")
    for g in G4: e(f"v_and_b32 v{V_ST+1+2*g}, s{S_MASK}, v{V_ST+1+2*g}")
    for g in G4: e(f"v_sqrt_f32 v{V_ST+1+2*g}, v{V_ST+1+2*g}")
    for g in G4: e(f"v_cvt_pk_bf16_f32 v{V_ST+1+2*g}, v{V_ST+1+2*g}, v{V_ST+1+2*g}")
    for g in G4: e(f"v_and_b32 v{V_ST+1+2*g}, s{S_MASK}, v{V_ST+1+2*g}")
    for g in G4: e(f"v_rcp_f32 v{V_NA+2*g}, v{V_ST+1+2*g}")
    for g in G4: e(f"v_mul_f32_e64 v{V_NA+2*g+1}, -v{V_ST+2*g}, v{V_NA+2*g}")
    for g in G4:
        for x in k1_unpack(g) + k1_norm(g): e(x)
    for x in k1_xadv(): e(x)
    e("s_setprio 0")
    e("s_waitcnt lgkmcnt(0)")
    e("s_barrier")
    D = k1_dma()
    for g in D[5:]:
        for x in g: e(x)
    lab("K1_PROD_loop")
    for g in G4:
        for x in D[2*g] + k1_unpack(g) + D[2*g+1] + k1_norm(g): e(x)
    for x in D[8] + k1_xadv(): e(x)
    e(f"s_add_u32 s{S_CNT}, s{S_CNT}, 1")
    e(f"s_cmp_lt_u32 s{S_CNT}, 6")
    e("s_waitcnt vmcnt(9) lgkmcnt(0)")
    e("s_barrier")
    e("s_cbranch_scc1 K1_PROD_loop")
    V_KF, V_PO, V_O, V_PQ, V_WO, V_AS = 28, 36, 44, 76, 124, 188
    e(f"s_lshl_b32 s3, s{S_NT}, 7")
    e("s_add_u32 s12, s80, s3"); e("s_addc_u32 s13, s81, 0"); e(f"s_sub_u32 s14, {512*1024}, s3"); e("s_mov_b32 s15, 0x00020000")
    e("s_add_u32 s16, s84, s3"); e("s_addc_u32 s17, s85, 0"); e(f"s_sub_u32 s18, {1376*1024}, s3"); e("s_mov_b32 s19, 0x00020000")
    e(f"s_lshl_b32 s64, s{S_Q}, 10")
    e(f"s_lshl_b32 s65, s{S_Q}, 17")
    e(f"s_lshl_b32 s67, s{S_R2}, 14")
    e(f"s_add_u32 s68, s{S_RY}, s{S_UH}"); e("s_lshl_b32 s68, s68, 14"); e(f"s_lshl_b32 s3, s{S_TG}, 13"); e("s_add_u32 s68, s68, s3")
    def wo_batch():
        G = []
        for p in range(8):
            g = [f"s_add_u32 m0, s64, {WOA + 4096*p}"]
            g.append("s_add_u32 s66, s65, s67" if p % 2 == 0 else "s_add_u32 s66, s66, 8192")
            g.append(f"buffer_load_dwordx4 v{V_DV}, s[12:15], s66 offen lds")
            if p % 2: g += ["s_add_u32 s67, s67, 16384", "s_and_b32 s67, s67, 0x1ffff"]
            G.append(g)
        return G
    def rounds(sig, pi, n):
        for i in range(n):
            e(f"s_add_u32 s66, s68, {(pi + 2*i) * 16384}")
            e(f"s_sub_u32 s69, s66, {86*16384}")
            e(f"s_cselect_b32 s66, s66, s69")
            e(f"s_add_u32 m0, s64, {(sig + 2*i) * 2048}")
            e("s_nop 0")
            e(f"buffer_load_dwordx4 v{V_DV}, s[16:19], s66 offen lds")
    def tr_lane(dst):
        e("v_lshrrev_b32 v3, 5, v1"); e("v_bfe_u32 v4, v1, 2, 2"); e("v_lshl_add_u32 v3, v3, 2, v4"); e("v_lshlrev_b32 v3, 7, v3")
        e("v_bfe_u32 v4, v1, 3, 1"); e("v_lshl_add_u32 v3, v4, 6, v3")
        e("v_bfe_u32 v4, v1, 4, 1"); e("v_lshl_add_u32 v3, v4, 5, v3")
        e("v_and_b32 v4, 3, v1"); e(f"v_lshl_add_u32 v{dst}, v4, 3, v3")
    def wo_read(h0):
        for i in range(4):
            for nf in range(2):
                for rd in range(2):
                    e(f"ds_read_b64_tr_b16 {vr(V_WO+8*(h0+i)+4*nf+2*rd,2)}, v{12+nf} offset:{i*8192 + rd*4096}")
        e("s_waitcnt lgkmcnt(0)")
    P = wo_batch()
    for g in G4:
        for x in P[2*g] + k1_unpack(g) + P[2*g+1] + k1_norm(g): e(x)
    tr_lane(12)
    e(f"s_add_u32 s3, s64, {WOA}"); e("v_add_u32 v12, s3, v12"); e("v_xor_b32 v13, 64, v12")
    e("s_waitcnt vmcnt(8) lgkmcnt(0)")
    e("s_barrier")
    rounds(16, 24, 3)
    e("s_waitcnt vmcnt(3)")
    wo_read(0)
    for g in wo_batch():
        for x in g: e(x)
    e("s_barrier")
    rounds(22, 30, 3); rounds(28, 0, 4)
    e("s_waitcnt vmcnt(7)")
    wo_read(4)
    rounds(62, 44, 4); rounds(0, 8, 8); rounds(36, 52, 13)
    e(f"v_lshlrev_b32 v10, 4, v1")
    e(f"s_mul_i32 s3, s{S_Q}, 8704"); e(f"s_add_u32 s3, s3, {KV_OFF}")
    e("s_add_u32 s4, s38, s3"); e("s_addc_u32 s5, s39, 0"); e("s_movk_i32 s6, 8704"); e("s_mov_b32 s7, 0x00020000")
    e(f"s_mul_i32 s3, s{S_MT}, {2*NKS}"); e(f"s_lshl_b32 s65, s{S_Q}, 3"); e("s_add_u32 s3, s3, s65"); e("s_add_u32 s3, s3, 86"); e("s_lshl_b32 s70, s3, 10")
    e(f"s_mul_i32 s3, s{S_Q}, 4352"); e(f"s_add_u32 s3, s3, {KVP}")
    e("v_lshlrev_b32 v11, 3, v1"); e("v_add_u32 v11, s3, v11")
    e("v_and_b32 v3, 31, v1"); e("v_max_u32 v3, 15, v3"); e("v_lshlrev_b32 v3, 5, v3"); e("v_lshrrev_b32 v4, 5, v1")
    e("v_lshl_add_u32 v3, v4, 4, v3"); e(f"s_sub_u32 s3, s3, {15*32}"); e("v_add_u32 v14, s3, v3")
    e(f"s_lshr_b32 s71, s{S_MT}, 1"); e("s_lshl_b32 s71, s71, 7"); e(f"s_add_u32 s71, s71, {FLG_OFF + 40}")
    e(f"s_mov_b32 s89, {fbits(1e-6)}")
    e("s_waitcnt vmcnt(0)")
    e("s_barrier")
    e("s_barrier")
    rounds(28, 36, 4); rounds(62, 78, 4)
    e("s_barrier")
    e("s_setprio 2")
    e(f"s_lshl_b32 s67, s{S_R2}, 10")
    def pq(i):
        e("s_add_u32 s66, s70, s67")
        e(f"buffer_load_dwordx4 {vr(V_PQ+8*(i%6),4)}, v10, s[20:23], s66 offen {SC}")
        e(f"s_add_u32 s66, s66, {NKS*1024}")
        e(f"buffer_load_dwordx4 {vr(V_PQ+8*(i%6)+4,4)}, v10, s[20:23], s66 offen {SC}")
        e("s_add_u32 s67, s67, 1024"); e("s_and_b32 s67, s67, 0x1fff")
    e("s_mov_b32 s90, 0")
    lab("K2_kvpoll")
    e(f"buffer_load_dword v2, off, s[20:23], s71 {SC}")
    e("s_add_u32 s90, s90, 1")
    e("s_waitcnt vmcnt(0)")
    e("v_readfirstlane_b32 s66, v2")
    e("s_cmp_lg_u32 s66, 0"); e("s_cbranch_scc1 K2_kvgo")
    e("s_sleep 8")
    e("s_cmp_lt_u32 s90, 0x100000"); e("s_cbranch_scc1 K2_kvpoll")
    lab("K2_kvgo")
    st.mark(7)
    e("s_movk_i32 s65, 4096"); e("s_movk_i32 s69, 8192")
    for i in range(9):
        e(f"buffer_load_dwordx4 {vr(V_AS+4*i,4)}, v10, s[4:7], {['0','s65','s69'][i//4]} offen offset:{1024*(i%4)} {SC}")
    for i in range(6): pq(i)
    for i in range(9):
        e(f"s_waitcnt vmcnt({12 + 8 - i})")
        e(f"v_cvt_pk_bf16_f32 v{V_AS+4*i}, v{V_AS+4*i}, v{V_AS+4*i+1}")
        e(f"v_cvt_pk_bf16_f32 v{V_AS+4*i+1}, v{V_AS+4*i+2}, v{V_AS+4*i+3}")
        if i == 8: e("s_mov_b64 exec, 0xffffffff")
        e(f"ds_write_b64 v11, {vr(V_AS+4*i,2)} offset:{512*i}")
    e("s_mov_b64 exec, -1")
    e(f"s_mul_i32 s88, s{S_R2}, 544")
    def kf(i):
        e("v_add_u32 v3, s88, v14")
        e("s_add_u32 s88, s88, 544"); e(f"s_cmp_eq_u32 s88, {8*544}"); e("s_cselect_b32 s88, 0, s88")
        e(f"ds_read_b128 {vr(V_KF+4*(i%2),4)}, v3")
    def omf(i, t): e(mfma(V_O + 16 * t, V_KF + 4 * (i % 2), V_PQ + 8 * (i % 6) + 4 * t, "0"))
    kf(0); kf(1)
    e("s_waitcnt vmcnt(10) lgkmcnt(1)")
    omf(0, 0); omf(0, 1)
    e("s_nop 10")
    for i in range(8):
        for t in range(2):
            o = V_O + 16 * t
            e(f"v_add_f32 v{o}, s89, v{o}"); e(f"v_rcp_f32 v{o}, v{o}")
            if t == 0 and i < 2: pq(i + 6)
            else: e("s_nop 0")
            for j in range(8): e(f"v_mul_f32 v{o+8+j}, v{o}, v{o+8+j}")
            for j in range(4): e(f"v_cvt_pk_bf16_f32 v{V_PO+4*t+j}, v{o+8+2*j}, v{o+9+2*j}")
            if i < 7:
                if t == 0:
                    n = [10, 10, 8, 6, 4, 2, 0][i]
                    e(f"s_waitcnt vmcnt({n}) lgkmcnt(0)")
                else: e("s_nop 0")
                omf(i + 1, t)
                if t == 1 and i < 6: kf(i + 2)
            else: e("s_nop 1")
            for nf in range(2):
                e(mfma(V_AS + 32 * t + 16 * nf, V_WO + 8 * i + 4 * nf, V_PO + 4 * t, "0" if i == 0 else None))
    e(f"s_mul_i32 s3, s{S_UH}, 73728"); e(f"s_lshl_b32 s65, s{S_TG}, 14"); e("s_add_u32 s3, s3, s65"); e("v_add_u32 v3, s3, v10")
    st.mark(8)
    e("s_barrier")
    e("s_nop 4")
    for r in range(16): e(f"ds_write_b128 v3, {vr(V_AS+4*r,4)} offset:{1024*r}")
    e("s_waitcnt lgkmcnt(0)")
    e("s_barrier")
    if STAMP:
        st.mark(9); st.dump(S_WAVE, "K_END")
    e("s_endpgm")
    lab("K1_CONS")
    e(f"s_or_b32 s3, s2, s{S_WAVE}"); e("s_cmp_eq_u32 s3, 0"); e("s_cbranch_scc0 K1_nozero")
    for j in range(4): e(f"v_mov_b32 v{4+j}, 0")
    e("v_lshlrev_b32 v3, 4, v1")
    e(f"s_mov_b32 s3, {KV_OFF}")
    lab("K1_zloop")
    for j in range(4): e(f"buffer_store_dwordx4 v[4:7], v3, s[20:23], s3 offen offset:{1024*j} {SC}")
    e("s_add_u32 s3, s3, 4096"); e(f"s_cmp_lt_u32 s3, {WS_USED}"); e("s_cbranch_scc1 K1_zloop")
    e("v_mov_b32 v2, 1")
    e("s_waitcnt vmcnt(0)")
    e("s_mov_b64 exec, 1")
    e(f"buffer_store_dword v2, off, s[24:27], 0 {SC}")
    e("s_mov_b64 exec, -1")
    lab("K1_nozero")
    e(f"s_mul_i32 s{S_KW}, s{S_RW}, s{S_STR64}"); e(f"s_mov_b32 s{S_DST}, 0")
    e("v_and_b32 v3, 31, v1"); e("v_lshrrev_b32 v4, 5, v1")
    e("v_bfe_u32 v5, v3, 1, 3"); e("v_xor_b32 v5, v5, v4")
    e(f"s_lshl_b32 s3, s{S_TG}, 13")
    e("v_lshlrev_b32 v3, 7, v3"); e("v_add_u32 v3, s3, v3")
    e(f"v_lshl_add_u32 v{V_XA}, v5, 4, v3")
    for p in range(1, 4): e(f"v_xor_b32 v{V_XA+p}, {32*p}, v{V_XA}")
    e(f"s_cmp_eq_u32 s{S_TYPE}, 2"); e(f"s_movk_i32 s3, {SEGB}"); e("s_cselect_b32 s3, 128, s3"); e("s_cselect_b32 s66, 6, 7")
    e("v_bfe_u32 v3, v1, 4, 1"); e(f"v_mul_u32_u24 v3, s3, v3")
    e("v_bfe_u32 v5, v1, 2, 2"); e("v_lshl_add_u32 v5, v4, 3, v5"); e("v_mul_u32_u24 v5, 288, v5")
    e("v_and_b32 v6, 3, v1"); e("v_lshlrev_b32 v6, 3, v6")
    e(f"s_lshl_b32 s3, s{S_UH}, s66"); e(f"s_add_u32 s3, s3, {WBASE}")
    e(f"v_add3_u32 v{V_WA}, v3, v5, v6"); e(f"v_add_u32 v{V_WA}, s3, v{V_WA}")
    for r in range(72): e(f"v_mov_b64 {vr(V_ACC+2*r,2)}, 0")
    e(f"s_mov_b32 s{S_RST}, 0")
    e(f"v_mov_b32 v27, {LCNT}"); e(f"ds_write_b64 v27, {vr(V_ACC,2)}")
    e("s_barrier")
    st.mark()
    for g in k1_dma() + k1_dma()[:5]:
        for x in g: e(x)
    e("s_waitcnt vmcnt(5)")
    e("s_barrier")
    st.mark()
    e("s_setprio 1")
    e(f"s_cmp_eq_u32 s{S_TYPE}, 2"); e("s_cbranch_scc1 K1_S8")
    e(f"s_cmp_eq_u32 s{S_TYPE}, 1"); e("s_cbranch_scc0 K1_N8")
    e(f"s_cmp_eq_u32 s{S_UH}, 1"); e("s_cbranch_scc1 K1_N9b")
    for var in ("N9a", "N9b", "N8", "S8"): k1_cons_loop(var)
    lab("K1_EPI")
    st.mark()
    e(f"buffer_load_dword v2, off, s[24:27], 0 {SC}")
    e("s_waitcnt lgkmcnt(0)")
    e("v_lshlrev_b32 v10, 4, v1")
    e(f"s_lshl_b32 s3, s{S_MB}, 2"); e(f"s_lshl_b32 s64, s{S_TG}, 1"); e("s_add_u32 s3, s3, s64")
    e(f"s_mul_i32 s64, s3, {NKS}"); e(f"s_add_u32 s64, s64, s{S_U0}")
    e(f"s_add_u32 s66, s3, s{S_UH}"); e(f"s_mul_i32 s66, s66, {NKS}"); e(f"s_add_u32 s66, s66, s{S_U0}"); e("s_add_u32 s66, s66, 8"); e("s_lshl_b32 s66, s66, 10")
    e(f"s_lshl_b32 s3, s{S_UH}, 2"); e("s_add_u32 s64, s64, s3"); e("s_lshl_b32 s64, s64, 10")
    e(f"s_add_u32 s65, s64, {NKS*1024}")
    e(f"s_cmp_eq_u32 s{S_TYPE}, 2"); e("s_cbranch_scc1 K1_EPI_KV")
    e(f"s_cmp_eq_u32 s{S_TYPE}, 3"); e("s_cbranch_scc1 K1_EPI_Q")
    c0 = -2 * 0.7978845608028654 * LOG2E; c1 = c0 * 0.044715
    e(f"v_mov_b32 v12, {fbits(c1)}"); e(f"v_mov_b32 v13, {fbits(c0)}")
    def f_epi(items, tb):
        pr = []
        for k, (acc, soff, imm) in enumerate(items):
            pr += [(acc + 2 * j, acc + 8 + 2 * j, tb + 8 * k + 2 * j) for j in range(4)]
        n = 2 * len(pr); o = tb + 16
        for g, u, tt in pr: e(f"v_pk_mul_f32 {vr(tt,2)}, {vr(g,2)}, {vr(g,2)}")
        for g, u, tt in pr: e(f"v_pk_fma_f32 {vr(tt,2)}, {vr(tt,2)}, v[12:13], v[12:13] op_sel:[0,0,1] op_sel_hi:[1,0,1]")
        for g, u, tt in pr: e(f"v_pk_mul_f32 {vr(tt,2)}, {vr(tt,2)}, {vr(g,2)}")
        for j in range(n): e(f"v_exp_f32 v{tb+j}, v{tb+j}")
        for g, u, tt in pr: e(f"v_pk_mul_f32 {vr(g,2)}, {vr(g,2)}, {vr(u,2)}")
        for g, u, tt in pr: e(f"v_pk_add_f32 {vr(tt,2)}, {vr(tt,2)}, 1.0 op_sel_hi:[1,0]")
        for j in range(n): e(f"v_rcp_f32 v{tb+j}, v{tb+j}")
        for g, u, tt in pr: e(f"v_pk_mul_f32 {vr(g,2)}, {vr(g,2)}, {vr(tt,2)}")
        for j, (g, u, tt) in enumerate(pr): e(f"v_cvt_pk_bf16_f32 v{o+j}, v{g}, v{g+1}")
        for k, (acc, soff, imm) in enumerate(items):
            e(f"buffer_store_dwordx4 {vr(o+4*k,4)}, v10, s[20:23], s{soff} offen offset:{imm} {SC}")
    for a in range(4):
        f_epi([(V_ACC + 32 * a, 64, 1024 * a), (V_ACC + 32 * a + 16, 65, 1024 * a)], 32 + 24 * (a % 2))
    e(f"s_cmp_eq_u32 s{S_TYPE}, 1"); e("s_cbranch_scc0 K1_JOIN")
    f_epi([(V_ACC + 128, 66, 0)], 32)
    e("s_branch K1_JOIN")
    lab("K1_EPI_Q")
    e(f"s_mov_b32 s68, {fbits(LOG2E)}"); e(f"s_mov_b32 s69, {fbits(1e-6)}")
    e("s_add_u32 s66, s64, 8192"); e("s_add_u32 s67, s65, 8192")
    def phi(acc, t):
        for j in range(8): e(f"v_pk_mul_f32 {vr(t+2*j,2)}, {vr(acc+2*j,2)}, s[68:69] op_sel_hi:[1,0]")
        for j in range(16): e(f"v_exp_f32_e64 v{t+j}, v{t+j} clamp")
        for j in range(16): e(f"v_max_f32 v{acc+j}, s69, v{acc+j}")
        for j in range(8): e(f"v_pk_add_f32 {vr(acc+2*j,2)}, {vr(acc+2*j,2)}, {vr(t+2*j,2)}")
    for i in range(8):
        a, f = i >> 1, i & 1
        acc = V_ACC + 16 * i; o = 48 + 8 * (i % 2)
        phi(acc, 32)
        for j in range(8): e(f"v_cvt_pk_bf16_f32 v{o+j}, v{acc+2*j}, v{acc+2*j+1}")
        e(f"buffer_store_dwordx4 {vr(o,4)}, v10, s[20:23], s{64+f} offen offset:{1024*a} {SC}")
        e(f"buffer_store_dwordx4 {vr(o+4,4)}, v10, s[20:23], s{66+f} offen offset:{1024*a} {SC}")
    e("s_branch K1_JOIN")
    lab("K1_EPI_KV")
    e(f"s_sub_u32 s{S_TMP}, s{S_T}, 10")
    e(f"s_mov_b32 s68, {fbits(LOG2E)}"); e(f"s_mov_b32 s69, {fbits(1e-6)}")
    for r in range(4): e(f"v_mov_b32 v{80+r}, s{S_ONES}")
    e("v_and_b32 v3, 15, v1"); e("v_lshrrev_b32 v4, 5, v1")
    e("v_lshlrev_b32 v3, 6, v3"); e("v_lshlrev_b32 v4, 5, v4")
    e(f"s_mul_i32 s3, s{S_TG}, 8704"); e(f"s_mul_i32 s64, s{S_UH}, 2176"); e("s_add_u32 s3, s3, s64"); e(f"s_add_u32 s3, s3, {KVP}")
    e("v_add_u32 v4, s3, v4"); e("v_add_u32 v3, v3, v4")
    e("s_mov_b32 s70, 0x0000ffff"); e("s_mov_b32 s71, 0x0000ffff")
    e("s_mov_b32 s66, 0xffff0000"); e("s_mov_b32 s67, 0xffff0000")
    e("s_mov_b32 s64, 1"); e("s_mov_b32 s65, 1")
    DKs = [(224, V_ACC + 64), (V_ACC, V_ACC + 16)]
    def kvwr(a):
        DK, DZ = DKs[a]; o = 1088 * a
        e("s_mov_b64 exec, s[70:71]")
        e(f"ds_write_b128 v3, {vr(DK,4)} offset:{o+64}"); e(f"ds_write_b128 v3, {vr(DK+4,4)} offset:{o+80}")
        e("s_mov_b64 exec, s[66:67]")
        e(f"ds_write_b128 v3, {vr(DK+8,4)} offset:{o+4352+64}"); e(f"ds_write_b128 v3, {vr(DK+12,4)} offset:{o+4352+80}")
        e("s_mov_b64 exec, s[64:65]")
        e(f"ds_write_b128 v4, {vr(DZ,4)} offset:{o}"); e(f"ds_write_b128 v4, {vr(DZ+4,4)} offset:{o+16}")
        e(f"ds_write_b128 v4, {vr(DZ+8,4)} offset:{o+4352}"); e(f"ds_write_b128 v4, {vr(DZ+12,4)} offset:{o+4352+16}")
        e("s_mov_b64 exec, -1")
    for a in range(2):
        DK, DZ = DKs[a]
        for f in range(2):
            ak = V_ACC + 16 * (2 * a + f); av = V_ACC + 16 * (2 * (a + 2) + f); A = 48 + 16 * f; B = 56 + 16 * f
            for j in range(8): e(f"v_cvt_pk_bf16_f32 v{B+j}, v{av+2*j}, v{av+2*j+1}")
            phi(ak, 32)
            for j in range(8): e(f"v_cvt_pk_bf16_f32 v{A+j}, v{ak+2*j}, v{ak+2*j+1}")
            if a == 1 and f == 0: kvwr(0)
            e("s_nop 1")
            e(mfma(DK, A, B, "0" if f == 0 else None)); e(mfma(DZ, A, 80, "0" if f == 0 else None))
            e(mfma(DK, A + 4, B + 4)); e(mfma(DZ, A + 4, 80))
    e("v_lshlrev_b32 v5, 2, v0"); e(f"v_add_u32 v6, {KVP}, v5")
    e(f"s_mul_i32 s3, s{S_TMP}, 8704"); e(f"s_add_u32 s3, s3, {KV_OFF}")
    e("s_add_u32 s4, s38, s3"); e("s_addc_u32 s5, s39, 0"); e("s_movk_i32 s6, 8704"); e("s_mov_b32 s7, 0x00020000")
    e("s_nop 5")
    kvwr(1)
    def zcheck(tag):
        e("s_mov_b32 s90, 0")
        lab(f"K1_zpoll{tag}")
        e("s_waitcnt vmcnt(0)")
        e("v_readfirstlane_b32 s66, v2")
        e("s_cmp_lg_u32 s66, 0"); e(f"s_cbranch_scc1 K1_zdone{tag}")
        e("s_sleep 4")
        e(f"buffer_load_dword v2, off, s[24:27], 0 {SC}")
        e("s_add_u32 s90, s90, 1"); e("s_cmp_lt_u32 s90, 0x100000"); e(f"s_cbranch_scc1 K1_zpoll{tag}")
        lab(f"K1_zdone{tag}")
    e("v_mov_b32 v7, 1")
    e("s_waitcnt lgkmcnt(0)")
    e("s_mov_b64 exec, 1"); e("ds_add_u32 v27, v7 offset:4"); e("s_mov_b64 exec, -1")
    e("s_movk_i32 s64, 4096"); e("s_movk_i32 s65, 8192")
    zcheck("a")
    lab("K1_kvspin")
    e("ds_read_b32 v7, v27 offset:4"); e("s_waitcnt lgkmcnt(0)")
    e("v_readfirstlane_b32 s66, v7"); e("s_cmp_lt_u32 s66, 4"); e("s_cbranch_scc1 K1_kvspin")
    for i in range(9):
        e(f"ds_read_b32 v{32+2*i}, v6 offset:{1024*i}"); e(f"ds_read_b32 v{33+2*i}, v6 offset:{1024*i+8704}")
    e("s_waitcnt lgkmcnt(0)")
    for i in range(9): e(f"v_add_f32 v{32+2*i}, v{32+2*i}, v{33+2*i}")
    for i in range(9):
        so = ["0", "s64", "s65"][i // 4]
        e(f"buffer_atomic_add_f32 v{32+2*i}, v5, s[4:7], {so} offen offset:{1024*(i%4)}")
    lab("K1_JOIN")
    st.mark()
    V_STG, V_WF, V_TOK, V_AY, V_XRES, V_OUT = 32, 96, 120, 200, 232, 11
    NT = 20
    tr_lane(12)
    e(f"s_mul_i32 s3, s{S_UH}, 73728"); e("v_add_u32 v12, s3, v12"); e("v_xor_b32 v13, 64, v12")
    e(f"s_lshl_b32 s3, s{S_UH}, 12"); e(f"s_sub_u32 s3, {28*2048}, s3"); e("v_add_u32 v14, s3, v12"); e("v_add_u32 v15, s3, v13")
    e(f"s_lshl_b32 s64, s{S_MB}, 7"); e(f"s_lshl_b32 s3, s{S_T}, 2"); e("s_add_u32 s64, s64, s3"); e(f"s_add_u32 s64, s64, {FLG_OFF}")
    e("v_mov_b32 v7, 1")
    zcheck("b")
    e("s_mov_b64 exec, 1")
    e("ds_add_rtn_u32 v6, v27, v7")
    e("s_waitcnt lgkmcnt(0)")
    e("v_readfirstlane_b32 s66, v6")
    e("s_cmp_eq_u32 s66, 3"); e("s_cbranch_scc0 K2_noflag")
    e(f"s_cmp_eq_u32 s{S_TYPE}, 2"); e("s_cbranch_scc1 K2_kvflag")
    e(f"buffer_store_dword v7, off, s[20:23], s64 {SC}")
    e("s_branch K2_noflag")
    lab("K2_kvflag")
    e("v_mov_b32 v6, 1")
    e(f"buffer_atomic_add v6, off, s[24:27], 0 offset:128 {SC}")
    e("s_waitcnt vmcnt(0)")
    e("v_readfirstlane_b32 s66, v6")
    e("s_cmp_eq_u32 s66, 63"); e("s_cbranch_scc0 K2_noflag")
    e("s_mov_b64 exec, 0xffff")
    e("v_lshlrev_b32 v6, 7, v1"); e(f"s_mov_b32 s66, {FLG_OFF + 40}")
    e(f"buffer_store_dword v7, v6, s[20:23], s66 offen {SC}")
    lab("K2_noflag")
    e("s_mov_b64 exec, -1")
    st.mark()
    e("s_setprio 0")
    e("v_and_b32 v3, 31, v1"); e("v_lshrrev_b32 v4, 5, v1"); e(f"v_lshlrev_b32 v{V_OUT}, 10, v3"); e(f"v_lshl_add_u32 v{V_OUT}, v4, 4, v{V_OUT}")
    e(f"s_lshl_b32 s77, s{S_MT}, 16"); e(f"s_lshl_b32 s3, s{S_NT}, 7"); e("s_add_u32 s77, s77, s3")
    e(f"s_lshl_b32 s3, s{S_TG}, 15"); e("s_add_u32 s77, s77, s3"); e(f"s_lshl_b32 s3, s{S_UH}, 6"); e("s_add_u32 s77, s77, s3")
    srd(16, 28, 29, 2097152)
    e(f"buffer_load_dwordx4 {vr(V_XRES,4)}, v{V_OUT}, s[16:19], s77 offen")
    e(f"buffer_load_dwordx4 {vr(V_XRES+4,4)}, v{V_OUT}, s[16:19], s77 offen offset:32")
    e(f"s_lshl_b32 s3, s{S_MT}, 1"); e(f"s_add_u32 s3, s3, s{S_TG}"); e(f"s_mul_i32 s3, s3, {NKS*1024}")
    e("s_add_u32 s8, s38, s3"); e("s_addc_u32 s9, s39, 0"); e(f"s_mov_b32 s10, {86*1024}"); e("s_mov_b32 s11, 0x00020000")
    e(f"s_mul_i32 s79, s{S_UH}, 44"); e(f"s_add_u32 s79, s79, s{S_RY}"); e("s_sub_u32 s3, s79, 86"); e("s_cselect_b32 s79, s79, s3"); e("s_lshl_b32 s79, s79, 10")
    e("s_barrier")
    for j in range(8):
        for nf in range(2):
            for rd in range(2):
                e(f"ds_read_b64_tr_b16 {vr(V_STG+8*j+4*nf+2*rd,2)}, v{14+nf} offset:{j*2048 + rd*1024}")
    e("s_waitcnt lgkmcnt(0)")
    e("s_barrier")
    e(f"s_cmp_eq_u32 s{S_WAVE}, 0"); e("s_cbranch_scc0 K2_go")
    e("v_and_b32 v4, 15, v1"); e("v_lshlrev_b32 v4, 2, v4")
    e(f"s_lshr_b32 s64, s{S_MT}, 1"); e("s_lshl_b32 s64, s64, 7"); e(f"s_add_u32 s64, s64, {FLG_OFF}")
    e("s_mov_b32 s90, 0")
    lab("K2_poll")
    e(f"buffer_load_dword v5, v4, s[20:23], s64 offen {SC}")
    e("s_add_u32 s90, s90, 1")
    e("s_waitcnt vmcnt(0)")
    e("v_cmp_ne_u32 vcc, 0, v5")
    e("s_or_b32 s66, vcc_lo, 0x3c003c00")
    e("s_cmp_eq_u32 s66, -1"); e("s_cbranch_scc1 K2_go")
    e(f"s_sleep {opt('slp','4')}")
    e("s_cmp_lt_u32 s90, 0x100000"); e("s_cbranch_scc1 K2_poll")
    lab("K2_go")
    e("s_barrier")
    st.mark()
    def tok(j):
        e(f"buffer_load_dwordx4 {vr(V_TOK+4*(j%NT),4)}, v10, s[8:11], s79 offen {SC}")
        e("s_add_u32 s79, s79, 1024"); e(f"s_cmp_eq_u32 s79, {86*1024}"); e("s_cselect_b32 s79, 0, s79")
    def wr(j):
        b = V_WF + 8 * (j % 3); off = (j - 8) * 2048 - (32768 if j >= 32 else 0)
        for nf in range(2):
            for rd in range(2):
                e(f"ds_read_b64_tr_b16 {vr(b+4*nf+2*rd,2)}, v{12+nf} offset:{off + rd*1024}")
    TD = int(opt('td', '8'))
    for j in range(TD): tok(j)
    for j in range(44):
        if j == 42:
            e(f"s_cmp_eq_u32 s{S_UH}, 1"); e("s_cbranch_scc1 K2_FIN")
        if j == 28: e("s_barrier")
        if j + TD < 44: tok(j + TD)
        if j + 2 == 32: e("v_add_u32 v12, 0x8000, v12"); e("v_add_u32 v13, 0x8000, v13")
        if 8 <= j + 2 < 44: wr(j + 2)
        lg = "" if j < 8 else f" lgkmcnt({4 * min(2, 43 - j)})"
        e(f"s_waitcnt vmcnt({min(TD, 43 - j)})" + lg)
        W = V_STG + 8 * j if j < 8 else V_WF + 8 * (j % 3)
        for nf in range(2): e(mfma(V_AY + 16 * nf, W + 4 * nf, V_TOK + 4 * (j % NT), "0" if j == 0 else None))
    lab("K2_FIN")
    st.mark()
    e(f"s_mul_i32 s3, s{S_UH}, 73728"); e(f"s_lshl_b32 s65, s{S_TG}, 12"); e("s_add_u32 s64, s3, s65"); e(f"s_add_u32 s64, s64, 32768")
    e("v_add_u32 v3, s64, v10")
    e(f"s_sub_u32 s64, {73728 + 32768}, s3"); e("s_add_u32 s64, s64, s65"); e("v_add_u32 v4, s64, v10")
    e(f"s_lshl_b32 s64, s{S_TG}, 13"); e(f"s_lshl_b32 s65, s{S_UH}, 12"); e("s_add_u32 s64, s64, s65"); e("v_add_u32 v5, s64, v10"); e("v_add_u32 v6, 73728, v5")
    srd(16, 86, 87, 2097152)
    e("s_waitcnt vmcnt(0) lgkmcnt(0)")
    for a_, b_ in ((0, 2), (1, 3), (4, 6), (5, 7)): e(f"v_permlane32_swap_b32 v{V_XRES+a_}, v{V_XRES+b_}")
    e(f"s_cmp_eq_u32 s{S_UH}, 0"); e("s_cbranch_scc1 K2_x0")
    for r in range(4): e(f"ds_write_b128 v3, {vr(V_AY+4*r,4)} offset:{1024*r}")
    KP = 160
    for r in range(8): e(f"v_mov_b64 {vr(KP+2*r,2)}, {vr(V_AY+16+2*r,2)}")
    e("s_branch K2_x1")
    lab("K2_x0")
    for r in range(4): e(f"ds_write_b128 v3, {vr(V_AY+16+4*r,4)} offset:{1024*r}")
    for r in range(8): e(f"v_mov_b64 {vr(KP+2*r,2)}, {vr(V_AY+2*r,2)}")
    lab("K2_x1")
    V_AY = KP
    XU = 144
    for j in range(8):
        e(f"v_lshlrev_b32 v{XU+2*j}, 16, v{V_XRES+j}"); e(f"v_and_b32 v{XU+1+2*j}, s{S_MASK}, v{V_XRES+j}")
    e(f"s_mov_b32 s64, {fbits(-LOG2E)}")
    e("s_waitcnt lgkmcnt(0)")
    e("s_barrier")
    for r in range(4): e(f"ds_read_b128 {vr(32+4*r,4)}, v4 offset:{1024*r}")
    for k in range(2):
        for r in range(4): e(f"ds_read_b128 {vr(48+16*k+4*r,4)}, v5 offset:{16384*k + 1024*r}")
    e("s_waitcnt lgkmcnt(8)")
    for j in range(8): e(f"v_pk_add_f32 {vr(V_AY+2*j,2)}, {vr(V_AY+2*j,2)}, {vr(32+2*j,2)}")
    for k in range(2):
        for r in range(4): e(f"ds_read_b128 {vr(80+16*k+4*r,4)}, v6 offset:{16384*k + 1024*r}")
    for j in range(8): e(f"v_pk_mul_f32 {vr(32+2*j,2)}, {vr(V_AY+2*j,2)}, s[64:65] op_sel_hi:[1,0]")
    for j in range(16): e(f"v_exp_f32 v{32+j}, v{32+j}")
    e("s_waitcnt lgkmcnt(0)")
    for j in range(8): e(f"v_pk_add_f32 {vr(48+2*j,2)}, {vr(48+2*j,2)}, {vr(64+2*j,2)}")
    for j in range(8): e(f"v_pk_add_f32 {vr(32+2*j,2)}, {vr(32+2*j,2)}, 1.0 op_sel_hi:[1,0]")
    for j in range(8): e(f"v_pk_add_f32 {vr(80+2*j,2)}, {vr(80+2*j,2)}, {vr(96+2*j,2)}")
    for j in range(16): e(f"v_rcp_f32 v{32+j}, v{32+j}")
    for j in range(8): e(f"v_pk_add_f32 {vr(48+2*j,2)}, {vr(48+2*j,2)}, {vr(80+2*j,2)}")
    for j in range(8): e(f"v_pk_mul_f32 {vr(32+2*j,2)}, {vr(32+2*j,2)}, {vr(V_AY+2*j,2)}")
    for j in range(8): e(f"v_pk_fma_f32 {vr(32+2*j,2)}, {vr(32+2*j,2)}, {vr(48+2*j,2)}, {vr(XU+2*j,2)}")
    for j in range(8): e(f"v_cvt_pk_bf16_f32 v{64+j}, v{32+2*j}, v{33+2*j}")
    e("s_nop 1")
    for a_, b_ in ((0, 2), (1, 3), (4, 6), (5, 7)): e(f"v_permlane32_swap_b32 v{64+a_}, v{64+b_}")
    e(f"buffer_store_dwordx4 v[64:67], v{V_OUT}, s[16:19], s77 offen")
    e(f"buffer_store_dwordx4 v[68:71], v{V_OUT}, s[16:19], s77 offen offset:32")
    if STAMP:
        st.mark(); e("s_waitcnt vmcnt(0)"); st.mark()
        st.dump(S_WAVE, "K_END")
    lab("K_END")
    e("s_endpgm")

hdr = f"""; Fused block in one launch: phase 1 = LayerNorm + QKV/gate/up GEMM + phi/GEGLU epilogues + kv reduction,
; @launch grid=(256,1,1) block=(512,1,1) lds=163840
.amdgcn_target "amdgcn-amd-amdhsa--gfx950"
.text"""
kernel()
kd = f""".amdhsa_kernel {NAME}_kernel
  .amdhsa_next_free_vgpr 256
  .amdhsa_next_free_sgpr 102
  .amdhsa_accum_offset 256
  .amdhsa_group_segment_fixed_size 0
  .amdhsa_kernarg_size 80
  .amdhsa_user_sgpr_count 2
  .amdhsa_user_sgpr_kernarg_segment_ptr 1
  .amdhsa_system_sgpr_workgroup_id_x 1
.end_amdhsa_kernel"""
open(OUT, "w").write(hdr + "\n" + "\n".join(L) + '\n.section .rodata,"a"\n.p2align 6\n' + kd + "\n")
```

```python
import sys, struct
STAMP = "--stamp" in sys.argv
OUT = [a for a in sys.argv[1:] if not a.startswith("--")]
NAME = "recurrent_scan__linear_attn_block__glu_gated_geglu__prompt"
OUT = OUT[0] if OUT else f"cdna_kernels/{NAME}.s"
X = set(a[2:] for a in sys.argv if a.startswith("--"))
def opt(name, dflt):
    r = [a[len(name)+3:] for a in sys.argv if a.startswith('--' + name + '=')]
    return r[0] if r else dflt

L = []
def e(s): L.append("    " + s)
def lab(s): L.append(s + ":")
def vr(b, n): return f"v[{b}:{b+n-1}]"
def fbits(x): return "0x%08x" % struct.unpack("<I", struct.pack("<f", x))[0]

NKS = 118
KV_OFF = 0x800000
KV_BYTES = 32 * 1088
FLG_OFF = KV_OFF + KV_BYTES
FLG_BYTES = 2048
WS_USED = FLG_OFF + FLG_BYTES
STAMP_OFF = 0x8000000
LOG2E = 1.4426950408889634
SC = "sc0 sc1"

def srd(d, lo, hi, size):
    e(f"s_mov_b32 s{d}, s{lo}"); e(f"s_mov_b32 s{d+1}, s{hi}")
    e(f"s_mov_b32 s{d+2}, {size}"); e(f"s_mov_b32 s{d+3}, 0x00020000")

class Stamps:
    def __init__(self): self.n = 0
    def mark(self, i=None):
        if STAMP:
            k = self.n if i is None else i
            e("s_memtime s[98:99]"); e("s_memrealtime s[100:101]"); e("s_waitcnt lgkmcnt(0)")
            e(f"v_writelane_b32 v255, s98, {2*k}"); e(f"v_writelane_b32 v255, s100, {2*k+1}")
            if i is None: self.n += 1
    def dump(self, swave, label):
        if not STAMP: return
        e(f"s_cmp_lg_u32 s{swave}, {opt('sw', '0')}"); e(f"s_cbranch_scc1 {label}")
        srd(4, 38, 39, "0x10000000")
        e("s_lshl_b32 s3, s2, 7"); e(f"s_add_u32 s3, s3, {STAMP_OFF}")
        e("v_lshlrev_b32 v3, 2, v1"); e("s_mov_b64 exec, 0xffffffff")
        e(f"buffer_store_dword v255, v3, s[4:7], s3 offen")
        if "dbgspan" in X:
            e("v_lshlrev_b32 v3, 1, v1"); e("v_add_u32 v3, 6, v3"); e("s_mov_b32 exec_lo, 0x000aaaaa"); e("s_mov_b32 exec_hi, 0")
            e("buffer_atomic_umax v255, v3, s[24:27], 0 offen")
            e("v_not_b32 v4, v255"); e("s_mov_b64 exec, 2")
            e("buffer_atomic_umax v4, off, s[24:27], 0 offset:4")
st = Stamps()

XST = 16384; WBASE = 32768; SEGB = 18560; WST = 36992; KVP = 146432; LCNT = 144000; WOA = 54 * 2048
V_VW = 10
V_VX, V_XW, V_DV = 19, 20, 21
V_NA = 22; V_ST = 30; V_UT = 40; V_PK = 72; V_XR = 96
V_XA, V_WA = 22, 26
V_SET = [32, 60]
V_ACC = 96
S_WAVE, S_TG, S_UH, S_MB, S_T, S_STR, S_U0, S_CNT = 40, 41, 42, 43, 44, 45, 46, 47
S_DMAW, S_KW, S_KS, S_HFO, S_Q, S_XI, S_MASK, S_ONES = 48, 49, 50, 51, 52, 53, 54, 55
S_RST, S_DST, S_TYPE, S_STR64, S_STR32, S_TMP, S_TMP2 = 56, 57, 58, 59, 60, 61, 62
S_RW, S_KWEND, S_RX = 72, 73, 63
S_MT, S_NT, S_R2, S_RY = 74, 75, 76, 91

def k1_dma():
    G = []
    for p in range(9):
        g = [f"s_add_u32 m0, s{S_DMAW}, {1024*p}"]
        g.append(f"s_add_u32 s{S_KS}, s{S_KW}, s{S_HFO}" if p in (0, 5) else "s_nop 0")
        g.append(f"buffer_load_dwordx4 v{V_VW+p}, s[8:11], s{S_KS} offen lds")
        G.append(g)
    G[-1] += [f"s_add_u32 s{S_KW}, s{S_KW}, s{S_STR64}", f"s_add_u32 s{S_DST}, s{S_DST}, 1",
              f"s_cmp_eq_u32 s{S_KW}, s{S_KWEND}", f"s_cselect_b32 s{S_KW}, 0, s{S_KW}",
              f"s_cmp_eq_u32 s{S_DST}, 3", f"s_cselect_b32 s{S_TMP}, {-2*WST & 0xffffffff}, s{S_TMP2}",
              f"s_cselect_b32 s{S_DST}, 0, s{S_DST}", f"s_add_u32 s{S_DMAW}, s{S_DMAW}, s{S_TMP}"]
    return G

def k1_reads(s_, p, var):
    b = V_SET[s_]
    offs = [0, 32, SEGB, SEGB + 32] if var == "S8" else [0, 32, 64, 96]
    if var == "N9a": offs.append(256)
    if var == "N9b": offs.append(128)
    def w(a): return [f"ds_read_b64_tr_b16 {vr(b+8+4*a,2)}, v{V_WA} offset:{p*4608+offs[a]}",
                      f"ds_read_b64_tr_b16 {vr(b+10+4*a,2)}, v{V_WA} offset:{p*4608+1152+offs[a]}"]
    r = [f"ds_read_b128 {vr(b,4)}, v{V_XA+p}"] + w(0) + [f"ds_read_b128 {vr(b+4,4)}, v{V_XA+p} offset:4096"]
    for a in range(1, len(offs)): r += w(a)
    return r

def mfma(d, a, b, c=None):
    return f"v_mfma_f32_32x32x16_bf16 {vr(d,16)}, {vr(a,4)}, {vr(b,4)}, " + (vr(d, 16) if c is None else c)

def k1_mfma(s_, var):
    b = V_SET[s_]
    m = []
    for a in range(4):
        for f in range(2):
            acc = V_ACC + 16 * (2 * a + f)
            W = b + 8 + 4 * a; X_ = b + 4 * f
            m.append(mfma(acc, X_, W) if var == "S8" else mfma(acc, W, X_))
    if var in ("N9a", "N9b"):
        m.append(mfma(V_ACC + 128, b + 24, b + (0 if var == "N9a" else 4)))
    return m

def k1_unpack(g):
    r = [f"s_set_gpr_idx_on s{S_XI}, gpr_idx(SRC1)", "s_nop 0"]
    for j in range(4 * g, 4 * g + 4):
        r.append(f"v_lshlrev_b32 v{V_UT+2*j}, 16, v{V_XR+j}")
        r.append(f"v_and_b32 v{V_UT+2*j+1}, s{S_MASK}, v{V_XR+j}")
    r.append("s_set_gpr_idx_off")
    return r
def k1_norm(g):
    r = []
    a = V_NA + 2 * g
    for j in range(4 * g, 4 * g + 4):
        r += [f"v_fma_f32 v{V_UT+2*j}, v{V_UT+2*j}, v{a}, v{a+1}", f"v_fma_f32 v{V_UT+2*j+1}, v{V_UT+2*j+1}, v{a}, v{a+1}"]
    for j in range(4 * g, 4 * g + 4):
        r.append(f"v_cvt_pk_bf16_f32 v{V_PK+j}, v{V_UT+2*j}, v{V_UT+2*j+1}")
    r.append(f"ds_write_b128 v{V_XW}, {vr(V_PK+4*g,4)} offset:{4096*g}")
    return r
def k1_xadv():
    return [f"v_xor_b32 v{V_XW}, {XST}, v{V_XW}", f"s_add_u32 s{S_XI}, s{S_XI}, 16", f"s_and_b32 s{S_XI}, s{S_XI}, 127"]

def layout(body):
    n = len(body)
    for i, it in enumerate(body):
        if it[0] == 'm' and it[2]:
            cnt = 0; j = i; w = None
            while True:
                j = (j - 1) % n
                o = body[j]
                if o[0] == 'w0': break
                if o[0] == 'l':
                    if o[2] in it[2]: w = cnt; break
                    cnt += 1
                if j == i: break
            if w is not None: e(f"s_waitcnt lgkmcnt({min(w, 15)})")
        if it[1].endswith(":"): L.append(it[1])
        else: e(it[1])

def k1_cons_loop(var):
    def need(p): return [[(p, 2)], [(p, 3)], [(p, 5)], [], [(p, 7)], [], [(p, 9)], [], [(p, 11)]]
    rs = [2, 2, 2, 2, 2, 2, 0, 0, 0]
    lab(f"K1_{var}")
    for x in k1_reads(0, 0, var): e(x)
    B = [('x', f"K1_{var}_loop:")]
    def stepx(s_, p, extra):
        mf = k1_mfma(s_, var); rd = k1_reads(s_ ^ 1, p + 1, var); ri = 0
        for i, m in enumerate(mf):
            B.append(('m', m, need(p)[i]))
            for _ in range(rs[i]):
                if ri < len(rd): B.append(('l', rd[ri], (p + 1, ri))); ri += 1
            for x in extra.get(i, []): B.append(('x', x))
    stepx(0, 0, {})
    stepx(1, 1, {6: [f"s_add_u32 s{S_RST}, s{S_RST}, 1", f"s_cmp_eq_u32 s{S_RST}, 3",
                     f"s_cselect_b32 s{S_TMP}, {-2*WST & 0xffffffff}, s{S_TMP2}", f"s_cselect_b32 s{S_RST}, 0, s{S_RST}"]})
    stepx(0, 2, {6: [f"v_xor_b32 v{V_XA+p}, {XST}, v{V_XA+p}" for p in range(3)],
                 7: [f"v_xor_b32 v{V_XA+3}, {XST}, v{V_XA+3}", f"v_add_u32 v{V_WA}, s{S_TMP}, v{V_WA}",
                     f"s_add_u32 s{S_CNT}, s{S_CNT}, 1", f"s_cmp_lt_u32 s{S_CNT}, 8"]})
    m = k1_mfma(1, var); nd = need(3)
    B.append(('m', m[0], nd[0])); B.append(('m', m[1], nd[1]))
    B.append(('w0', "s_waitcnt vmcnt(0) lgkmcnt(0)"))
    B.append(('x', "s_barrier"))
    r0 = k1_reads(0, 0, var); ri = 0
    for i in range(2, len(m)):
        B.append(('m', m[i], []))
        for _ in range(3 if i < 4 else 2):
            if ri < len(r0): B.append(('l', r0[ri], (0, ri))); ri += 1
    assert ri == len(r0)
    B.append(('x', f"s_cbranch_scc1 K1_{var}_loop"))
    layout(B)
    e("s_branch K1_EPI")

def kernel():
    A4 = opt('a', '2') == '4'
    L.append(f".globl {NAME}_kernel"); L.append(".p2align 8"); L.append(f".type {NAME}_kernel,@function"); lab(f"{NAME}_kernel")
    if STAMP: e("v_mov_b32 v255, 0")
    st.mark()
    e("s_load_dwordx4 s[28:31], s[0:1], 0")
    e("s_load_dwordx4 s[32:35], s[0:1], 32")
    e("s_load_dwordx4 s[36:39], s[0:1], 64")
    e("s_load_dwordx2 s[80:81], s[0:1], 16")
    e("s_load_dwordx4 s[84:87], s[0:1], 48")
    e("s_cmp_ge_u32 s2, 256"); e("s_cbranch_scc1 K_END")
    e("v_lshrrev_b32 v2, 6, v0"); e("v_and_b32 v1, 63, v0")
    e(f"v_readfirstlane_b32 s{S_WAVE}, v2")
    e("s_and_b32 s3, s2, 7"); e(f"s_lshr_b32 s{S_TMP}, s2, 3")
    e(f"s_lshl_b32 s{S_MT}, s3, 2"); e(f"s_and_b32 s66, s{S_TMP}, 3"); e(f"s_add_u32 s{S_MT}, s{S_MT}, s66"); e(f"s_lshr_b32 s{S_NT}, s{S_TMP}, 2")
    e(f"s_lshl_b32 s{S_R2}, s66, 1"); e(f"s_add_u32 s{S_R2}, s{S_R2}, s{S_NT}"); e(f"s_and_b32 s{S_R2}, s{S_R2}, {7 if opt('r2','1')=='1' else 0}")
    e(f"s_mul_i32 s{S_RY}, s66, {opt('rym','11')}"); e(f"s_mul_i32 s66, s{S_NT}, {opt('ryn','5')}"); e(f"s_add_u32 s{S_RY}, s{S_RY}, s66")
    if A4:
        e(f"s_and_b32 s{S_MB}, s3, 3"); e(f"s_lshl_b32 s{S_MB}, s{S_MB}, 2")
        e(f"s_and_b32 s64, s{S_TMP}, 3"); e(f"s_lshr_b32 s65, s{S_TMP}, 2")
        e("s_lshr_b32 s3, s3, 2"); e("s_lshl_b32 s3, s3, 3")
    else:
        e(f"s_and_b32 s{S_MB}, s3, 1"); e(f"s_lshl_b32 s{S_MB}, s{S_MB}, 3")
        e(f"s_and_b32 s64, s{S_TMP}, 7"); e(f"s_lshr_b32 s65, s{S_TMP}, 3")
        e("s_lshr_b32 s3, s3, 1"); e("s_lshl_b32 s3, s3, 2")
    e(f"s_add_u32 s{S_MB}, s{S_MB}, s64"); e("s_add_u32 s3, s3, s65")
    e(f"s_lshl_b32 s{S_RX}, s65, {0 if A4 else 1}"); e(f"s_and_b32 s{S_RX}, s{S_RX}, {int(opt('rx','7'))}")
    e(f"s_lshl_b32 s{S_RW}, s64, {1 if A4 else 0}"); e(f"s_and_b32 s{S_RW}, s{S_RW}, {int(opt('rw','0'))}")
    e(f"s_and_b32 s{S_Q}, s{S_WAVE}, 3")
    e("v_bfe_u32 v3, v0, 3, 5"); e("v_and_b32 v4, 7, v0")
    e(f"v_lshlrev_b32 v{V_VX}, 10, v3"); e(f"v_lshl_add_u32 v{V_VX}, v4, 4, v{V_VX}")
    e(f"s_lshl_b32 s70, s{S_RX}, 7"); e(f"s_lshl_b32 s71, s{S_MB}, 17")
    e("s_mov_b32 s6, 0x20000"); e("s_mov_b32 s7, 0x00020000")
    e("s_waitcnt lgkmcnt(0)")
    e("s_add_u32 s4, s28, s71"); e("s_addc_u32 s5, s29, 0")
    e(f"s_cmp_lt_u32 s{S_WAVE}, 4"); e("s_cbranch_scc1 K1_skipx")
    e("s_setprio 3")
    def xload(i):
        c, g = divmod(i, 4)
        if g == 0: so = "s70"
        else:
            e(f"s_add_u32 s71, s70, {32768*g}"); so = "s71"
        e(f"buffer_load_dwordx4 {vr(V_XR+4*i,4)}, v{V_VX}, s[4:7], {so} offen")
        if g == 3: e("s_add_u32 s70, s70, 128"); e("s_and_b32 s70, s70, 1023")
    XD = int(opt('xd', '8'))
    for i in range(XD): xload(i)
    lab("K1_skipx")
    e("s_lshl_b32 s3, s3, 2")
    tab = [4, 5, 0, 10, 6, 7, 1, 11, 8, 2, 12, 14, 9, 3, 13, 15]
    tv = sum(t << (4 * i) for i, t in enumerate(tab))
    e(f"s_mov_b32 s64, {tv & 0xffffffff:#x}"); e(f"s_mov_b32 s65, {tv >> 32:#x}")
    e("s_lshr_b64 s[64:65], s[64:65], s3"); e(f"s_and_b32 s{S_T}, s64, 15")
    e(f"s_and_b32 s{S_TG}, s{S_WAVE}, 1"); e(f"s_lshr_b32 s{S_UH}, s{S_Q}, 1")
    e(f"s_lshl_b32 s{S_U0}, s{S_T}, 3")
    e(f"s_mul_i32 s3, s{S_T}, 9"); e("s_sub_u32 s3, s3, 4")
    e(f"s_cmp_ge_u32 s{S_T}, 4"); e(f"s_cselect_b32 s{S_U0}, s3, s{S_U0}"); e(f"s_cselect_b32 s{S_TYPE}, 1, 0")
    e(f"s_lshl_b32 s64, s{S_U0}, 5"); e("s_mov_b32 s65, s64")
    e(f"s_lshl_b32 s3, s{S_T}, 8"); e(f"s_sub_u32 s3, s3, {10*256-1024}"); e(f"s_add_u32 s66, s3, 1024")
    e(f"s_cmp_ge_u32 s{S_T}, 10"); e("s_cselect_b32 s64, s3, s64"); e("s_cselect_b32 s65, s66, s65")
    e(f"s_cselect_b32 s{S_TYPE}, 2, s{S_TYPE}"); e(f"s_movk_i32 s3, 2752"); e(f"s_cselect_b32 s{S_STR}, 3072, s3")
    e(f"s_lshl_b32 s3, s{S_T}, 9"); e(f"s_sub_u32 s3, s3, {14*512}"); e("s_add_u32 s66, s3, 256")
    e(f"s_lshl_b32 s67, s{S_T}, 4"); e(f"s_sub_u32 s67, s67, {14*16-86}")
    e(f"s_cmp_ge_u32 s{S_T}, 14"); e("s_cselect_b32 s64, s3, s64"); e("s_cselect_b32 s65, s66, s65")
    e(f"s_cselect_b32 s{S_TYPE}, 3, s{S_TYPE}"); e(f"s_cselect_b32 s{S_U0}, s67, s{S_U0}")
    e(f"s_lshl_b32 s{S_STR64}, s{S_STR}, 6"); e(f"s_lshl_b32 s{S_STR32}, s{S_STR}, 5")
    e(f"s_mov_b32 s{S_MASK}, 0xffff0000"); e(f"s_mov_b32 s{S_ONES}, 0x3f803f80")
    e(f"s_cmp_eq_u32 s{S_TYPE}, 1"); e("s_cselect_b32 s66, 17, 15")
    for p in range(9):
        e(f"v_add_u32 v6, {64*p}, v1")
        e(f"v_mul_u32_u24 v5, 3641, v6"); e("v_lshrrev_b32 v5, 16, v5")
        e("v_mul_u32_u24 v7, 18, v5"); e(f"v_sub_u32 v7, v6, v7"); e("v_min_u32 v7, s66, v7")
        e(f"v_mul_u32_u24 v5, s{S_STR}, v5"); e(f"v_lshl_add_u32 v{V_VW+p}, v7, 4, v5")
    e("v_lshrrev_b32 v5, 3, v1"); e("v_bfe_u32 v6, v1, 4, 1"); e("v_lshlrev_b32 v6, 2, v6"); e("v_xor_b32 v6, v6, v4")
    e("v_lshlrev_b32 v5, 10, v5"); e(f"v_lshl_add_u32 v{V_DV}, v6, 4, v5")
    srd(20, 38, 39, WS_USED); srd(24, 36, 37, 256)
    e(f"s_cmp_eq_u32 s{S_TG}, 1")
    e("s_cselect_b64 s[8:9], s[34:35], s[32:33]"); e("s_cselect_b32 s64, s65, s64"); e(f"s_cselect_b32 s{S_DMAW}, {SEGB}, 0")
    e(f"s_cmp_ge_u32 s{S_TYPE}, 2")
    e("s_cselect_b64 s[8:9], s[30:31], s[8:9]")
    e(f"s_mov_b32 s3, {512*2752}"); e(f"s_cselect_b32 s3, {512*3072}, s3")
    e("s_add_u32 s8, s8, s64"); e("s_addc_u32 s9, s9, 0"); e("s_sub_u32 s10, s3, s64"); e("s_mov_b32 s11, 0x00020000")
    e(f"s_mul_i32 s{S_HFO}, s{S_UH}, s{S_STR32}")
    e(f"s_mul_i32 s3, s{S_UH}, 9216"); e(f"s_add_u32 s{S_DMAW}, s{S_DMAW}, s3"); e(f"s_add_u32 s{S_DMAW}, s{S_DMAW}, {WBASE}")
    e(f"s_lshl_b32 s{S_KWEND}, s{S_STR64}, 3"); e(f"s_mov_b32 s{S_TMP2}, {WST}")
    e(f"s_mov_b32 s{S_CNT}, 0")
    e(f"s_cmp_lt_u32 s{S_WAVE}, 4"); e("s_cbranch_scc1 K1_CONS")
    e(f"s_add_u32 s3, s{S_RW}, 1"); e("s_and_b32 s3, s3, 7"); e(f"s_mul_i32 s{S_KW}, s3, s{S_STR64}")
    e(f"s_mov_b32 s{S_DST}, 1"); e(f"s_add_u32 s{S_DMAW}, s{S_DMAW}, {WST}")
    e("v_bfe_u32 v5, v3, 1, 3"); e("v_xor_b32 v5, v5, v4")
    e(f"v_lshlrev_b32 v{V_XW}, 7, v3"); e(f"v_lshl_add_u32 v{V_XW}, v5, 4, v{V_XW}")
    for r in range(8): e(f"v_mov_b32 v{V_ST+r}, 0")
    e(f"s_sub_u32 s{S_XI}, s{S_RW}, s{S_RX}"); e(f"s_and_b32 s{S_XI}, s{S_XI}, 7"); e(f"s_lshl_b32 s{S_XI}, s{S_XI}, 4")
    WB = int(opt('wb', '28'))
    for i in range(32):
        if i + XD < 32: xload(i + XD)
        if i + XD == WB: e("s_barrier")
        e(f"s_waitcnt vmcnt({min(XD, 31 - i)})")
        g = i & 3
        for j in range(4):
            r = V_XR + 4 * i + j
            e(f"v_dot2c_f32_bf16 v{V_ST+2*g}, s{S_ONES}, v{r}")
            e(f"v_dot2c_f32_bf16 v{V_ST+2*g+1}, v{r}, v{r}")
    e("s_nop 2")
    for dpp in ("quad_perm:[1,0,3,2]", "quad_perm:[2,3,0,1]", "row_half_mirror"):
        for r in range(8): e(f"v_add_f32_dpp v{V_ST+r}, v{V_ST+r}, v{V_ST+r} {dpp} row_mask:0xf bank_mask:0xf")
    e(f"s_mov_b32 s3, {fbits(1/512)}")
    G4 = range(4)
    for r in range(8): e(f"v_mul_f32 v{V_ST+r}, s3, v{V_ST+r}")
    for g in G4: e(f"v_fma_f32 v{V_ST+1+2*g}, -v{V_ST+2*g}, v{V_ST+2*g}, v{V_ST+1+2*g}")
    for g in G4: e(f"v_max_f32 v{V_ST+1+2*g}, 0, v{V_ST+1+2*g}")
    for g in G4: e(f"v_cvt_pk_bf16_f32 v{V_ST+1+2*g}, v{V_ST+2*g}, v{V_ST+1+2*g}")
    for g in G4: e(f"v_lshlrev_b32 v{V_ST+2*g}, 16, v{V_ST+1+2*g}")
    for g in G4: e(f"v_and_b32 v{V_ST+1+2*g}, s{S_MASK}, v{V_ST+1+2*g}")
    for g in G4: e(f"v_add_f32 v{V_ST+1+2*g}, {fbits(1e-5)}, v{V_ST+1+2*g}")
    for g in G4: e(f"v_cvt_pk_bf16_f32 v{V_ST+1+2*g}, v{V_ST+1+2*g}, v{V_ST+1+2*g}")
    for g in G4: e(f"v_and_b32 v{V_ST+1+2*g}, s{S_MASK}, v{V_ST+1+2*g}")
    for g in G4: e(f"v_sqrt_f32 v{V_ST+1+2*g}, v{V_ST+1+2*g}")
    for g in G4: e(f"v_cvt_pk_bf16_f32 v{V_ST+1+2*g}, v{V_ST+1+2*g}, v{V_ST+1+2*g}")
    for g in G4: e(f"v_and_b32 v{V_ST+1+2*g}, s{S_MASK}, v{V_ST+1+2*g}")
    for g in G4: e(f"v_rcp_f32 v{V_NA+2*g}, v{V_ST+1+2*g}")
    for g in G4: e(f"v_mul_f32_e64 v{V_NA+2*g+1}, -v{V_ST+2*g}, v{V_NA+2*g}")
    for g in G4:
        for x in k1_unpack(g) + k1_norm(g): e(x)
    for x in k1_xadv(): e(x)
    e("s_setprio 0")
    e("s_waitcnt lgkmcnt(0)")
    e("s_barrier")
    D = k1_dma()
    for g in D[5:]:
        for x in g: e(x)
    lab("K1_PROD_loop")
    for g in G4:
        for x in D[2*g] + k1_unpack(g) + D[2*g+1] + k1_norm(g): e(x)
    for x in D[8] + k1_xadv(): e(x)
    e(f"s_add_u32 s{S_CNT}, s{S_CNT}, 1")
    e(f"s_cmp_lt_u32 s{S_CNT}, 6")
    e("s_waitcnt vmcnt(9) lgkmcnt(0)")
    e("s_barrier")
    e("s_cbranch_scc1 K1_PROD_loop")
    V_KF, V_PO, V_O, V_PQ, V_WO, V_AS = 28, 36, 44, 76, 124, 188
    e(f"s_lshl_b32 s3, s{S_NT}, 7")
    e("s_add_u32 s12, s80, s3"); e("s_addc_u32 s13, s81, 0"); e(f"s_sub_u32 s14, {512*1024}, s3"); e("s_mov_b32 s15, 0x00020000")
    e("s_add_u32 s16, s84, s3"); e("s_addc_u32 s17, s85, 0"); e(f"s_sub_u32 s18, {1376*1024}, s3"); e("s_mov_b32 s19, 0x00020000")
    e(f"s_lshl_b32 s64, s{S_Q}, 10")
    e(f"s_lshl_b32 s65, s{S_Q}, 17")
    e(f"s_lshl_b32 s67, s{S_R2}, 14")
    e(f"s_add_u32 s68, s{S_RY}, s{S_UH}"); e("s_lshl_b32 s68, s68, 14"); e(f"s_lshl_b32 s3, s{S_TG}, 13"); e("s_add_u32 s68, s68, s3")
    def wo_batch():
        G = []
        for p in range(8):
            g = [f"s_add_u32 m0, s64, {WOA + 4096*p}"]
            g.append("s_add_u32 s66, s65, s67" if p % 2 == 0 else "s_add_u32 s66, s66, 8192")
            g.append(f"buffer_load_dwordx4 v{V_DV}, s[12:15], s66 offen lds")
            if p % 2: g += ["s_add_u32 s67, s67, 16384", "s_and_b32 s67, s67, 0x1ffff"]
            G.append(g)
        return G
    def rounds(sig, pi, n):
        for i in range(n):
            e(f"s_add_u32 s66, s68, {(pi + 2*i) * 16384}")
            e(f"s_sub_u32 s69, s66, {86*16384}")
            e(f"s_cselect_b32 s66, s66, s69")
            e(f"s_add_u32 m0, s64, {(sig + 2*i) * 2048}")
            e("s_nop 0")
            e(f"buffer_load_dwordx4 v{V_DV}, s[16:19], s66 offen lds")
    def tr_lane(dst):
        e("v_lshrrev_b32 v3, 5, v1"); e("v_bfe_u32 v4, v1, 2, 2"); e("v_lshl_add_u32 v3, v3, 2, v4"); e("v_lshlrev_b32 v3, 7, v3")
        e("v_bfe_u32 v4, v1, 3, 1"); e("v_lshl_add_u32 v3, v4, 6, v3")
        e("v_bfe_u32 v4, v1, 4, 1"); e("v_lshl_add_u32 v3, v4, 5, v3")
        e("v_and_b32 v4, 3, v1"); e(f"v_lshl_add_u32 v{dst}, v4, 3, v3")
    def wo_read(h0):
        for i in range(4):
            for nf in range(2):
                for rd in range(2):
                    e(f"ds_read_b64_tr_b16 {vr(V_WO+8*(h0+i)+4*nf+2*rd,2)}, v{12+nf} offset:{i*8192 + rd*4096}")
        e("s_waitcnt lgkmcnt(0)")
    P = wo_batch()
    for g in G4:
        for x in P[2*g] + k1_unpack(g) + P[2*g+1] + k1_norm(g): e(x)
    tr_lane(12)
    e(f"s_add_u32 s3, s64, {WOA}"); e("v_add_u32 v12, s3, v12"); e("v_xor_b32 v13, 64, v12")
    e("s_waitcnt vmcnt(8) lgkmcnt(0)")
    e("s_barrier")
    rounds(16, 24, 3)
    e("s_waitcnt vmcnt(3)")
    wo_read(0)
    for g in wo_batch():
        for x in g: e(x)
    e("s_barrier")
    rounds(22, 30, 3); rounds(28, 0, 4)
    e("s_waitcnt vmcnt(7)")
    wo_read(4)
    rounds(62, 44, 4); rounds(0, 8, 8); rounds(36, 52, 13)
    e(f"v_lshlrev_b32 v10, 4, v1")
    e(f"s_mul_i32 s3, s{S_Q}, 8704"); e(f"s_add_u32 s3, s3, {KV_OFF}")
    e("s_add_u32 s4, s38, s3"); e("s_addc_u32 s5, s39, 0"); e("s_movk_i32 s6, 8704"); e("s_mov_b32 s7, 0x00020000")
    e(f"s_mul_i32 s3, s{S_MT}, {2*NKS}"); e(f"s_lshl_b32 s65, s{S_Q}, 3"); e("s_add_u32 s3, s3, s65"); e("s_add_u32 s3, s3, 86"); e("s_lshl_b32 s70, s3, 10")
    e(f"s_mul_i32 s3, s{S_Q}, 4352"); e(f"s_add_u32 s3, s3, {KVP}")
    e("v_lshlrev_b32 v11, 3, v1"); e("v_add_u32 v11, s3, v11")
    e("v_and_b32 v3, 31, v1"); e("v_max_u32 v3, 15, v3"); e("v_lshlrev_b32 v3, 5, v3"); e("v_lshrrev_b32 v4, 5, v1")
    e("v_lshl_add_u32 v3, v4, 4, v3"); e(f"s_sub_u32 s3, s3, {15*32}"); e("v_add_u32 v14, s3, v3")
    e(f"s_lshr_b32 s71, s{S_MT}, 1"); e("s_lshl_b32 s71, s71, 7"); e(f"s_add_u32 s71, s71, {FLG_OFF + 40}")
    e(f"s_mov_b32 s89, {fbits(1e-6)}")
    e("s_waitcnt vmcnt(0)")
    e("s_barrier")
    e("s_barrier")
    rounds(28, 36, 4); rounds(62, 78, 4)
    e("s_barrier")
    e("s_setprio 2")
    e(f"s_lshl_b32 s67, s{S_R2}, 10")
    def pq(i):
        e("s_add_u32 s66, s70, s67")
        e(f"buffer_load_dwordx4 {vr(V_PQ+8*(i%6),4)}, v10, s[20:23], s66 offen {SC}")
        e(f"s_add_u32 s66, s66, {NKS*1024}")
        e(f"buffer_load_dwordx4 {vr(V_PQ+8*(i%6)+4,4)}, v10, s[20:23], s66 offen {SC}")
        e("s_add_u32 s67, s67, 1024"); e("s_and_b32 s67, s67, 0x1fff")
    e("s_mov_b32 s90, 0")
    lab("K2_kvpoll")
    e(f"buffer_load_dword v2, off, s[20:23], s71 {SC}")
    e("s_add_u32 s90, s90, 1")
    e("s_waitcnt vmcnt(0)")
    e("v_readfirstlane_b32 s66, v2")
    e("s_cmp_lg_u32 s66, 0"); e("s_cbranch_scc1 K2_kvgo")
    e("s_sleep 8")
    e("s_cmp_lt_u32 s90, 0x100000"); e("s_cbranch_scc1 K2_kvpoll")
    lab("K2_kvgo")
    st.mark(7)
    e("s_movk_i32 s65, 4096"); e("s_movk_i32 s69, 8192")
    for i in range(9):
        e(f"buffer_load_dwordx4 {vr(V_AS+4*i,4)}, v10, s[4:7], {['0','s65','s69'][i//4]} offen offset:{1024*(i%4)} {SC}")
    for i in range(6): pq(i)
    for i in range(9):
        e(f"s_waitcnt vmcnt({12 + 8 - i})")
        e(f"v_cvt_pk_bf16_f32 v{V_AS+4*i}, v{V_AS+4*i}, v{V_AS+4*i+1}")
        e(f"v_cvt_pk_bf16_f32 v{V_AS+4*i+1}, v{V_AS+4*i+2}, v{V_AS+4*i+3}")
        if i == 8: e("s_mov_b64 exec, 0xffffffff")
        e(f"ds_write_b64 v11, {vr(V_AS+4*i,2)} offset:{512*i}")
    e("s_mov_b64 exec, -1")
    e(f"s_mul_i32 s88, s{S_R2}, 544")
    def kf(i):
        e("v_add_u32 v3, s88, v14")
        e("s_add_u32 s88, s88, 544"); e(f"s_cmp_eq_u32 s88, {8*544}"); e("s_cselect_b32 s88, 0, s88")
        e(f"ds_read_b128 {vr(V_KF+4*(i%2),4)}, v3")
    def omf(i, t): e(mfma(V_O + 16 * t, V_KF + 4 * (i % 2), V_PQ + 8 * (i % 6) + 4 * t, "0"))
    kf(0); kf(1)
    e("s_waitcnt vmcnt(10) lgkmcnt(1)")
    omf(0, 0); omf(0, 1)
    e("s_nop 10")
    for i in range(8):
        for t in range(2):
            o = V_O + 16 * t
            e(f"v_add_f32 v{o}, s89, v{o}"); e(f"v_rcp_f32 v{o}, v{o}")
            if t == 0 and i < 2: pq(i + 6)
            else: e("s_nop 0")
            for j in range(8): e(f"v_mul_f32 v{o+8+j}, v{o}, v{o+8+j}")
            for j in range(4): e(f"v_cvt_pk_bf16_f32 v{V_PO+4*t+j}, v{o+8+2*j}, v{o+9+2*j}")
            if i < 7:
                if t == 0:
                    n = [10, 10, 8, 6, 4, 2, 0][i]
                    e(f"s_waitcnt vmcnt({n}) lgkmcnt(0)")
                else: e("s_nop 0")
                omf(i + 1, t)
                if t == 1 and i < 6: kf(i + 2)
            else: e("s_nop 1")
            for nf in range(2):
                e(mfma(V_AS + 32 * t + 16 * nf, V_WO + 8 * i + 4 * nf, V_PO + 4 * t, "0" if i == 0 else None))
    e(f"s_mul_i32 s3, s{S_UH}, 73728"); e(f"s_lshl_b32 s65, s{S_TG}, 14"); e("s_add_u32 s3, s3, s65"); e("v_add_u32 v3, s3, v10")
    st.mark(8)
    e("s_barrier")
    e("s_nop 4")
    for r in range(16): e(f"ds_write_b128 v3, {vr(V_AS+4*r,4)} offset:{1024*r}")
    e("s_waitcnt lgkmcnt(0)")
    e("s_barrier")
    if STAMP:
        st.mark(9); st.dump(S_WAVE, "K_END")
    e("s_endpgm")
    lab("K1_CONS")
    e(f"s_or_b32 s3, s2, s{S_WAVE}"); e("s_cmp_eq_u32 s3, 0"); e("s_cbranch_scc0 K1_nozero")
    for j in range(4): e(f"v_mov_b32 v{4+j}, 0")
    e("v_lshlrev_b32 v3, 4, v1")
    e(f"s_mov_b32 s3, {KV_OFF}")
    lab("K1_zloop")
    for j in range(4): e(f"buffer_store_dwordx4 v[4:7], v3, s[20:23], s3 offen offset:{1024*j} {SC}")
    e("s_add_u32 s3, s3, 4096"); e(f"s_cmp_lt_u32 s3, {WS_USED}"); e("s_cbranch_scc1 K1_zloop")
    e("v_mov_b32 v2, 1")
    e("s_waitcnt vmcnt(0)")
    e("s_mov_b64 exec, 1")
    e(f"buffer_store_dword v2, off, s[24:27], 0 {SC}")
    e("s_mov_b64 exec, -1")
    lab("K1_nozero")
    e(f"s_mul_i32 s{S_KW}, s{S_RW}, s{S_STR64}"); e(f"s_mov_b32 s{S_DST}, 0")
    e("v_and_b32 v3, 31, v1"); e("v_lshrrev_b32 v4, 5, v1")
    e("v_bfe_u32 v5, v3, 1, 3"); e("v_xor_b32 v5, v5, v4")
    e(f"s_lshl_b32 s3, s{S_TG}, 13")
    e("v_lshlrev_b32 v3, 7, v3"); e("v_add_u32 v3, s3, v3")
    e(f"v_lshl_add_u32 v{V_XA}, v5, 4, v3")
    for p in range(1, 4): e(f"v_xor_b32 v{V_XA+p}, {32*p}, v{V_XA}")
    e(f"s_cmp_eq_u32 s{S_TYPE}, 2"); e(f"s_movk_i32 s3, {SEGB}"); e("s_cselect_b32 s3, 128, s3"); e("s_cselect_b32 s66, 6, 7")
    e("v_bfe_u32 v3, v1, 4, 1"); e(f"v_mul_u32_u24 v3, s3, v3")
    e("v_bfe_u32 v5, v1, 2, 2"); e("v_lshl_add_u32 v5, v4, 3, v5"); e("v_mul_u32_u24 v5, 288, v5")
    e("v_and_b32 v6, 3, v1"); e("v_lshlrev_b32 v6, 3, v6")
    e(f"s_lshl_b32 s3, s{S_UH}, s66"); e(f"s_add_u32 s3, s3, {WBASE}")
    e(f"v_add3_u32 v{V_WA}, v3, v5, v6"); e(f"v_add_u32 v{V_WA}, s3, v{V_WA}")
    for r in range(72): e(f"v_mov_b64 {vr(V_ACC+2*r,2)}, 0")
    e(f"s_mov_b32 s{S_RST}, 0")
    e(f"v_mov_b32 v27, {LCNT}"); e(f"ds_write_b64 v27, {vr(V_ACC,2)}")
    e("s_barrier")
    st.mark()
    for g in k1_dma() + k1_dma()[:5]:
        for x in g: e(x)
    e("s_waitcnt vmcnt(5)")
    e("s_barrier")
    st.mark()
    e("s_setprio 1")
    e(f"s_cmp_eq_u32 s{S_TYPE}, 2"); e("s_cbranch_scc1 K1_S8")
    e(f"s_cmp_eq_u32 s{S_TYPE}, 1"); e("s_cbranch_scc0 K1_N8")
    e(f"s_cmp_eq_u32 s{S_UH}, 1"); e("s_cbranch_scc1 K1_N9b")
    for var in ("N9a", "N9b", "N8", "S8"): k1_cons_loop(var)
    lab("K1_EPI")
    st.mark()
    e(f"buffer_load_dword v2, off, s[24:27], 0 {SC}")
    e("s_waitcnt lgkmcnt(0)")
    e("v_lshlrev_b32 v10, 4, v1")
    e(f"s_lshl_b32 s3, s{S_MB}, 2"); e(f"s_lshl_b32 s64, s{S_TG}, 1"); e("s_add_u32 s3, s3, s64")
    e(f"s_mul_i32 s64, s3, {NKS}"); e(f"s_add_u32 s64, s64, s{S_U0}")
    e(f"s_add_u32 s66, s3, s{S_UH}"); e(f"s_mul_i32 s66, s66, {NKS}"); e(f"s_add_u32 s66, s66, s{S_U0}"); e("s_add_u32 s66, s66, 8"); e("s_lshl_b32 s66, s66, 10")
    e(f"s_lshl_b32 s3, s{S_UH}, 2"); e("s_add_u32 s64, s64, s3"); e("s_lshl_b32 s64, s64, 10")
    e(f"s_add_u32 s65, s64, {NKS*1024}")
    e(f"s_cmp_eq_u32 s{S_TYPE}, 2"); e("s_cbranch_scc1 K1_EPI_KV")
    e(f"s_cmp_eq_u32 s{S_TYPE}, 3"); e("s_cbranch_scc1 K1_EPI_Q")
    c0 = -2 * 0.7978845608028654 * LOG2E; c1 = c0 * 0.044715
    e(f"v_mov_b32 v12, {fbits(c1)}"); e(f"v_mov_b32 v13, {fbits(c0)}")
    def f_epi(items, tb):
        pr = []
        for k, (acc, soff, imm) in enumerate(items):
            pr += [(acc + 2 * j, acc + 8 + 2 * j, tb + 8 * k + 2 * j) for j in range(4)]
        n = 2 * len(pr); o = tb + 16
        for g, u, tt in pr: e(f"v_pk_mul_f32 {vr(tt,2)}, {vr(g,2)}, {vr(g,2)}")
        for g, u, tt in pr: e(f"v_pk_fma_f32 {vr(tt,2)}, {vr(tt,2)}, v[12:13], v[12:13] op_sel:[0,0,1] op_sel_hi:[1,0,1]")
        for g, u, tt in pr: e(f"v_pk_mul_f32 {vr(tt,2)}, {vr(tt,2)}, {vr(g,2)}")
        for j in range(n): e(f"v_exp_f32 v{tb+j}, v{tb+j}")
        for g, u, tt in pr: e(f"v_pk_mul_f32 {vr(g,2)}, {vr(g,2)}, {vr(u,2)}")
        for g, u, tt in pr: e(f"v_pk_add_f32 {vr(tt,2)}, {vr(tt,2)}, 1.0 op_sel_hi:[1,0]")
        for j in range(n): e(f"v_rcp_f32 v{tb+j}, v{tb+j}")
        for g, u, tt in pr: e(f"v_pk_mul_f32 {vr(g,2)}, {vr(g,2)}, {vr(tt,2)}")
        for j, (g, u, tt) in enumerate(pr): e(f"v_cvt_pk_bf16_f32 v{o+j}, v{g}, v{g+1}")
        for k, (acc, soff, imm) in enumerate(items):
            e(f"buffer_store_dwordx4 {vr(o+4*k,4)}, v10, s[20:23], s{soff} offen offset:{imm} {SC}")
    for a in range(4):
        f_epi([(V_ACC + 32 * a, 64, 1024 * a), (V_ACC + 32 * a + 16, 65, 1024 * a)], 32 + 24 * (a % 2))
    e(f"s_cmp_eq_u32 s{S_TYPE}, 1"); e("s_cbranch_scc0 K1_JOIN")
    f_epi([(V_ACC + 128, 66, 0)], 32)
    e("s_branch K1_JOIN")
    lab("K1_EPI_Q")
    e(f"s_mov_b32 s68, {fbits(LOG2E)}"); e(f"s_mov_b32 s69, {fbits(1e-6)}")
    e("s_add_u32 s66, s64, 8192"); e("s_add_u32 s67, s65, 8192")
    def phi(acc, t):
        for j in range(8): e(f"v_pk_mul_f32 {vr(t+2*j,2)}, {vr(acc+2*j,2)}, s[68:69] op_sel_hi:[1,0]")
        for j in range(16): e(f"v_exp_f32_e64 v{t+j}, v{t+j} clamp")
        for j in range(16): e(f"v_max_f32 v{acc+j}, s69, v{acc+j}")
        for j in range(8): e(f"v_pk_add_f32 {vr(acc+2*j,2)}, {vr(acc+2*j,2)}, {vr(t+2*j,2)}")
    for i in range(8):
        a, f = i >> 1, i & 1
        acc = V_ACC + 16 * i; o = 48 + 8 * (i % 2)
        phi(acc, 32)
        for j in range(8): e(f"v_cvt_pk_bf16_f32 v{o+j}, v{acc+2*j}, v{acc+2*j+1}")
        e(f"buffer_store_dwordx4 {vr(o,4)}, v10, s[20:23], s{64+f} offen offset:{1024*a} {SC}")
        e(f"buffer_store_dwordx4 {vr(o+4,4)}, v10, s[20:23], s{66+f} offen offset:{1024*a} {SC}")
    e("s_branch K1_JOIN")
    lab("K1_EPI_KV")
    e(f"s_sub_u32 s{S_TMP}, s{S_T}, 10")
    e(f"s_mov_b32 s68, {fbits(LOG2E)}"); e(f"s_mov_b32 s69, {fbits(1e-6)}")
    for r in range(4): e(f"v_mov_b32 v{80+r}, s{S_ONES}")
    e("v_and_b32 v3, 15, v1"); e("v_lshrrev_b32 v4, 5, v1")
    e("v_lshlrev_b32 v3, 6, v3"); e("v_lshlrev_b32 v4, 5, v4")
    e(f"s_mul_i32 s3, s{S_TG}, 8704"); e(f"s_mul_i32 s64, s{S_UH}, 2176"); e("s_add_u32 s3, s3, s64"); e(f"s_add_u32 s3, s3, {KVP}")
    e("v_add_u32 v4, s3, v4"); e("v_add_u32 v3, v3, v4")
    e("s_mov_b32 s70, 0x0000ffff"); e("s_mov_b32 s71, 0x0000ffff")
    e("s_mov_b32 s66, 0xffff0000"); e("s_mov_b32 s67, 0xffff0000")
    e("s_mov_b32 s64, 1"); e("s_mov_b32 s65, 1")
    DKs = [(224, V_ACC + 64), (V_ACC, V_ACC + 16)]
    def kvwr(a):
        DK, DZ = DKs[a]; o = 1088 * a
        e("s_mov_b64 exec, s[70:71]")
        e(f"ds_write_b128 v3, {vr(DK,4)} offset:{o+64}"); e(f"ds_write_b128 v3, {vr(DK+4,4)} offset:{o+80}")
        e("s_mov_b64 exec, s[66:67]")
        e(f"ds_write_b128 v3, {vr(DK+8,4)} offset:{o+4352+64}"); e(f"ds_write_b128 v3, {vr(DK+12,4)} offset:{o+4352+80}")
        e("s_mov_b64 exec, s[64:65]")
        e(f"ds_write_b128 v4, {vr(DZ,4)} offset:{o}"); e(f"ds_write_b128 v4, {vr(DZ+4,4)} offset:{o+16}")
        e(f"ds_write_b128 v4, {vr(DZ+8,4)} offset:{o+4352}"); e(f"ds_write_b128 v4, {vr(DZ+12,4)} offset:{o+4352+16}")
        e("s_mov_b64 exec, -1")
    for a in range(2):
        DK, DZ = DKs[a]
        for f in range(2):
            ak = V_ACC + 16 * (2 * a + f); av = V_ACC + 16 * (2 * (a + 2) + f); A = 48 + 16 * f; B = 56 + 16 * f
            for j in range(8): e(f"v_cvt_pk_bf16_f32 v{B+j}, v{av+2*j}, v{av+2*j+1}")
            phi(ak, 32)
            for j in range(8): e(f"v_cvt_pk_bf16_f32 v{A+j}, v{ak+2*j}, v{ak+2*j+1}")
            if a == 1 and f == 0: kvwr(0)
            e("s_nop 1")
            e(mfma(DK, A, B, "0" if f == 0 else None)); e(mfma(DZ, A, 80, "0" if f == 0 else None))
            e(mfma(DK, A + 4, B + 4)); e(mfma(DZ, A + 4, 80))
    e("v_lshlrev_b32 v5, 2, v0"); e(f"v_add_u32 v6, {KVP}, v5")
    e(f"s_mul_i32 s3, s{S_TMP}, 8704"); e(f"s_add_u32 s3, s3, {KV_OFF}")
    e("s_add_u32 s4, s38, s3"); e("s_addc_u32 s5, s39, 0"); e("s_movk_i32 s6, 8704"); e("s_mov_b32 s7, 0x00020000")
    e("s_nop 5")
    kvwr(1)
    def zcheck(tag):
        e("s_mov_b32 s90, 0")
        lab(f"K1_zpoll{tag}")
        e("s_waitcnt vmcnt(0)")
        e("v_readfirstlane_b32 s66, v2")
        e("s_cmp_lg_u32 s66, 0"); e(f"s_cbranch_scc1 K1_zdone{tag}")
        e("s_sleep 4")
        e(f"buffer_load_dword v2, off, s[24:27], 0 {SC}")
        e("s_add_u32 s90, s90, 1"); e("s_cmp_lt_u32 s90, 0x100000"); e(f"s_cbranch_scc1 K1_zpoll{tag}")
        lab(f"K1_zdone{tag}")
    e("v_mov_b32 v7, 1")
    e("s_waitcnt lgkmcnt(0)")
    e("s_mov_b64 exec, 1"); e("ds_add_u32 v27, v7 offset:4"); e("s_mov_b64 exec, -1")
    e("s_movk_i32 s64, 4096"); e("s_movk_i32 s65, 8192")
    zcheck("a")
    lab("K1_kvspin")
    e("ds_read_b32 v7, v27 offset:4"); e("s_waitcnt lgkmcnt(0)")
    e("v_readfirstlane_b32 s66, v7"); e("s_cmp_lt_u32 s66, 4"); e("s_cbranch_scc1 K1_kvspin")
    for i in range(9):
        e(f"ds_read_b32 v{32+2*i}, v6 offset:{1024*i}"); e(f"ds_read_b32 v{33+2*i}, v6 offset:{1024*i+8704}")
    e("s_waitcnt lgkmcnt(0)")
    for i in range(9): e(f"v_add_f32 v{32+2*i}, v{32+2*i}, v{33+2*i}")
    for i in range(9):
        so = ["0", "s64", "s65"][i // 4]
        e(f"buffer_atomic_add_f32 v{32+2*i}, v5, s[4:7], {so} offen offset:{1024*(i%4)}")
    lab("K1_JOIN")
    st.mark()
    V_STG, V_WF, V_TOK, V_AY, V_XRES, V_OUT = 32, 96, 120, 200, 232, 11
    NT = 20
    tr_lane(12)
    e(f"s_mul_i32 s3, s{S_UH}, 73728"); e("v_add_u32 v12, s3, v12"); e("v_xor_b32 v13, 64, v12")
    e(f"s_lshl_b32 s3, s{S_UH}, 12"); e(f"s_sub_u32 s3, {28*2048}, s3"); e("v_add_u32 v14, s3, v12"); e("v_add_u32 v15, s3, v13")
    e(f"s_lshl_b32 s64, s{S_MB}, 7"); e(f"s_lshl_b32 s3, s{S_T}, 2"); e("s_add_u32 s64, s64, s3"); e(f"s_add_u32 s64, s64, {FLG_OFF}")
    e("v_mov_b32 v7, 1")
    zcheck("b")
    e("s_mov_b64 exec, 1")
    e("ds_add_rtn_u32 v6, v27, v7")
    e("s_waitcnt lgkmcnt(0)")
    e("v_readfirstlane_b32 s66, v6")
    e("s_cmp_eq_u32 s66, 3"); e("s_cbranch_scc0 K2_noflag")
    e(f"s_cmp_eq_u32 s{S_TYPE}, 2"); e("s_cbranch_scc1 K2_kvflag")
    e(f"buffer_store_dword v7, off, s[20:23], s64 {SC}")
    e("s_branch K2_noflag")
    lab("K2_kvflag")
    e("v_mov_b32 v6, 1")
    e(f"buffer_atomic_add v6, off, s[24:27], 0 offset:128 {SC}")
    e("s_waitcnt vmcnt(0)")
    e("v_readfirstlane_b32 s66, v6")
    e("s_and_b32 s66, s66, 63")
    e("s_cmp_eq_u32 s66, 63"); e("s_cbranch_scc0 K2_noflag")
    e("s_mov_b64 exec, 0xffff")
    e("v_lshlrev_b32 v6, 7, v1"); e(f"s_mov_b32 s66, {FLG_OFF + 40}")
    e(f"buffer_store_dword v7, v6, s[20:23], s66 offen {SC}")
    lab("K2_noflag")
    e("s_mov_b64 exec, -1")
    st.mark()
    e("s_setprio 0")
    e("v_and_b32 v3, 31, v1"); e("v_lshrrev_b32 v4, 5, v1"); e(f"v_lshlrev_b32 v{V_OUT}, 10, v3"); e(f"v_lshl_add_u32 v{V_OUT}, v4, 4, v{V_OUT}")
    e(f"s_lshl_b32 s77, s{S_MT}, 16"); e(f"s_lshl_b32 s3, s{S_NT}, 7"); e("s_add_u32 s77, s77, s3")
    e(f"s_lshl_b32 s3, s{S_TG}, 15"); e("s_add_u32 s77, s77, s3"); e(f"s_lshl_b32 s3, s{S_UH}, 6"); e("s_add_u32 s77, s77, s3")
    srd(16, 28, 29, 2097152)
    e(f"buffer_load_dwordx4 {vr(V_XRES,4)}, v{V_OUT}, s[16:19], s77 offen")
    e(f"buffer_load_dwordx4 {vr(V_XRES+4,4)}, v{V_OUT}, s[16:19], s77 offen offset:32")
    e(f"s_lshl_b32 s3, s{S_MT}, 1"); e(f"s_add_u32 s3, s3, s{S_TG}"); e(f"s_mul_i32 s3, s3, {NKS*1024}")
    e("s_add_u32 s8, s38, s3"); e("s_addc_u32 s9, s39, 0"); e(f"s_mov_b32 s10, {86*1024}"); e("s_mov_b32 s11, 0x00020000")
    e(f"s_mul_i32 s79, s{S_UH}, 44"); e(f"s_add_u32 s79, s79, s{S_RY}"); e("s_sub_u32 s3, s79, 86"); e("s_cselect_b32 s79, s79, s3"); e("s_lshl_b32 s79, s79, 10")
    e("s_barrier")
    for j in range(8):
        for nf in range(2):
            for rd in range(2):
                e(f"ds_read_b64_tr_b16 {vr(V_STG+8*j+4*nf+2*rd,2)}, v{14+nf} offset:{j*2048 + rd*1024}")
    e("s_waitcnt lgkmcnt(0)")
    e("s_barrier")
    e(f"s_cmp_eq_u32 s{S_WAVE}, 0"); e("s_cbranch_scc0 K2_go")
    e("v_and_b32 v4, 15, v1"); e("v_lshlrev_b32 v4, 2, v4")
    e(f"s_lshr_b32 s64, s{S_MT}, 1"); e("s_lshl_b32 s64, s64, 7"); e(f"s_add_u32 s64, s64, {FLG_OFF}")
    e("s_mov_b32 s90, 0")
    lab("K2_poll")
    e(f"buffer_load_dword v5, v4, s[20:23], s64 offen {SC}")
    e("s_add_u32 s90, s90, 1")
    e("s_waitcnt vmcnt(0)")
    e("v_cmp_ne_u32 vcc, 0, v5")
    e("s_or_b32 s66, vcc_lo, 0x3c003c00")
    e("s_cmp_eq_u32 s66, -1"); e("s_cbranch_scc1 K2_go")
    e(f"s_sleep {opt('slp','4')}")
    e("s_cmp_lt_u32 s90, 0x100000"); e("s_cbranch_scc1 K2_poll")
    lab("K2_go")
    e("s_barrier")
    st.mark()
    def tok(j):
        e(f"buffer_load_dwordx4 {vr(V_TOK+4*(j%NT),4)}, v10, s[8:11], s79 offen {SC}")
        e("s_add_u32 s79, s79, 1024"); e(f"s_cmp_eq_u32 s79, {86*1024}"); e("s_cselect_b32 s79, 0, s79")
    def wr(j):
        b = V_WF + 8 * (j % 3); off = (j - 8) * 2048 - (32768 if j >= 32 else 0)
        for nf in range(2):
            for rd in range(2):
                e(f"ds_read_b64_tr_b16 {vr(b+4*nf+2*rd,2)}, v{12+nf} offset:{off + rd*1024}")
    TD = int(opt('td', '8'))
    for j in range(TD): tok(j)
    for j in range(44):
        if j == 42:
            e(f"s_cmp_eq_u32 s{S_UH}, 1"); e("s_cbranch_scc1 K2_FIN")
        if j == 28: e("s_barrier")
        if j + TD < 44: tok(j + TD)
        if j + 2 == 32: e("v_add_u32 v12, 0x8000, v12"); e("v_add_u32 v13, 0x8000, v13")
        if 8 <= j + 2 < 44: wr(j + 2)
        lg = "" if j < 8 else f" lgkmcnt({4 * min(2, 43 - j)})"
        e(f"s_waitcnt vmcnt({min(TD, 43 - j)})" + lg)
        W = V_STG + 8 * j if j < 8 else V_WF + 8 * (j % 3)
        for nf in range(2): e(mfma(V_AY + 16 * nf, W + 4 * nf, V_TOK + 4 * (j % NT), "0" if j == 0 else None))
    lab("K2_FIN")
    st.mark()
    e(f"s_mul_i32 s3, s{S_UH}, 73728"); e(f"s_lshl_b32 s65, s{S_TG}, 12"); e("s_add_u32 s64, s3, s65"); e(f"s_add_u32 s64, s64, 32768")
    e("v_add_u32 v3, s64, v10")
    e(f"s_sub_u32 s64, {73728 + 32768}, s3"); e("s_add_u32 s64, s64, s65"); e("v_add_u32 v4, s64, v10")
    e(f"s_lshl_b32 s64, s{S_TG}, 13"); e(f"s_lshl_b32 s65, s{S_UH}, 12"); e("s_add_u32 s64, s64, s65"); e("v_add_u32 v5, s64, v10"); e("v_add_u32 v6, 73728, v5")
    srd(16, 86, 87, 2097152)
    e("s_waitcnt vmcnt(0) lgkmcnt(0)")
    for a_, b_ in ((0, 2), (1, 3), (4, 6), (5, 7)): e(f"v_permlane32_swap_b32 v{V_XRES+a_}, v{V_XRES+b_}")
    e(f"s_cmp_eq_u32 s{S_UH}, 0"); e("s_cbranch_scc1 K2_x0")
    for r in range(4): e(f"ds_write_b128 v3, {vr(V_AY+4*r,4)} offset:{1024*r}")
    KP = 160
    for r in range(8): e(f"v_mov_b64 {vr(KP+2*r,2)}, {vr(V_AY+16+2*r,2)}")
    e("s_branch K2_x1")
    lab("K2_x0")
    for r in range(4): e(f"ds_write_b128 v3, {vr(V_AY+16+4*r,4)} offset:{1024*r}")
    for r in range(8): e(f"v_mov_b64 {vr(KP+2*r,2)}, {vr(V_AY+2*r,2)}")
    lab("K2_x1")
    V_AY = KP
    XU = 144
    for j in range(8):
        e(f"v_lshlrev_b32 v{XU+2*j}, 16, v{V_XRES+j}"); e(f"v_and_b32 v{XU+1+2*j}, s{S_MASK}, v{V_XRES+j}")
    e(f"s_mov_b32 s64, {fbits(-LOG2E)}")
    e("s_waitcnt lgkmcnt(0)")
    e("s_barrier")
    for r in range(4): e(f"ds_read_b128 {vr(32+4*r,4)}, v4 offset:{1024*r}")
    for k in range(2):
        for r in range(4): e(f"ds_read_b128 {vr(48+16*k+4*r,4)}, v5 offset:{16384*k + 1024*r}")
    e("s_waitcnt lgkmcnt(8)")
    for j in range(8): e(f"v_pk_add_f32 {vr(V_AY+2*j,2)}, {vr(V_AY+2*j,2)}, {vr(32+2*j,2)}")
    for k in range(2):
        for r in range(4): e(f"ds_read_b128 {vr(80+16*k+4*r,4)}, v6 offset:{16384*k + 1024*r}")
    for j in range(8): e(f"v_pk_mul_f32 {vr(32+2*j,2)}, {vr(V_AY+2*j,2)}, s[64:65] op_sel_hi:[1,0]")
    for j in range(16): e(f"v_exp_f32 v{32+j}, v{32+j}")
    e("s_waitcnt lgkmcnt(0)")
    for j in range(8): e(f"v_pk_add_f32 {vr(48+2*j,2)}, {vr(48+2*j,2)}, {vr(64+2*j,2)}")
    for j in range(8): e(f"v_pk_add_f32 {vr(32+2*j,2)}, {vr(32+2*j,2)}, 1.0 op_sel_hi:[1,0]")
    for j in range(8): e(f"v_pk_add_f32 {vr(80+2*j,2)}, {vr(80+2*j,2)}, {vr(96+2*j,2)}")
    for j in range(16): e(f"v_rcp_f32 v{32+j}, v{32+j}")
    for j in range(8): e(f"v_pk_add_f32 {vr(48+2*j,2)}, {vr(48+2*j,2)}, {vr(80+2*j,2)}")
    for j in range(8): e(f"v_pk_mul_f32 {vr(32+2*j,2)}, {vr(32+2*j,2)}, {vr(V_AY+2*j,2)}")
    for j in range(8): e(f"v_pk_fma_f32 {vr(32+2*j,2)}, {vr(32+2*j,2)}, {vr(48+2*j,2)}, {vr(XU+2*j,2)}")
    for j in range(8): e(f"v_cvt_pk_bf16_f32 v{64+j}, v{32+2*j}, v{33+2*j}")
    e("s_nop 1")
    for a_, b_ in ((0, 2), (1, 3), (4, 6), (5, 7)): e(f"v_permlane32_swap_b32 v{64+a_}, v{64+b_}")
    e(f"buffer_store_dwordx4 v[64:67], v{V_OUT}, s[16:19], s77 offen")
    e(f"buffer_store_dwordx4 v[68:71], v{V_OUT}, s[16:19], s77 offen offset:32")
    if STAMP:
        st.mark(); e("s_waitcnt vmcnt(0)"); st.mark()
        st.dump(S_WAVE, "K_END")
    lab("K_END")
    e("s_endpgm")

hdr = f"""; Fused block in one launch: phase 1 = LayerNorm + QKV/gate/up GEMM + phi/GEGLU epilogues + kv reduction,
; @launch grid=(256,1,1) block=(512,1,1) lds=163840
.amdgcn_target "amdgcn-amd-amdhsa--gfx950"
.text"""
kernel()
kd = f""".amdhsa_kernel {NAME}_kernel
  .amdhsa_next_free_vgpr 256
  .amdhsa_next_free_sgpr 102
  .amdhsa_accum_offset 256
  .amdhsa_group_segment_fixed_size 0
  .amdhsa_kernarg_size 80
  .amdhsa_user_sgpr_count 2
  .amdhsa_user_sgpr_kernarg_segment_ptr 1
  .amdhsa_system_sgpr_workgroup_id_x 1
.end_amdhsa_kernel"""
open(OUT, "w").write(hdr + "\n" + "\n".join(L) + '\n.section .rodata,"a"\n.p2align 6\n' + kd + "\n")
```

```python
import sys, struct
STAMP = "--stamp" in sys.argv
OUT = [a for a in sys.argv[1:] if not a.startswith("--")]
NAME = "recurrent_scan__linear_attn_block__glu_gated_geglu__prompt"
OUT = OUT[0] if OUT else f"cdna_kernels/{NAME}.s"
X = set(a[2:] for a in sys.argv if a.startswith("--"))
def opt(name, dflt):
    r = [a[len(name)+3:] for a in sys.argv if a.startswith('--' + name + '=')]
    return r[0] if r else dflt

L = []
def e(s): L.append("    " + s)
def lab(s): L.append(s + ":")
def vr(b, n): return f"v[{b}:{b+n-1}]"
def fbits(x): return "0x%08x" % struct.unpack("<I", struct.pack("<f", x))[0]

NKS = 118
KV_OFF = 0x800000
KV_BYTES = 32 * 1088
FLG_OFF = KV_OFF + KV_BYTES
FLG_BYTES = 2048
WS_USED = FLG_OFF + FLG_BYTES
STAMP_OFF = 0x8000000
LOG2E = 1.4426950408889634
SC = "sc0 sc1"

def srd(d, lo, hi, size):
    e(f"s_mov_b32 s{d}, s{lo}"); e(f"s_mov_b32 s{d+1}, s{hi}")
    e(f"s_mov_b32 s{d+2}, {size}"); e(f"s_mov_b32 s{d+3}, 0x00020000")

class Stamps:
    def __init__(self): self.n = 0
    def mark(self, i=None):
        if STAMP:
            k = self.n if i is None else i
            e("s_memtime s[98:99]"); e("s_memrealtime s[100:101]"); e("s_waitcnt lgkmcnt(0)")
            e(f"v_writelane_b32 v255, s98, {2*k}"); e(f"v_writelane_b32 v255, s100, {2*k+1}")
            if i is None: self.n += 1
    def dump(self, swave, label):
        if not STAMP: return
        e(f"s_cmp_lg_u32 s{swave}, {opt('sw', '0')}"); e(f"s_cbranch_scc1 {label}")
        srd(4, 38, 39, "0x10000000")
        e("s_lshl_b32 s3, s2, 7"); e(f"s_add_u32 s3, s3, {STAMP_OFF}")
        e("v_lshlrev_b32 v3, 2, v1"); e("s_mov_b64 exec, 0xffffffff")
        e(f"buffer_store_dword v255, v3, s[4:7], s3 offen")
        if "dbgspan" in X:
            e("v_lshlrev_b32 v3, 1, v1"); e("v_add_u32 v3, 6, v3"); e("s_mov_b32 exec_lo, 0x000aaaaa"); e("s_mov_b32 exec_hi, 0")
            e("buffer_atomic_umax v255, v3, s[24:27], 0 offen")
            e("v_not_b32 v4, v255"); e("s_mov_b64 exec, 2")
            e("buffer_atomic_umax v4, off, s[24:27], 0 offset:4")
st = Stamps()

XST = 16384; WBASE = 32768; SEGB = 18560; WST = 36992; KVP = 146432; LCNT = 144000; WOA = 54 * 2048
V_VW = 10
V_VX, V_XW, V_DV = 19, 20, 21
V_NA = 22; V_ST = 30; V_UT = 40; V_PK = 72; V_XR = 96
V_XA, V_WA = 22, 26
V_SET = [32, 60]
V_ACC = 96
S_WAVE, S_TG, S_UH, S_MB, S_T, S_STR, S_U0, S_CNT = 40, 41, 42, 43, 44, 45, 46, 47
S_DMAW, S_KW, S_KS, S_HFO, S_Q, S_XI, S_MASK, S_ONES = 48, 49, 50, 51, 52, 53, 54, 55
S_RST, S_DST, S_TYPE, S_STR64, S_STR32, S_TMP, S_TMP2 = 56, 57, 58, 59, 60, 61, 62
S_RW, S_KWEND, S_RX = 72, 73, 63
S_MT, S_NT, S_R2, S_RY = 74, 75, 76, 91

def k1_dma():
    G = []
    for p in range(9):
        g = [f"s_add_u32 m0, s{S_DMAW}, {1024*p}"]
        g.append(f"s_add_u32 s{S_KS}, s{S_KW}, s{S_HFO}" if p in (0, 5) else "s_nop 0")
        g.append(f"buffer_load_dwordx4 v{V_VW+p}, s[8:11], s{S_KS} offen lds")
        G.append(g)
    G[-1] += [f"s_add_u32 s{S_KW}, s{S_KW}, s{S_STR64}", f"s_add_u32 s{S_DST}, s{S_DST}, 1",
              f"s_cmp_eq_u32 s{S_KW}, s{S_KWEND}", f"s_cselect_b32 s{S_KW}, 0, s{S_KW}",
              f"s_cmp_eq_u32 s{S_DST}, 3", f"s_cselect_b32 s{S_TMP}, {-2*WST & 0xffffffff}, s{S_TMP2}",
              f"s_cselect_b32 s{S_DST}, 0, s{S_DST}", f"s_add_u32 s{S_DMAW}, s{S_DMAW}, s{S_TMP}"]
    return G

def k1_reads(s_, p, var):
    b = V_SET[s_]
    offs = [0, 32, SEGB, SEGB + 32] if var == "S8" else [0, 32, 64, 96]
    if var == "N9a": offs.append(256)
    if var == "N9b": offs.append(128)
    def w(a): return [f"ds_read_b64_tr_b16 {vr(b+8+4*a,2)}, v{V_WA} offset:{p*4608+offs[a]}",
                      f"ds_read_b64_tr_b16 {vr(b+10+4*a,2)}, v{V_WA} offset:{p*4608+1152+offs[a]}"]
    r = [f"ds_read_b128 {vr(b,4)}, v{V_XA+p}"] + w(0) + [f"ds_read_b128 {vr(b+4,4)}, v{V_XA+p} offset:4096"]
    for a in range(1, len(offs)): r += w(a)
    return r

def mfma(d, a, b, c=None):
    return f"v_mfma_f32_32x32x16_bf16 {vr(d,16)}, {vr(a,4)}, {vr(b,4)}, " + (vr(d, 16) if c is None else c)

def k1_mfma(s_, var):
    b = V_SET[s_]
    m = []
    for a in range(4):
        for f in range(2):
            acc = V_ACC + 16 * (2 * a + f)
            W = b + 8 + 4 * a; X_ = b + 4 * f
            m.append(mfma(acc, X_, W) if var == "S8" else mfma(acc, W, X_))
    if var in ("N9a", "N9b"):
        m.append(mfma(V_ACC + 128, b + 24, b + (0 if var == "N9a" else 4)))
    return m

def k1_unpack(g):
    r = [f"s_set_gpr_idx_on s{S_XI}, gpr_idx(SRC1)", "s_nop 0"]
    for j in range(4 * g, 4 * g + 4):
        r.append(f"v_lshlrev_b32 v{V_UT+2*j}, 16, v{V_XR+j}")
        r.append(f"v_and_b32 v{V_UT+2*j+1}, s{S_MASK}, v{V_XR+j}")
    r.append("s_set_gpr_idx_off")
    return r
def k1_norm(g):
    r = []
    a = V_NA + 2 * g
    for j in range(4 * g, 4 * g + 4):
        r += [f"v_fma_f32 v{V_UT+2*j}, v{V_UT+2*j}, v{a}, v{a+1}", f"v_fma_f32 v{V_UT+2*j+1}, v{V_UT+2*j+1}, v{a}, v{a+1}"]
    for j in range(4 * g, 4 * g + 4):
        r.append(f"v_cvt_pk_bf16_f32 v{V_PK+j}, v{V_UT+2*j}, v{V_UT+2*j+1}")
    r.append(f"ds_write_b128 v{V_XW}, {vr(V_PK+4*g,4)} offset:{4096*g}")
    return r
def k1_xadv():
    return [f"v_xor_b32 v{V_XW}, {XST}, v{V_XW}", f"s_add_u32 s{S_XI}, s{S_XI}, 16", f"s_and_b32 s{S_XI}, s{S_XI}, 127"]

def layout(body):
    n = len(body)
    for i, it in enumerate(body):
        if it[0] == 'm' and it[2]:
            cnt = 0; j = i; w = None
            while True:
                j = (j - 1) % n
                o = body[j]
                if o[0] == 'w0': break
                if o[0] == 'l':
                    if o[2] in it[2]: w = cnt; break
                    cnt += 1
                if j == i: break
            if w is not None: e(f"s_waitcnt lgkmcnt({min(w, 15)})")
        if it[1].endswith(":"): L.append(it[1])
        else: e(it[1])

def k1_cons_loop(var):
    def need(p): return [[(p, 2)], [(p, 3)], [(p, 5)], [], [(p, 7)], [], [(p, 9)], [], [(p, 11)]]
    rs = [2, 2, 2, 2, 2, 2, 0, 0, 0]
    lab(f"K1_{var}")
    for x in k1_reads(0, 0, var): e(x)
    B = [('x', f"K1_{var}_loop:")]
    def stepx(s_, p, extra):
        mf = k1_mfma(s_, var); rd = k1_reads(s_ ^ 1, p + 1, var); ri = 0
        for i, m in enumerate(mf):
            B.append(('m', m, need(p)[i]))
            for _ in range(rs[i]):
                if ri < len(rd): B.append(('l', rd[ri], (p + 1, ri))); ri += 1
            for x in extra.get(i, []): B.append(('x', x))
    stepx(0, 0, {})
    stepx(1, 1, {6: [f"s_add_u32 s{S_RST}, s{S_RST}, 1", f"s_cmp_eq_u32 s{S_RST}, 3",
                     f"s_cselect_b32 s{S_TMP}, {-2*WST & 0xffffffff}, s{S_TMP2}", f"s_cselect_b32 s{S_RST}, 0, s{S_RST}"]})
    stepx(0, 2, {6: [f"v_xor_b32 v{V_XA+p}, {XST}, v{V_XA+p}" for p in range(3)],
                 7: [f"v_xor_b32 v{V_XA+3}, {XST}, v{V_XA+3}", f"v_add_u32 v{V_WA}, s{S_TMP}, v{V_WA}",
                     f"s_add_u32 s{S_CNT}, s{S_CNT}, 1", f"s_cmp_lt_u32 s{S_CNT}, 8"]})
    m = k1_mfma(1, var); nd = need(3)
    B.append(('m', m[0], nd[0])); B.append(('m', m[1], nd[1]))
    B.append(('w0', "s_waitcnt vmcnt(0) lgkmcnt(0)"))
    B.append(('x', "s_barrier"))
    r0 = k1_reads(0, 0, var); ri = 0
    for i in range(2, len(m)):
        B.append(('m', m[i], []))
        for _ in range(3 if i < 4 else 2):
            if ri < len(r0): B.append(('l', r0[ri], (0, ri))); ri += 1
    assert ri == len(r0)
    B.append(('x', f"s_cbranch_scc1 K1_{var}_loop"))
    layout(B)
    e("s_branch K1_EPI")

def kernel():
    A4 = opt('a', '2') == '4'
    L.append(f".globl {NAME}_kernel"); L.append(".p2align 8"); L.append(f".type {NAME}_kernel,@function"); lab(f"{NAME}_kernel")
    if STAMP: e("v_mov_b32 v255, 0")
    if "fixspan" in X: e("s_memrealtime s[94:95]")
    st.mark()
    e("s_load_dwordx4 s[28:31], s[0:1], 0")
    e("s_load_dwordx4 s[32:35], s[0:1], 32")
    e("s_load_dwordx4 s[36:39], s[0:1], 64")
    e("s_load_dwordx2 s[80:81], s[0:1], 16")
    e("s_load_dwordx4 s[84:87], s[0:1], 48")
    e("s_cmp_ge_u32 s2, 256"); e("s_cbranch_scc1 K_END")
    e("v_lshrrev_b32 v2, 6, v0"); e("v_and_b32 v1, 63, v0")
    e(f"v_readfirstlane_b32 s{S_WAVE}, v2")
    e("s_and_b32 s3, s2, 7"); e(f"s_lshr_b32 s{S_TMP}, s2, 3")
    e(f"s_lshl_b32 s{S_MT}, s3, 2"); e(f"s_and_b32 s66, s{S_TMP}, 3"); e(f"s_add_u32 s{S_MT}, s{S_MT}, s66"); e(f"s_lshr_b32 s{S_NT}, s{S_TMP}, 2")
    e(f"s_lshl_b32 s{S_R2}, s66, 1"); e(f"s_add_u32 s{S_R2}, s{S_R2}, s{S_NT}"); e(f"s_and_b32 s{S_R2}, s{S_R2}, {7 if opt('r2','1')=='1' else 0}")
    e(f"s_mul_i32 s{S_RY}, s66, {opt('rym','11')}"); e(f"s_mul_i32 s66, s{S_NT}, {opt('ryn','5')}"); e(f"s_add_u32 s{S_RY}, s{S_RY}, s66")
    if A4:
        e(f"s_and_b32 s{S_MB}, s3, 3"); e(f"s_lshl_b32 s{S_MB}, s{S_MB}, 2")
        e(f"s_and_b32 s64, s{S_TMP}, 3"); e(f"s_lshr_b32 s65, s{S_TMP}, 2")
        e("s_lshr_b32 s3, s3, 2"); e("s_lshl_b32 s3, s3, 3")
    else:
        e(f"s_and_b32 s{S_MB}, s3, 1"); e(f"s_lshl_b32 s{S_MB}, s{S_MB}, 3")
        e(f"s_and_b32 s64, s{S_TMP}, 7"); e(f"s_lshr_b32 s65, s{S_TMP}, 3")
        e("s_lshr_b32 s3, s3, 1"); e("s_lshl_b32 s3, s3, 2")
    e(f"s_add_u32 s{S_MB}, s{S_MB}, s64"); e("s_add_u32 s3, s3, s65")
    e(f"s_lshl_b32 s{S_RX}, s65, {0 if A4 else 1}"); e(f"s_and_b32 s{S_RX}, s{S_RX}, {int(opt('rx','7'))}")
    e(f"s_lshl_b32 s{S_RW}, s64, {1 if A4 else 0}"); e(f"s_and_b32 s{S_RW}, s{S_RW}, {int(opt('rw','0'))}")
    e(f"s_and_b32 s{S_Q}, s{S_WAVE}, 3")
    e("v_bfe_u32 v3, v0, 3, 5"); e("v_and_b32 v4, 7, v0")
    e(f"v_lshlrev_b32 v{V_VX}, 10, v3"); e(f"v_lshl_add_u32 v{V_VX}, v4, 4, v{V_VX}")
    e(f"s_lshl_b32 s70, s{S_RX}, 7"); e(f"s_lshl_b32 s71, s{S_MB}, 17")
    e("s_mov_b32 s6, 0x20000"); e("s_mov_b32 s7, 0x00020000")
    e("s_waitcnt lgkmcnt(0)")
    e("s_add_u32 s4, s28, s71"); e("s_addc_u32 s5, s29, 0")
    e(f"s_cmp_lt_u32 s{S_WAVE}, 4"); e("s_cbranch_scc1 K1_skipx")
    e("s_setprio 3")
    def xload(i):
        c, g = divmod(i, 4)
        if g == 0: so = "s70"
        else:
            e(f"s_add_u32 s71, s70, {32768*g}"); so = "s71"
        e(f"buffer_load_dwordx4 {vr(V_XR+4*i,4)}, v{V_VX}, s[4:7], {so} offen")
        if g == 3: e("s_add_u32 s70, s70, 128"); e("s_and_b32 s70, s70, 1023")
    XD = int(opt('xd', '8'))
    for i in range(XD): xload(i)
    lab("K1_skipx")
    e("s_lshl_b32 s3, s3, 2")
    tab = [4, 5, 0, 10, 6, 7, 1, 11, 8, 2, 12, 14, 9, 3, 13, 15]
    tv = sum(t << (4 * i) for i, t in enumerate(tab))
    e(f"s_mov_b32 s64, {tv & 0xffffffff:#x}"); e(f"s_mov_b32 s65, {tv >> 32:#x}")
    e("s_lshr_b64 s[64:65], s[64:65], s3"); e(f"s_and_b32 s{S_T}, s64, 15")
    e(f"s_and_b32 s{S_TG}, s{S_WAVE}, 1"); e(f"s_lshr_b32 s{S_UH}, s{S_Q}, 1")
    e(f"s_lshl_b32 s{S_U0}, s{S_T}, 3")
    e(f"s_mul_i32 s3, s{S_T}, 9"); e("s_sub_u32 s3, s3, 4")
    e(f"s_cmp_ge_u32 s{S_T}, 4"); e(f"s_cselect_b32 s{S_U0}, s3, s{S_U0}"); e(f"s_cselect_b32 s{S_TYPE}, 1, 0")
    e(f"s_lshl_b32 s64, s{S_U0}, 5"); e("s_mov_b32 s65, s64")
    e(f"s_lshl_b32 s3, s{S_T}, 8"); e(f"s_sub_u32 s3, s3, {10*256-1024}"); e(f"s_add_u32 s66, s3, 1024")
    e(f"s_cmp_ge_u32 s{S_T}, 10"); e("s_cselect_b32 s64, s3, s64"); e("s_cselect_b32 s65, s66, s65")
    e(f"s_cselect_b32 s{S_TYPE}, 2, s{S_TYPE}"); e(f"s_movk_i32 s3, 2752"); e(f"s_cselect_b32 s{S_STR}, 3072, s3")
    e(f"s_lshl_b32 s3, s{S_T}, 9"); e(f"s_sub_u32 s3, s3, {14*512}"); e("s_add_u32 s66, s3, 256")
    e(f"s_lshl_b32 s67, s{S_T}, 4"); e(f"s_sub_u32 s67, s67, {14*16-86}")
    e(f"s_cmp_ge_u32 s{S_T}, 14"); e("s_cselect_b32 s64, s3, s64"); e("s_cselect_b32 s65, s66, s65")
    e(f"s_cselect_b32 s{S_TYPE}, 3, s{S_TYPE}"); e(f"s_cselect_b32 s{S_U0}, s67, s{S_U0}")
    e(f"s_lshl_b32 s{S_STR64}, s{S_STR}, 6"); e(f"s_lshl_b32 s{S_STR32}, s{S_STR}, 5")
    e(f"s_mov_b32 s{S_MASK}, 0xffff0000"); e(f"s_mov_b32 s{S_ONES}, 0x3f803f80")
    e(f"s_cmp_eq_u32 s{S_TYPE}, 1"); e("s_cselect_b32 s66, 17, 15")
    for p in range(9):
        e(f"v_add_u32 v6, {64*p}, v1")
        e(f"v_mul_u32_u24 v5, 3641, v6"); e("v_lshrrev_b32 v5, 16, v5")
        e("v_mul_u32_u24 v7, 18, v5"); e(f"v_sub_u32 v7, v6, v7"); e("v_min_u32 v7, s66, v7")
        e(f"v_mul_u32_u24 v5, s{S_STR}, v5"); e(f"v_lshl_add_u32 v{V_VW+p}, v7, 4, v5")
    e("v_lshrrev_b32 v5, 3, v1"); e("v_bfe_u32 v6, v1, 4, 1"); e("v_lshlrev_b32 v6, 2, v6"); e("v_xor_b32 v6, v6, v4")
    e("v_lshlrev_b32 v5, 10, v5"); e(f"v_lshl_add_u32 v{V_DV}, v6, 4, v5")
    srd(20, 38, 39, WS_USED); srd(24, 36, 37, 256)
    e(f"s_cmp_eq_u32 s{S_TG}, 1")
    e("s_cselect_b64 s[8:9], s[34:35], s[32:33]"); e("s_cselect_b32 s64, s65, s64"); e(f"s_cselect_b32 s{S_DMAW}, {SEGB}, 0")
    e(f"s_cmp_ge_u32 s{S_TYPE}, 2")
    e("s_cselect_b64 s[8:9], s[30:31], s[8:9]")
    e(f"s_mov_b32 s3, {512*2752}"); e(f"s_cselect_b32 s3, {512*3072}, s3")
    e("s_add_u32 s8, s8, s64"); e("s_addc_u32 s9, s9, 0"); e("s_sub_u32 s10, s3, s64"); e("s_mov_b32 s11, 0x00020000")
    e(f"s_mul_i32 s{S_HFO}, s{S_UH}, s{S_STR32}")
    e(f"s_mul_i32 s3, s{S_UH}, 9216"); e(f"s_add_u32 s{S_DMAW}, s{S_DMAW}, s3"); e(f"s_add_u32 s{S_DMAW}, s{S_DMAW}, {WBASE}")
    e(f"s_lshl_b32 s{S_KWEND}, s{S_STR64}, 3"); e(f"s_mov_b32 s{S_TMP2}, {WST}")
    e(f"s_mov_b32 s{S_CNT}, 0")
    e(f"s_cmp_lt_u32 s{S_WAVE}, 4"); e("s_cbranch_scc1 K1_CONS")
    e(f"s_add_u32 s3, s{S_RW}, 1"); e("s_and_b32 s3, s3, 7"); e(f"s_mul_i32 s{S_KW}, s3, s{S_STR64}")
    e(f"s_mov_b32 s{S_DST}, 1"); e(f"s_add_u32 s{S_DMAW}, s{S_DMAW}, {WST}")
    e("v_bfe_u32 v5, v3, 1, 3"); e("v_xor_b32 v5, v5, v4")
    e(f"v_lshlrev_b32 v{V_XW}, 7, v3"); e(f"v_lshl_add_u32 v{V_XW}, v5, 4, v{V_XW}")
    for r in range(8): e(f"v_mov_b32 v{V_ST+r}, 0")
    e(f"s_sub_u32 s{S_XI}, s{S_RW}, s{S_RX}"); e(f"s_and_b32 s{S_XI}, s{S_XI}, 7"); e(f"s_lshl_b32 s{S_XI}, s{S_XI}, 4")
    WB = int(opt('wb', '28'))
    for i in range(32):
        if i + XD < 32: xload(i + XD)
        if i + XD == WB: e("s_barrier")
        e(f"s_waitcnt vmcnt({min(XD, 31 - i)})")
        g = i & 3
        for j in range(4):
            r = V_XR + 4 * i + j
            e(f"v_dot2c_f32_bf16 v{V_ST+2*g}, s{S_ONES}, v{r}")
            e(f"v_dot2c_f32_bf16 v{V_ST+2*g+1}, v{r}, v{r}")
    e("s_nop 2")
    for dpp in ("quad_perm:[1,0,3,2]", "quad_perm:[2,3,0,1]", "row_half_mirror"):
        for r in range(8): e(f"v_add_f32_dpp v{V_ST+r}, v{V_ST+r}, v{V_ST+r} {dpp} row_mask:0xf bank_mask:0xf")
    e(f"s_mov_b32 s3, {fbits(1/512)}")
    G4 = range(4)
    for r in range(8): e(f"v_mul_f32 v{V_ST+r}, s3, v{V_ST+r}")
    for g in G4: e(f"v_fma_f32 v{V_ST+1+2*g}, -v{V_ST+2*g}, v{V_ST+2*g}, v{V_ST+1+2*g}")
    for g in G4: e(f"v_max_f32 v{V_ST+1+2*g}, 0, v{V_ST+1+2*g}")
    for g in G4: e(f"v_cvt_pk_bf16_f32 v{V_ST+1+2*g}, v{V_ST+2*g}, v{V_ST+1+2*g}")
    for g in G4: e(f"v_lshlrev_b32 v{V_ST+2*g}, 16, v{V_ST+1+2*g}")
    for g in G4: e(f"v_and_b32 v{V_ST+1+2*g}, s{S_MASK}, v{V_ST+1+2*g}")
    for g in G4: e(f"v_add_f32 v{V_ST+1+2*g}, {fbits(1e-5)}, v{V_ST+1+2*g}")
    for g in G4: e(f"v_cvt_pk_bf16_f32 v{V_ST+1+2*g}, v{V_ST+1+2*g}, v{V_ST+1+2*g}")
    for g in G4: e(f"v_and_b32 v{V_ST+1+2*g}, s{S_MASK}, v{V_ST+1+2*g}")
    for g in G4: e(f"v_sqrt_f32 v{V_ST+1+2*g}, v{V_ST+1+2*g}")
    for g in G4: e(f"v_cvt_pk_bf16_f32 v{V_ST+1+2*g}, v{V_ST+1+2*g}, v{V_ST+1+2*g}")
    for g in G4: e(f"v_and_b32 v{V_ST+1+2*g}, s{S_MASK}, v{V_ST+1+2*g}")
    for g in G4: e(f"v_rcp_f32 v{V_NA+2*g}, v{V_ST+1+2*g}")
    for g in G4: e(f"v_mul_f32_e64 v{V_NA+2*g+1}, -v{V_ST+2*g}, v{V_NA+2*g}")
    for g in G4:
        for x in k1_unpack(g) + k1_norm(g): e(x)
    for x in k1_xadv(): e(x)
    e("s_setprio 0")
    e("s_waitcnt lgkmcnt(0)")
    e("s_barrier")
    D = k1_dma()
    for g in D[5:]:
        for x in g: e(x)
    lab("K1_PROD_loop")
    for g in G4:
        for x in D[2*g] + k1_unpack(g) + D[2*g+1] + k1_norm(g): e(x)
    for x in D[8] + k1_xadv(): e(x)
    e(f"s_add_u32 s{S_CNT}, s{S_CNT}, 1")
    e(f"s_cmp_lt_u32 s{S_CNT}, 6")
    e("s_waitcnt vmcnt(9) lgkmcnt(0)")
    e("s_barrier")
    e("s_cbranch_scc1 K1_PROD_loop")
    V_KF, V_PO, V_O, V_PQ, V_WO, V_AS = 28, 36, 44, 76, 124, 188
    e(f"s_lshl_b32 s3, s{S_NT}, 7")
    e("s_add_u32 s12, s80, s3"); e("s_addc_u32 s13, s81, 0"); e(f"s_sub_u32 s14, {512*1024}, s3"); e("s_mov_b32 s15, 0x00020000")
    e("s_add_u32 s16, s84, s3"); e("s_addc_u32 s17, s85, 0"); e(f"s_sub_u32 s18, {1376*1024}, s3"); e("s_mov_b32 s19, 0x00020000")
    e(f"s_lshl_b32 s64, s{S_Q}, 10")
    e(f"s_lshl_b32 s65, s{S_Q}, 17")
    e(f"s_lshl_b32 s67, s{S_R2}, 14")
    e(f"s_add_u32 s68, s{S_RY}, s{S_UH}"); e("s_lshl_b32 s68, s68, 14"); e(f"s_lshl_b32 s3, s{S_TG}, 13"); e("s_add_u32 s68, s68, s3")
    def wo_batch():
        G = []
        for p in range(8):
            g = [f"s_add_u32 m0, s64, {WOA + 4096*p}"]
            g.append("s_add_u32 s66, s65, s67" if p % 2 == 0 else "s_add_u32 s66, s66, 8192")
            g.append(f"buffer_load_dwordx4 v{V_DV}, s[12:15], s66 offen lds")
            if p % 2: g += ["s_add_u32 s67, s67, 16384", "s_and_b32 s67, s67, 0x1ffff"]
            G.append(g)
        return G
    def rounds(sig, pi, n):
        for i in range(n):
            e(f"s_add_u32 s66, s68, {(pi + 2*i) * 16384}")
            e(f"s_sub_u32 s69, s66, {86*16384}")
            e(f"s_cselect_b32 s66, s66, s69")
            e(f"s_add_u32 m0, s64, {(sig + 2*i) * 2048}")
            e("s_nop 0")
            e(f"buffer_load_dwordx4 v{V_DV}, s[16:19], s66 offen lds")
    def tr_lane(dst):
        e("v_lshrrev_b32 v3, 5, v1"); e("v_bfe_u32 v4, v1, 2, 2"); e("v_lshl_add_u32 v3, v3, 2, v4"); e("v_lshlrev_b32 v3, 7, v3")
        e("v_bfe_u32 v4, v1, 3, 1"); e("v_lshl_add_u32 v3, v4, 6, v3")
        e("v_bfe_u32 v4, v1, 4, 1"); e("v_lshl_add_u32 v3, v4, 5, v3")
        e("v_and_b32 v4, 3, v1"); e(f"v_lshl_add_u32 v{dst}, v4, 3, v3")
    def wo_read(h0):
        for i in range(4):
            for nf in range(2):
                for rd in range(2):
                    e(f"ds_read_b64_tr_b16 {vr(V_WO+8*(h0+i)+4*nf+2*rd,2)}, v{12+nf} offset:{i*8192 + rd*4096}")
        e("s_waitcnt lgkmcnt(0)")
    P = wo_batch()
    for g in G4:
        for x in P[2*g] + k1_unpack(g) + P[2*g+1] + k1_norm(g): e(x)
    tr_lane(12)
    e(f"s_add_u32 s3, s64, {WOA}"); e("v_add_u32 v12, s3, v12"); e("v_xor_b32 v13, 64, v12")
    e("s_waitcnt vmcnt(8) lgkmcnt(0)")
    e("s_barrier")
    rounds(16, 24, 3)
    e("s_waitcnt vmcnt(3)")
    wo_read(0)
    for g in wo_batch():
        for x in g: e(x)
    e("s_barrier")
    rounds(22, 30, 3); rounds(28, 0, 4)
    e("s_waitcnt vmcnt(7)")
    wo_read(4)
    rounds(62, 44, 4); rounds(0, 8, 8); rounds(36, 52, 13)
    e(f"v_lshlrev_b32 v10, 4, v1")
    e(f"s_mul_i32 s3, s{S_Q}, 8704"); e(f"s_add_u32 s3, s3, {KV_OFF}")
    e("s_add_u32 s4, s38, s3"); e("s_addc_u32 s5, s39, 0"); e("s_movk_i32 s6, 8704"); e("s_mov_b32 s7, 0x00020000")
    e(f"s_mul_i32 s3, s{S_MT}, {2*NKS}"); e(f"s_lshl_b32 s65, s{S_Q}, 3"); e("s_add_u32 s3, s3, s65"); e("s_add_u32 s3, s3, 86"); e("s_lshl_b32 s70, s3, 10")
    e(f"s_mul_i32 s3, s{S_Q}, 4352"); e(f"s_add_u32 s3, s3, {KVP}")
    e("v_lshlrev_b32 v11, 3, v1"); e("v_add_u32 v11, s3, v11")
    e("v_and_b32 v3, 31, v1"); e("v_max_u32 v3, 15, v3"); e("v_lshlrev_b32 v3, 5, v3"); e("v_lshrrev_b32 v4, 5, v1")
    e("v_lshl_add_u32 v3, v4, 4, v3"); e(f"s_sub_u32 s3, s3, {15*32}"); e("v_add_u32 v14, s3, v3")
    e(f"s_lshr_b32 s71, s{S_MT}, 1"); e("s_lshl_b32 s71, s71, 7"); e(f"s_add_u32 s71, s71, {FLG_OFF + 40}")
    e(f"s_mov_b32 s89, {fbits(1e-6)}")
    e("s_waitcnt vmcnt(0)")
    e("s_barrier")
    e("s_barrier")
    rounds(28, 36, 4); rounds(62, 78, 4)
    e("s_barrier")
    e("s_setprio 2")
    e(f"s_lshl_b32 s67, s{S_R2}, 10")
    def pq(i):
        e("s_add_u32 s66, s70, s67")
        e(f"buffer_load_dwordx4 {vr(V_PQ+8*(i%6),4)}, v10, s[20:23], s66 offen {SC}")
        e(f"s_add_u32 s66, s66, {NKS*1024}")
        e(f"buffer_load_dwordx4 {vr(V_PQ+8*(i%6)+4,4)}, v10, s[20:23], s66 offen {SC}")
        e("s_add_u32 s67, s67, 1024"); e("s_and_b32 s67, s67, 0x1fff")
    e("s_mov_b32 s90, 0")
    lab("K2_kvpoll")
    e(f"buffer_load_dword v2, off, s[20:23], s71 {SC}")
    e("s_add_u32 s90, s90, 1")
    e("s_waitcnt vmcnt(0)")
    e("v_readfirstlane_b32 s66, v2")
    e("s_cmp_lg_u32 s66, 0"); e("s_cbranch_scc1 K2_kvgo")
    e("s_sleep 8")
    e("s_cmp_lt_u32 s90, 0x100000"); e("s_cbranch_scc1 K2_kvpoll")
    lab("K2_kvgo")
    st.mark(7)
    e("s_movk_i32 s65, 4096"); e("s_movk_i32 s69, 8192")
    for i in range(9):
        e(f"buffer_load_dwordx4 {vr(V_AS+4*i,4)}, v10, s[4:7], {['0','s65','s69'][i//4]} offen offset:{1024*(i%4)} {SC}")
    for i in range(6): pq(i)
    for i in range(9):
        e(f"s_waitcnt vmcnt({12 + 8 - i})")
        e(f"v_cvt_pk_bf16_f32 v{V_AS+4*i}, v{V_AS+4*i}, v{V_AS+4*i+1}")
        e(f"v_cvt_pk_bf16_f32 v{V_AS+4*i+1}, v{V_AS+4*i+2}, v{V_AS+4*i+3}")
        if i == 8: e("s_mov_b64 exec, 0xffffffff")
        e(f"ds_write_b64 v11, {vr(V_AS+4*i,2)} offset:{512*i}")
    e("s_mov_b64 exec, -1")
    e(f"s_mul_i32 s88, s{S_R2}, 544")
    def kf(i):
        e("v_add_u32 v3, s88, v14")
        e("s_add_u32 s88, s88, 544"); e(f"s_cmp_eq_u32 s88, {8*544}"); e("s_cselect_b32 s88, 0, s88")
        e(f"ds_read_b128 {vr(V_KF+4*(i%2),4)}, v3")
    def omf(i, t): e(mfma(V_O + 16 * t, V_KF + 4 * (i % 2), V_PQ + 8 * (i % 6) + 4 * t, "0"))
    kf(0); kf(1)
    e("s_waitcnt vmcnt(10) lgkmcnt(1)")
    omf(0, 0); omf(0, 1)
    e("s_nop 10")
    for i in range(8):
        for t in range(2):
            o = V_O + 16 * t
            e(f"v_add_f32 v{o}, s89, v{o}"); e(f"v_rcp_f32 v{o}, v{o}")
            if t == 0 and i < 2: pq(i + 6)
            else: e("s_nop 0")
            for j in range(8): e(f"v_mul_f32 v{o+8+j}, v{o}, v{o+8+j}")
            for j in range(4): e(f"v_cvt_pk_bf16_f32 v{V_PO+4*t+j}, v{o+8+2*j}, v{o+9+2*j}")
            if i < 7:
                if t == 0:
                    n = [10, 10, 8, 6, 4, 2, 0][i]
                    e(f"s_waitcnt vmcnt({n}) lgkmcnt(0)")
                else: e("s_nop 0")
                omf(i + 1, t)
                if t == 1 and i < 6: kf(i + 2)
            else: e("s_nop 1")
            for nf in range(2):
                e(mfma(V_AS + 32 * t + 16 * nf, V_WO + 8 * i + 4 * nf, V_PO + 4 * t, "0" if i == 0 else None))
    e(f"s_mul_i32 s3, s{S_UH}, 73728"); e(f"s_lshl_b32 s65, s{S_TG}, 14"); e("s_add_u32 s3, s3, s65"); e("v_add_u32 v3, s3, v10")
    st.mark(8)
    e("s_barrier")
    e("s_nop 4")
    for r in range(16): e(f"ds_write_b128 v3, {vr(V_AS+4*r,4)} offset:{1024*r}")
    e("s_waitcnt lgkmcnt(0)")
    e("s_barrier")
    if STAMP:
        st.mark(9); st.dump(S_WAVE, "K_END")
    e("s_endpgm")
    lab("K1_CONS")
    e(f"s_or_b32 s3, s2, s{S_WAVE}"); e("s_cmp_eq_u32 s3, 0"); e("s_cbranch_scc0 K1_nozero")
    for j in range(4): e(f"v_mov_b32 v{4+j}, 0")
    e("v_lshlrev_b32 v3, 4, v1")
    e(f"s_mov_b32 s3, {KV_OFF}")
    lab("K1_zloop")
    for j in range(4): e(f"buffer_store_dwordx4 v[4:7], v3, s[20:23], s3 offen offset:{1024*j} {SC}")
    e("s_add_u32 s3, s3, 4096"); e(f"s_cmp_lt_u32 s3, {WS_USED}"); e("s_cbranch_scc1 K1_zloop")
    e("v_mov_b32 v2, 1")
    e("s_waitcnt vmcnt(0)")
    e("s_mov_b64 exec, 1")
    e(f"buffer_store_dword v2, off, s[24:27], 0 {SC}")
    e("s_mov_b64 exec, -1")
    lab("K1_nozero")
    e(f"s_mul_i32 s{S_KW}, s{S_RW}, s{S_STR64}"); e(f"s_mov_b32 s{S_DST}, 0")
    e("v_and_b32 v3, 31, v1"); e("v_lshrrev_b32 v4, 5, v1")
    e("v_bfe_u32 v5, v3, 1, 3"); e("v_xor_b32 v5, v5, v4")
    e(f"s_lshl_b32 s3, s{S_TG}, 13")
    e("v_lshlrev_b32 v3, 7, v3"); e("v_add_u32 v3, s3, v3")
    e(f"v_lshl_add_u32 v{V_XA}, v5, 4, v3")
    for p in range(1, 4): e(f"v_xor_b32 v{V_XA+p}, {32*p}, v{V_XA}")
    e(f"s_cmp_eq_u32 s{S_TYPE}, 2"); e(f"s_movk_i32 s3, {SEGB}"); e("s_cselect_b32 s3, 128, s3"); e("s_cselect_b32 s66, 6, 7")
    e("v_bfe_u32 v3, v1, 4, 1"); e(f"v_mul_u32_u24 v3, s3, v3")
    e("v_bfe_u32 v5, v1, 2, 2"); e("v_lshl_add_u32 v5, v4, 3, v5"); e("v_mul_u32_u24 v5, 288, v5")
    e("v_and_b32 v6, 3, v1"); e("v_lshlrev_b32 v6, 3, v6")
    e(f"s_lshl_b32 s3, s{S_UH}, s66"); e(f"s_add_u32 s3, s3, {WBASE}")
    e(f"v_add3_u32 v{V_WA}, v3, v5, v6"); e(f"v_add_u32 v{V_WA}, s3, v{V_WA}")
    for r in range(72): e(f"v_mov_b64 {vr(V_ACC+2*r,2)}, 0")
    e(f"s_mov_b32 s{S_RST}, 0")
    e(f"v_mov_b32 v27, {LCNT}"); e(f"ds_write_b64 v27, {vr(V_ACC,2)}")
    e("s_barrier")
    st.mark()
    for g in k1_dma() + k1_dma()[:5]:
        for x in g: e(x)
    e("s_waitcnt vmcnt(5)")
    e("s_barrier")
    st.mark()
    e("s_setprio 1")
    e(f"s_cmp_eq_u32 s{S_TYPE}, 2"); e("s_cbranch_scc1 K1_S8")
    e(f"s_cmp_eq_u32 s{S_TYPE}, 1"); e("s_cbranch_scc0 K1_N8")
    e(f"s_cmp_eq_u32 s{S_UH}, 1"); e("s_cbranch_scc1 K1_N9b")
    for var in ("N9a", "N9b", "N8", "S8"): k1_cons_loop(var)
    lab("K1_EPI")
    st.mark()
    e(f"buffer_load_dword v2, off, s[24:27], 0 {SC}")
    e("s_waitcnt lgkmcnt(0)")
    e("v_lshlrev_b32 v10, 4, v1")
    e(f"s_lshl_b32 s3, s{S_MB}, 2"); e(f"s_lshl_b32 s64, s{S_TG}, 1"); e("s_add_u32 s3, s3, s64")
    e(f"s_mul_i32 s64, s3, {NKS}"); e(f"s_add_u32 s64, s64, s{S_U0}")
    e(f"s_add_u32 s66, s3, s{S_UH}"); e(f"s_mul_i32 s66, s66, {NKS}"); e(f"s_add_u32 s66, s66, s{S_U0}"); e("s_add_u32 s66, s66, 8"); e("s_lshl_b32 s66, s66, 10")
    e(f"s_lshl_b32 s3, s{S_UH}, 2"); e("s_add_u32 s64, s64, s3"); e("s_lshl_b32 s64, s64, 10")
    e(f"s_add_u32 s65, s64, {NKS*1024}")
    e(f"s_cmp_eq_u32 s{S_TYPE}, 2"); e("s_cbranch_scc1 K1_EPI_KV")
    e(f"s_cmp_eq_u32 s{S_TYPE}, 3"); e("s_cbranch_scc1 K1_EPI_Q")
    c0 = -2 * 0.7978845608028654 * LOG2E; c1 = c0 * 0.044715
    e(f"v_mov_b32 v12, {fbits(c1)}"); e(f"v_mov_b32 v13, {fbits(c0)}")
    def f_epi(items, tb):
        pr = []
        for k, (acc, soff, imm) in enumerate(items):
            pr += [(acc + 2 * j, acc + 8 + 2 * j, tb + 8 * k + 2 * j) for j in range(4)]
        n = 2 * len(pr); o = tb + 16
        for g, u, tt in pr: e(f"v_pk_mul_f32 {vr(tt,2)}, {vr(g,2)}, {vr(g,2)}")
        for g, u, tt in pr: e(f"v_pk_fma_f32 {vr(tt,2)}, {vr(tt,2)}, v[12:13], v[12:13] op_sel:[0,0,1] op_sel_hi:[1,0,1]")
        for g, u, tt in pr: e(f"v_pk_mul_f32 {vr(tt,2)}, {vr(tt,2)}, {vr(g,2)}")
        for j in range(n): e(f"v_exp_f32 v{tb+j}, v{tb+j}")
        for g, u, tt in pr: e(f"v_pk_mul_f32 {vr(g,2)}, {vr(g,2)}, {vr(u,2)}")
        for g, u, tt in pr: e(f"v_pk_add_f32 {vr(tt,2)}, {vr(tt,2)}, 1.0 op_sel_hi:[1,0]")
        for j in range(n): e(f"v_rcp_f32 v{tb+j}, v{tb+j}")
        for g, u, tt in pr: e(f"v_pk_mul_f32 {vr(g,2)}, {vr(g,2)}, {vr(tt,2)}")
        for j, (g, u, tt) in enumerate(pr): e(f"v_cvt_pk_bf16_f32 v{o+j}, v{g}, v{g+1}")
        for k, (acc, soff, imm) in enumerate(items):
            e(f"buffer_store_dwordx4 {vr(o+4*k,4)}, v10, s[20:23], s{soff} offen offset:{imm} {SC}")
    for a in range(4):
        f_epi([(V_ACC + 32 * a, 64, 1024 * a), (V_ACC + 32 * a + 16, 65, 1024 * a)], 32 + 24 * (a % 2))
    e(f"s_cmp_eq_u32 s{S_TYPE}, 1"); e("s_cbranch_scc0 K1_JOIN")
    f_epi([(V_ACC + 128, 66, 0)], 32)
    e("s_branch K1_JOIN")
    lab("K1_EPI_Q")
    e(f"s_mov_b32 s68, {fbits(LOG2E)}"); e(f"s_mov_b32 s69, {fbits(1e-6)}")
    e("s_add_u32 s66, s64, 8192"); e("s_add_u32 s67, s65, 8192")
    def phi(acc, t):
        for j in range(8): e(f"v_pk_mul_f32 {vr(t+2*j,2)}, {vr(acc+2*j,2)}, s[68:69] op_sel_hi:[1,0]")
        for j in range(16): e(f"v_exp_f32_e64 v{t+j}, v{t+j} clamp")
        for j in range(16): e(f"v_max_f32 v{acc+j}, s69, v{acc+j}")
        for j in range(8): e(f"v_pk_add_f32 {vr(acc+2*j,2)}, {vr(acc+2*j,2)}, {vr(t+2*j,2)}")
    for i in range(8):
        a, f = i >> 1, i & 1
        acc = V_ACC + 16 * i; o = 48 + 8 * (i % 2)
        phi(acc, 32)
        for j in range(8): e(f"v_cvt_pk_bf16_f32 v{o+j}, v{acc+2*j}, v{acc+2*j+1}")
        e(f"buffer_store_dwordx4 {vr(o,4)}, v10, s[20:23], s{64+f} offen offset:{1024*a} {SC}")
        e(f"buffer_store_dwordx4 {vr(o+4,4)}, v10, s[20:23], s{66+f} offen offset:{1024*a} {SC}")
    e("s_branch K1_JOIN")
    lab("K1_EPI_KV")
    e(f"s_sub_u32 s{S_TMP}, s{S_T}, 10")
    e(f"s_mov_b32 s68, {fbits(LOG2E)}"); e(f"s_mov_b32 s69, {fbits(1e-6)}")
    for r in range(4): e(f"v_mov_b32 v{80+r}, s{S_ONES}")
    e("v_and_b32 v3, 15, v1"); e("v_lshrrev_b32 v4, 5, v1")
    e("v_lshlrev_b32 v3, 6, v3"); e("v_lshlrev_b32 v4, 5, v4")
    e(f"s_mul_i32 s3, s{S_TG}, 8704"); e(f"s_mul_i32 s64, s{S_UH}, 2176"); e("s_add_u32 s3, s3, s64"); e(f"s_add_u32 s3, s3, {KVP}")
    e("v_add_u32 v4, s3, v4"); e("v_add_u32 v3, v3, v4")
    e("s_mov_b32 s70, 0x0000ffff"); e("s_mov_b32 s71, 0x0000ffff")
    e("s_mov_b32 s66, 0xffff0000"); e("s_mov_b32 s67, 0xffff0000")
    e("s_mov_b32 s64, 1"); e("s_mov_b32 s65, 1")
    DKs = [(224, V_ACC + 64), (V_ACC, V_ACC + 16)]
    def kvwr(a):
        DK, DZ = DKs[a]; o = 1088 * a
        e("s_mov_b64 exec, s[70:71]")
        e(f"ds_write_b128 v3, {vr(DK,4)} offset:{o+64}"); e(f"ds_write_b128 v3, {vr(DK+4,4)} offset:{o+80}")
        e("s_mov_b64 exec, s[66:67]")
        e(f"ds_write_b128 v3, {vr(DK+8,4)} offset:{o+4352+64}"); e(f"ds_write_b128 v3, {vr(DK+12,4)} offset:{o+4352+80}")
        e("s_mov_b64 exec, s[64:65]")
        e(f"ds_write_b128 v4, {vr(DZ,4)} offset:{o}"); e(f"ds_write_b128 v4, {vr(DZ+4,4)} offset:{o+16}")
        e(f"ds_write_b128 v4, {vr(DZ+8,4)} offset:{o+4352}"); e(f"ds_write_b128 v4, {vr(DZ+12,4)} offset:{o+4352+16}")
        e("s_mov_b64 exec, -1")
    for a in range(2):
        DK, DZ = DKs[a]
        for f in range(2):
            ak = V_ACC + 16 * (2 * a + f); av = V_ACC + 16 * (2 * (a + 2) + f); A = 48 + 16 * f; B = 56 + 16 * f
            for j in range(8): e(f"v_cvt_pk_bf16_f32 v{B+j}, v{av+2*j}, v{av+2*j+1}")
            phi(ak, 32)
            for j in range(8): e(f"v_cvt_pk_bf16_f32 v{A+j}, v{ak+2*j}, v{ak+2*j+1}")
            if a == 1 and f == 0: kvwr(0)
            e("s_nop 1")
            e(mfma(DK, A, B, "0" if f == 0 else None)); e(mfma(DZ, A, 80, "0" if f == 0 else None))
            e(mfma(DK, A + 4, B + 4)); e(mfma(DZ, A + 4, 80))
    e("v_lshlrev_b32 v5, 2, v0"); e(f"v_add_u32 v6, {KVP}, v5")
    e(f"s_mul_i32 s3, s{S_TMP}, 8704"); e(f"s_add_u32 s3, s3, {KV_OFF}")
    e("s_add_u32 s4, s38, s3"); e("s_addc_u32 s5, s39, 0"); e("s_movk_i32 s6, 8704"); e("s_mov_b32 s7, 0x00020000")
    e("s_nop 5")
    kvwr(1)
    def zcheck(tag):
        e("s_mov_b32 s90, 0")
        lab(f"K1_zpoll{tag}")
        e("s_waitcnt vmcnt(0)")
        e("v_readfirstlane_b32 s66, v2")
        e("s_cmp_lg_u32 s66, 0"); e(f"s_cbranch_scc1 K1_zdone{tag}")
        e("s_sleep 4")
        e(f"buffer_load_dword v2, off, s[24:27], 0 {SC}")
        e("s_add_u32 s90, s90, 1"); e("s_cmp_lt_u32 s90, 0x100000"); e(f"s_cbranch_scc1 K1_zpoll{tag}")
        lab(f"K1_zdone{tag}")
    e("v_mov_b32 v7, 1")
    e("s_waitcnt lgkmcnt(0)")
    e("s_mov_b64 exec, 1"); e("ds_add_u32 v27, v7 offset:4"); e("s_mov_b64 exec, -1")
    e("s_movk_i32 s64, 4096"); e("s_movk_i32 s65, 8192")
    zcheck("a")
    lab("K1_kvspin")
    e("ds_read_b32 v7, v27 offset:4"); e("s_waitcnt lgkmcnt(0)")
    e("v_readfirstlane_b32 s66, v7"); e("s_cmp_lt_u32 s66, 4"); e("s_cbranch_scc1 K1_kvspin")
    for i in range(9):
        e(f"ds_read_b32 v{32+2*i}, v6 offset:{1024*i}"); e(f"ds_read_b32 v{33+2*i}, v6 offset:{1024*i+8704}")
    e("s_waitcnt lgkmcnt(0)")
    for i in range(9): e(f"v_add_f32 v{32+2*i}, v{32+2*i}, v{33+2*i}")
    for i in range(9):
        so = ["0", "s64", "s65"][i // 4]
        e(f"buffer_atomic_add_f32 v{32+2*i}, v5, s[4:7], {so} offen offset:{1024*(i%4)}")
    lab("K1_JOIN")
    st.mark()
    V_STG, V_WF, V_TOK, V_AY, V_XRES, V_OUT = 32, 96, 120, 200, 232, 11
    NT = 20
    tr_lane(12)
    e(f"s_mul_i32 s3, s{S_UH}, 73728"); e("v_add_u32 v12, s3, v12"); e("v_xor_b32 v13, 64, v12")
    e(f"s_lshl_b32 s3, s{S_UH}, 12"); e(f"s_sub_u32 s3, {28*2048}, s3"); e("v_add_u32 v14, s3, v12"); e("v_add_u32 v15, s3, v13")
    e(f"s_lshl_b32 s64, s{S_MB}, 7"); e(f"s_lshl_b32 s3, s{S_T}, 2"); e("s_add_u32 s64, s64, s3"); e(f"s_add_u32 s64, s64, {FLG_OFF}")
    e("v_mov_b32 v7, 1")
    zcheck("b")
    e("s_mov_b64 exec, 1")
    e("ds_add_rtn_u32 v6, v27, v7")
    e("s_waitcnt lgkmcnt(0)")
    e("v_readfirstlane_b32 s66, v6")
    e("s_cmp_eq_u32 s66, 3"); e("s_cbranch_scc0 K2_noflag")
    e(f"s_cmp_eq_u32 s{S_TYPE}, 2"); e("s_cbranch_scc1 K2_kvflag")
    e(f"buffer_store_dword v7, off, s[20:23], s64 {SC}")
    e("s_branch K2_noflag")
    lab("K2_kvflag")
    e("v_mov_b32 v6, 1")
    e(f"buffer_atomic_add v6, off, s[24:27], 0 offset:128 {SC}")
    e("s_waitcnt vmcnt(0)")
    e("v_readfirstlane_b32 s66, v6")
    e("s_and_b32 s66, s66, 63")
    e("s_cmp_eq_u32 s66, 63"); e("s_cbranch_scc0 K2_noflag")
    e("s_mov_b64 exec, 0xffff")
    e("v_lshlrev_b32 v6, 7, v1"); e(f"s_mov_b32 s66, {FLG_OFF + 40}")
    e(f"buffer_store_dword v7, v6, s[20:23], s66 offen {SC}")
    lab("K2_noflag")
    e("s_mov_b64 exec, -1")
    st.mark()
    e("s_setprio 0")
    e("v_and_b32 v3, 31, v1"); e("v_lshrrev_b32 v4, 5, v1"); e(f"v_lshlrev_b32 v{V_OUT}, 10, v3"); e(f"v_lshl_add_u32 v{V_OUT}, v4, 4, v{V_OUT}")
    e(f"s_lshl_b32 s77, s{S_MT}, 16"); e(f"s_lshl_b32 s3, s{S_NT}, 7"); e("s_add_u32 s77, s77, s3")
    e(f"s_lshl_b32 s3, s{S_TG}, 15"); e("s_add_u32 s77, s77, s3"); e(f"s_lshl_b32 s3, s{S_UH}, 6"); e("s_add_u32 s77, s77, s3")
    srd(16, 28, 29, 2097152)
    e(f"buffer_load_dwordx4 {vr(V_XRES,4)}, v{V_OUT}, s[16:19], s77 offen")
    e(f"buffer_load_dwordx4 {vr(V_XRES+4,4)}, v{V_OUT}, s[16:19], s77 offen offset:32")
    e(f"s_lshl_b32 s3, s{S_MT}, 1"); e(f"s_add_u32 s3, s3, s{S_TG}"); e(f"s_mul_i32 s3, s3, {NKS*1024}")
    e("s_add_u32 s8, s38, s3"); e("s_addc_u32 s9, s39, 0"); e(f"s_mov_b32 s10, {86*1024}"); e("s_mov_b32 s11, 0x00020000")
    e(f"s_mul_i32 s79, s{S_UH}, 44"); e(f"s_add_u32 s79, s79, s{S_RY}"); e("s_sub_u32 s3, s79, 86"); e("s_cselect_b32 s79, s79, s3"); e("s_lshl_b32 s79, s79, 10")
    e("s_barrier")
    for j in range(8):
        for nf in range(2):
            for rd in range(2):
                e(f"ds_read_b64_tr_b16 {vr(V_STG+8*j+4*nf+2*rd,2)}, v{14+nf} offset:{j*2048 + rd*1024}")
    e("s_waitcnt lgkmcnt(0)")
    e("s_barrier")
    e(f"s_cmp_eq_u32 s{S_WAVE}, 0"); e("s_cbranch_scc0 K2_go")
    e("v_and_b32 v4, 15, v1"); e("v_lshlrev_b32 v4, 2, v4")
    e(f"s_lshr_b32 s64, s{S_MT}, 1"); e("s_lshl_b32 s64, s64, 7"); e(f"s_add_u32 s64, s64, {FLG_OFF}")
    e("s_mov_b32 s90, 0")
    lab("K2_poll")
    e(f"buffer_load_dword v5, v4, s[20:23], s64 offen {SC}")
    e("s_add_u32 s90, s90, 1")
    e("s_waitcnt vmcnt(0)")
    e("v_cmp_ne_u32 vcc, 0, v5")
    e("s_or_b32 s66, vcc_lo, 0x3c003c00")
    e("s_cmp_eq_u32 s66, -1"); e("s_cbranch_scc1 K2_go")
    e(f"s_sleep {opt('slp','4')}")
    e("s_cmp_lt_u32 s90, 0x100000"); e("s_cbranch_scc1 K2_poll")
    lab("K2_go")
    e("s_barrier")
    st.mark()
    def tok(j):
        e(f"buffer_load_dwordx4 {vr(V_TOK+4*(j%NT),4)}, v10, s[8:11], s79 offen {SC}")
        e("s_add_u32 s79, s79, 1024"); e(f"s_cmp_eq_u32 s79, {86*1024}"); e("s_cselect_b32 s79, 0, s79")
    def wr(j):
        b = V_WF + 8 * (j % 3); off = (j - 8) * 2048 - (32768 if j >= 32 else 0)
        for nf in range(2):
            for rd in range(2):
                e(f"ds_read_b64_tr_b16 {vr(b+4*nf+2*rd,2)}, v{12+nf} offset:{off + rd*1024}")
    TD = int(opt('td', '8'))
    for j in range(TD): tok(j)
    for j in range(44):
        if j == 42:
            e(f"s_cmp_eq_u32 s{S_UH}, 1"); e("s_cbranch_scc1 K2_FIN")
        if j == 28: e("s_barrier")
        if j + TD < 44: tok(j + TD)
        if j + 2 == 32: e("v_add_u32 v12, 0x8000, v12"); e("v_add_u32 v13, 0x8000, v13")
        if 8 <= j + 2 < 44: wr(j + 2)
        lg = "" if j < 8 else f" lgkmcnt({4 * min(2, 43 - j)})"
        e(f"s_waitcnt vmcnt({min(TD, 43 - j)})" + lg)
        W = V_STG + 8 * j if j < 8 else V_WF + 8 * (j % 3)
        for nf in range(2): e(mfma(V_AY + 16 * nf, W + 4 * nf, V_TOK + 4 * (j % NT), "0" if j == 0 else None))
    lab("K2_FIN")
    st.mark()
    e(f"s_mul_i32 s3, s{S_UH}, 73728"); e(f"s_lshl_b32 s65, s{S_TG}, 12"); e("s_add_u32 s64, s3, s65"); e(f"s_add_u32 s64, s64, 32768")
    e("v_add_u32 v3, s64, v10")
    e(f"s_sub_u32 s64, {73728 + 32768}, s3"); e("s_add_u32 s64, s64, s65"); e("v_add_u32 v4, s64, v10")
    e(f"s_lshl_b32 s64, s{S_TG}, 13"); e(f"s_lshl_b32 s65, s{S_UH}, 12"); e("s_add_u32 s64, s64, s65"); e("v_add_u32 v5, s64, v10"); e("v_add_u32 v6, 73728, v5")
    srd(16, 86, 87, 2097152)
    e("s_waitcnt vmcnt(0) lgkmcnt(0)")
    for a_, b_ in ((0, 2), (1, 3), (4, 6), (5, 7)): e(f"v_permlane32_swap_b32 v{V_XRES+a_}, v{V_XRES+b_}")
    e(f"s_cmp_eq_u32 s{S_UH}, 0"); e("s_cbranch_scc1 K2_x0")
    for r in range(4): e(f"ds_write_b128 v3, {vr(V_AY+4*r,4)} offset:{1024*r}")
    KP = 160
    for r in range(8): e(f"v_mov_b64 {vr(KP+2*r,2)}, {vr(V_AY+16+2*r,2)}")
    e("s_branch K2_x1")
    lab("K2_x0")
    for r in range(4): e(f"ds_write_b128 v3, {vr(V_AY+16+4*r,4)} offset:{1024*r}")
    for r in range(8): e(f"v_mov_b64 {vr(KP+2*r,2)}, {vr(V_AY+2*r,2)}")
    lab("K2_x1")
    V_AY = KP
    XU = 144
    for j in range(8):
        e(f"v_lshlrev_b32 v{XU+2*j}, 16, v{V_XRES+j}"); e(f"v_and_b32 v{XU+1+2*j}, s{S_MASK}, v{V_XRES+j}")
    e(f"s_mov_b32 s64, {fbits(-LOG2E)}")
    e("s_waitcnt lgkmcnt(0)")
    e("s_barrier")
    for r in range(4): e(f"ds_read_b128 {vr(32+4*r,4)}, v4 offset:{1024*r}")
    for k in range(2):
        for r in range(4): e(f"ds_read_b128 {vr(48+16*k+4*r,4)}, v5 offset:{16384*k + 1024*r}")
    e("s_waitcnt lgkmcnt(8)")
    for j in range(8): e(f"v_pk_add_f32 {vr(V_AY+2*j,2)}, {vr(V_AY+2*j,2)}, {vr(32+2*j,2)}")
    for k in range(2):
        for r in range(4): e(f"ds_read_b128 {vr(80+16*k+4*r,4)}, v6 offset:{16384*k + 1024*r}")
    for j in range(8): e(f"v_pk_mul_f32 {vr(32+2*j,2)}, {vr(V_AY+2*j,2)}, s[64:65] op_sel_hi:[1,0]")
    for j in range(16): e(f"v_exp_f32 v{32+j}, v{32+j}")
    e("s_waitcnt lgkmcnt(0)")
    for j in range(8): e(f"v_pk_add_f32 {vr(48+2*j,2)}, {vr(48+2*j,2)}, {vr(64+2*j,2)}")
    for j in range(8): e(f"v_pk_add_f32 {vr(32+2*j,2)}, {vr(32+2*j,2)}, 1.0 op_sel_hi:[1,0]")
    for j in range(8): e(f"v_pk_add_f32 {vr(80+2*j,2)}, {vr(80+2*j,2)}, {vr(96+2*j,2)}")
    for j in range(16): e(f"v_rcp_f32 v{32+j}, v{32+j}")
    for j in range(8): e(f"v_pk_add_f32 {vr(48+2*j,2)}, {vr(48+2*j,2)}, {vr(80+2*j,2)}")
    for j in range(8): e(f"v_pk_mul_f32 {vr(32+2*j,2)}, {vr(32+2*j,2)}, {vr(V_AY+2*j,2)}")
    for j in range(8): e(f"v_pk_fma_f32 {vr(32+2*j,2)}, {vr(32+2*j,2)}, {vr(48+2*j,2)}, {vr(XU+2*j,2)}")
    for j in range(8): e(f"v_cvt_pk_bf16_f32 v{64+j}, v{32+2*j}, v{33+2*j}")
    e("s_nop 1")
    for a_, b_ in ((0, 2), (1, 3), (4, 6), (5, 7)): e(f"v_permlane32_swap_b32 v{64+a_}, v{64+b_}")
    e(f"buffer_store_dwordx4 v[64:67], v{V_OUT}, s[16:19], s77 offen")
    e(f"buffer_store_dwordx4 v[68:71], v{V_OUT}, s[16:19], s77 offen offset:32")
    if "fixspan" in X:
        lab("K_fix")
        e("s_memrealtime s[96:97]"); e("s_waitcnt lgkmcnt(0)"); e("s_sub_u32 s96, s96, s94"); e(f"s_cmp_lt_u32 s96, {opt('fix','5000')}"); e("s_cbranch_scc1 K_fix")
    if STAMP:
        st.mark(); e("s_waitcnt vmcnt(0)"); st.mark()
        st.dump(S_WAVE, "K_END")
    lab("K_END")
    e("s_endpgm")

hdr = f"""; Fused block in one launch: phase 1 = LayerNorm + QKV/gate/up GEMM + phi/GEGLU epilogues + kv reduction,
; @launch grid=(256,1,1) block=(512,1,1) lds=163840
.amdgcn_target "amdgcn-amd-amdhsa--gfx950"
.text"""
kernel()
kd = f""".amdhsa_kernel {NAME}_kernel
  .amdhsa_next_free_vgpr 256
  .amdhsa_next_free_sgpr 102
  .amdhsa_accum_offset 256
  .amdhsa_group_segment_fixed_size 0
  .amdhsa_kernarg_size 80
  .amdhsa_user_sgpr_count 2
  .amdhsa_user_sgpr_kernarg_segment_ptr 1
  .amdhsa_system_sgpr_workgroup_id_x 1
.end_amdhsa_kernel"""
open(OUT, "w").write(hdr + "\n" + "\n".join(L) + '\n.section .rodata,"a"\n.p2align 6\n' + kd + "\n")
```

```python
import sys, struct
STAMP = "--stamp" in sys.argv
OUT = [a for a in sys.argv[1:] if not a.startswith("--")]
NAME = "recurrent_scan__linear_attn_block__glu_gated_geglu__prompt"
OUT = OUT[0] if OUT else f"cdna_kernels/{NAME}.s"
X = set(a[2:] for a in sys.argv if a.startswith("--"))
def opt(name, dflt):
    r = [a[len(name)+3:] for a in sys.argv if a.startswith('--' + name + '=')]
    return r[0] if r else dflt

L = []
def e(s): L.append("    " + s)
def lab(s): L.append(s + ":")
def vr(b, n): return f"v[{b}:{b+n-1}]"
def fbits(x): return "0x%08x" % struct.unpack("<I", struct.pack("<f", x))[0]

NKS = 118
KV_OFF = 0x800000
KV_BYTES = 32 * 1088
FLG_OFF = KV_OFF + KV_BYTES
FLG_BYTES = 4096
WS_USED = FLG_OFF + FLG_BYTES
STAMP_OFF = 0x8000000
LOG2E = 1.4426950408889634
SC = "sc0 sc1"
HSC = "" if "plainh" in X else SC

def srd(d, lo, hi, size):
    e(f"s_mov_b32 s{d}, s{lo}"); e(f"s_mov_b32 s{d+1}, s{hi}")
    e(f"s_mov_b32 s{d+2}, {size}"); e(f"s_mov_b32 s{d+3}, 0x00020000")

class Stamps:
    def __init__(self): self.n = 0
    def mark(self, i=None):
        if STAMP:
            k = self.n if i is None else i
            e("s_memtime s[98:99]"); e("s_memrealtime s[100:101]"); e("s_waitcnt lgkmcnt(0)")
            e(f"v_writelane_b32 v255, s98, {2*k}"); e(f"v_writelane_b32 v255, s100, {2*k+1}")
            if i is None: self.n += 1
    def dump(self, swave, label):
        if not STAMP: return
        e(f"s_cmp_lg_u32 s{swave}, {opt('sw', '0')}"); e(f"s_cbranch_scc1 {label}")
        srd(4, 38, 39, "0x10000000")
        e("s_lshl_b32 s3, s2, 7"); e(f"s_add_u32 s3, s3, {STAMP_OFF}")
        e("v_lshlrev_b32 v3, 2, v1"); e("s_mov_b64 exec, 0xffffffff")
        e(f"buffer_store_dword v255, v3, s[4:7], s3 offen")
        if "dbgspan" in X:
            e("v_lshlrev_b32 v3, 1, v1"); e("v_add_u32 v3, 6, v3"); e("s_mov_b32 exec_lo, 0x000aaaaa"); e("s_mov_b32 exec_hi, 0")
            e("buffer_atomic_umax v255, v3, s[24:27], 0 offen")
            e("v_not_b32 v4, v255"); e("s_mov_b64 exec, 2")
            e("buffer_atomic_umax v4, off, s[24:27], 0 offset:4")
st = Stamps()

XST = 16384; WBASE = 32768; SEGB = 18560; WST = 36992; KVP = 146432; LCNT = 144000; WOA = 38 * 2048
V_VW = 10
V_VX, V_XW, V_DV = 19, 88, 21
TAB = [4, 5, 0, 10, 6, 1, 11, 14, 7, 8, 2, 12, 9, 3, 13, 15]
V_NA = 22; V_ST = 30; V_UT = 40; V_PK = 72; V_XR = 96
V_XA, V_WA = 22, 26
V_SET = [32, 60]
V_ACC = 96
S_WAVE, S_TG, S_UH, S_MB, S_T, S_STR, S_U0, S_CNT = 40, 41, 42, 43, 44, 45, 46, 47
S_DMAW, S_KW, S_KS, S_HFO, S_Q, S_XI, S_MASK, S_ONES = 48, 49, 50, 51, 52, 53, 54, 55
S_RST, S_DST, S_TYPE, S_STR64, S_STR32, S_TMP, S_TMP2 = 56, 57, 58, 59, 60, 61, 62
S_RW, S_KWEND, S_RX, S_GX, S_XW = 72, 73, 63, 60, 79
S_MT, S_NT, S_R2, S_RY = 74, 75, 76, 91

def k1_dma():
    G = []
    for p in range(9):
        g = [f"s_add_u32 m0, s{S_DMAW}, {1024*p}"]
        g.append(f"s_add_u32 s{S_KS}, s{S_KW}, s{S_HFO}" if p in (0, 5) else "s_nop 0")
        g.append(f"buffer_load_dwordx4 v{V_VW+p}, s[8:11], s{S_KS} offen lds")
        G.append(g)
    G[-1] += [f"s_add_u32 s{S_KW}, s{S_KW}, s{S_STR64}", f"s_add_u32 s{S_DST}, s{S_DST}, 1",
              f"s_cmp_eq_u32 s{S_KW}, s{S_KWEND}", f"s_cselect_b32 s{S_KW}, 0, s{S_KW}",
              f"s_cmp_eq_u32 s{S_DST}, 3", f"s_cselect_b32 s{S_TMP}, {-2*WST & 0xffffffff}, s{S_TMP2}",
              f"s_cselect_b32 s{S_DST}, 0, s{S_DST}", f"s_add_u32 s{S_DMAW}, s{S_DMAW}, s{S_TMP}"]
    return G

def k1_reads(s_, p, var):
    b = V_SET[s_]
    if var == "S8":
        x = lambda f: f"ds_read_b128 {vr(b+4*f,4)}, v{V_XA} offset:{4096*f+256*p}"
        w = lambda a: [f"ds_read_b64_tr_b16 {vr(b+16+4*a+2*rd,2)}, v{V_WA} offset:{p*4608+1152*rd+SEGB*a}" for rd in range(2)]
        return [x(0)] + w(0) + w(1) + [x(1), x(2), x(3)]
    offs = [0, 32, 64, 96]
    if var == "N9a": offs.append(256)
    if var == "N9b": offs.append(128)
    def w(a): return [f"ds_read_b64_tr_b16 {vr(b+8+4*a,2)}, v{V_WA} offset:{p*4608+offs[a]}",
                      f"ds_read_b64_tr_b16 {vr(b+10+4*a,2)}, v{V_WA} offset:{p*4608+1152+offs[a]}"]
    r = [f"ds_read_b128 {vr(b,4)}, v{V_XA} offset:{256*p}"] + w(0) + [f"ds_read_b128 {vr(b+4,4)}, v{V_XA} offset:{4096+256*p}"]
    for a in range(1, len(offs)): r += w(a)
    return r

def mfma(d, a, b, c=None):
    return f"v_mfma_f32_32x32x16_bf16 {vr(d,16)}, {vr(a,4)}, {vr(b,4)}, " + (vr(d, 16) if c is None else c)

def k1_mfma(s_, var):
    b = V_SET[s_]
    m = []
    if var == "S8":
        return [mfma(V_ACC + 16 * (4 * a + f), b + 4 * f, b + 16 + 4 * a) for f in range(4) for a in range(2)]
    for a in range(4):
        for f in range(2):
            acc = V_ACC + 16 * (2 * a + f)
            W = b + 8 + 4 * a; X_ = b + 4 * f
            m.append(mfma(acc, X_, W) if var == "S8" else mfma(acc, W, X_))
    if var in ("N9a", "N9b"):
        m.append(mfma(V_ACC + 128, b + 24, b + (0 if var == "N9a" else 4)))
    return m

def k1_unpack(g):
    r = [f"s_set_gpr_idx_on s{S_XI}, gpr_idx(SRC1)", "s_nop 0"]
    for j in range(4 * g, 4 * g + 4):
        r.append(f"v_lshlrev_b32 v{V_UT+2*j}, 16, v{V_XR+j}")
        r.append(f"v_and_b32 v{V_UT+2*j+1}, s{S_MASK}, v{V_XR+j}")
    r.append("s_set_gpr_idx_off")
    return r
def k1_norm(g):
    a = V_NA + 2 * g; j0 = 4 * g
    return [f"v_fma_f32 v{V_UT+2*j0+k}, v{V_UT+2*j0+k}, v{a}, v{a+1}" for k in range(8)] + \
           [f"v_cvt_pk_bf16_f32 v{V_PK+j}, v{V_UT+2*j}, v{V_UT+2*j+1}" for j in range(j0, j0 + 4)]
def k1_xw(g):
    return [f"s_xor_b32 m0, s{S_XW}, {4096*g}", "s_nop 0"] + [f"ds_write_addtid_b32 v{V_PK+4*g+j} offset:{256*j}" for j in range(4)]
def k1_xadv():
    return [f"s_xor_b32 s{S_XW}, s{S_XW}, {XST}", f"s_add_u32 s{S_XI}, s{S_XI}, 16", f"s_and_b32 s{S_XI}, s{S_XI}, 127"]

def layout(body):
    n = len(body)
    for i, it in enumerate(body):
        if it[0] == 'm' and it[2]:
            cnt = 0; j = i; w = None
            while True:
                j = (j - 1) % n
                o = body[j]
                if o[0] == 'w0': break
                if o[0] == 'l':
                    if o[2] in it[2]: w = cnt; break
                    cnt += 1
                if j == i: break
            if w is not None: e(f"s_waitcnt lgkmcnt({min(w, 15)})")
        if it[1].endswith(":"): L.append(it[1])
        else: e(it[1])

def k1_cons_loop(var):
    def need(p):
        if var == "S8": return [[(p, 2)], [(p, 4)], [(p, 5)], [], [(p, 6)], [], [(p, 7)], []]
        return [[(p, 2)], [(p, 3)], [(p, 5)], [], [(p, 7)], [], [(p, 9)], [], [(p, 11)]]
    rs = {'a': [2, 2, 2, 2, 2, 2, 0, 0, 0], 'b': [2, 1, 1, 2, 1, 1, 2, 1, 1] if var in ('N9a', 'N9b') else [2, 1, 1, 1, 2, 1, 1, 1]}[opt('rs', 'a')]
    if var == "S8": rs = [2, 2, 1, 1, 1, 1, 0, 0]
    lab(f"K1_{var}")
    for x in k1_reads(0, 0, var): e(x)
    B = [('x', f"K1_{var}_loop:")]
    def stepx(s_, p, extra):
        mf = k1_mfma(s_, var); rd = k1_reads(s_ ^ 1, p + 1, var); ri = 0
        for i, m in enumerate(mf):
            B.append(('m', m, need(p)[i]))
            for _ in range(rs[i]):
                if ri < len(rd): B.append(('l', rd[ri], (p + 1, ri))); ri += 1
            for x in extra.get(i, []): B.append(('x', x))
    stepx(0, 0, {})
    stepx(1, 1, {6: [f"s_add_u32 s{S_RST}, s{S_RST}, 1", f"s_cmp_eq_u32 s{S_RST}, 3",
                     f"s_cselect_b32 s{S_TMP}, {-2*WST & 0xffffffff}, s{S_TMP2}", f"s_cselect_b32 s{S_RST}, 0, s{S_RST}"]})
    stepx(0, 2, {7: [f"v_xor_b32 v{V_XA}, {XST}, v{V_XA}", f"v_add_u32 v{V_WA}, s{S_TMP}, v{V_WA}",
                     f"s_add_u32 s{S_CNT}, s{S_CNT}, 1", f"s_cmp_lt_u32 s{S_CNT}, 8"]})
    m = k1_mfma(1, var); nd = need(3)
    B.append(('m', m[0], nd[0])); B.append(('m', m[1], nd[1]))
    B.append(('w0', "s_waitcnt vmcnt(0) lgkmcnt(0)"))
    B.append(('x', "s_barrier"))
    r0 = k1_reads(0, 0, var); ri = 0
    for i in range(2, len(m)):
        B.append(('m', m[i], []))
        for _ in range(3 if i < 4 else 2):
            if ri < len(r0): B.append(('l', r0[ri], (0, ri))); ri += 1
    assert ri == len(r0)
    B.append(('x', f"s_cbranch_scc1 K1_{var}_loop"))
    layout(B)
    e("s_branch K1_EPI")

def kernel():
    LA = {'2': 1, '4': 2, '8': 3}[opt('a', '4')]
    L.append(f".globl {NAME}_kernel"); L.append(".p2align 8"); L.append(f".type {NAME}_kernel,@function"); lab(f"{NAME}_kernel")
    if STAMP: e("v_mov_b32 v255, 0")
    if "fixspan" in X: e("s_memrealtime s[94:95]")
    st.mark()
    e("s_load_dwordx2 s[4:5], s[0:1], 0")
    e("s_load_dwordx4 s[28:31], s[0:1], 8")
    e("s_load_dwordx8 s[80:87], s[0:1], 32")
    e("s_load_dwordx4 s[36:39], s[0:1], 64")
    e("s_cmp_ge_u32 s2, 256"); e("s_cbranch_scc1 K_END")
    e(f"s_and_b32 s3, s2, {(1 << LA) - 1}"); e(f"s_bfe_u32 s64, s2, {((4-LA) << 16) | 3:#x}")
    e(f"s_lshl_b32 s3, s3, {4-LA}"); e(f"s_add_u32 s{S_MB}, s3, s64")
    e(f"s_lshr_b32 s65, s2, {7-LA}")
    e("v_bfe_u32 v3, v0, 3, 5"); e("v_and_b32 v4, 7, v0")
    e(f"s_and_b32 s{S_GX}, s65, {int(opt('rx','7')) & 3}"); e(f"s_and_b32 s{S_RX}, s65, {int(opt('rx','7')) & 4}")
    e("v_lshrrev_b32 v5, 5, v0"); e("v_and_b32 v5, 4, v5"); e("v_xor_b32 v5, v5, v4")
    e(f"v_lshlrev_b32 v{V_VX}, 10, v3"); e(f"v_lshl_add_u32 v{V_VX}, v5, 4, v{V_VX}")
    e(f"s_lshl2_add_u32 s70, s{S_MB}, s{S_GX}"); e("s_lshl_b32 s70, s70, 8"); e(f"s_or_b32 s70, s70, s{S_RX}"); e("s_lshl_b32 s70, s70, 7")
    e("s_mov_b32 s6, 0x200000"); e("s_mov_b32 s7, 0x00020000")
    e("v_cmp_gt_u32 vcc, 0x100, v0"); e("s_cbranch_vccnz K1_cpf")
    def xload(i):
        g, c = divmod(i, 8)
        if c % 4 == 0 and i: e(f"s_xor_b32 s71, s70, {32768*g + 128*c}")
        e(f"buffer_load_dwordx4 {vr(V_XR+16*c+4*g,4)}, v{V_VX}, s[4:7], {'s71' if i >= 4 else 's70'} offen offset:{128*(c%4)}")
    XD = int(opt('xd', '8'))
    e("s_waitcnt lgkmcnt(0)")
    if "emarks" in X: st.mark(10)
    X0 = int(opt('x0', '4'))
    for i in range(X0): xload(i)
    e("s_branch K1_setup")
    lab("K1_cpf")
    e("s_getpc_b64 s[66:67]")
    lab("K1_pc")
    e("s_and_b32 s3, s2, 0xf8")
    e("v_add_lshl_u32 v5, v0, s3, 7"); e(f"v_min_u32 v5, K_END-K1_pc, v5")
    e("v_cmp_gt_u32 vcc, 8, v0"); e("s_and_saveexec_b64 s[68:69], vcc"); e("s_cbranch_execz K1_nocpf")
    e("global_load_dword v28, v5, s[66:67]")
    lab("K1_nocpf")
    e("s_mov_b64 exec, -1")
    lab("K1_setup")
    e("v_lshrrev_b32 v2, 6, v0"); e("v_and_b32 v1, 63, v0")
    e(f"v_readfirstlane_b32 s{S_WAVE}, v2")
    e(f"s_bfe_u32 s3, s2, {((3-LA) << 16) | LA:#x}" if LA < 3 else "s_mov_b32 s3, 0"); e(f"s_lshl_b32 s3, s3, {LA+1}"); e("s_add_u32 s3, s3, s65")
    e(f"s_lshl_b32 s{S_RW}, s2, {3-LA}"); e(f"s_and_b32 s{S_RW}, s{S_RW}, {7 if opt('xr','1')=='1' else 0}")
    e("s_lshl_b32 s3, s3, 2")
    tv = sum(t << (4 * i) for i, t in enumerate(TAB))
    e(f"s_mov_b32 s64, {tv & 0xffffffff:#x}"); e(f"s_mov_b32 s65, {tv >> 32:#x}")
    e("s_lshr_b64 s[64:65], s[64:65], s3"); e(f"s_and_b32 s{S_T}, s64, 15")
    e(f"s_and_b32 s{S_Q}, s{S_WAVE}, 3"); e(f"s_and_b32 s{S_TG}, s{S_WAVE}, 1"); e(f"s_lshr_b32 s{S_UH}, s{S_Q}, 1")
    e(f"s_lshl_b32 s{S_U0}, s{S_T}, 3")
    e(f"s_mul_i32 s3, s{S_T}, 9"); e("s_sub_u32 s3, s3, 4")
    e(f"s_cmp_ge_u32 s{S_T}, 4"); e(f"s_cselect_b32 s{S_U0}, s3, s{S_U0}"); e(f"s_cselect_b32 s{S_TYPE}, 1, 0")
    e(f"s_lshl_b32 s64, s{S_U0}, 5")
    e(f"s_lshl2_add_u32 s3, s{S_TG}, s{S_T}"); e("s_sub_u32 s3, s3, 6"); e("s_lshl_b32 s3, s3, 8")
    e(f"s_cmp_ge_u32 s{S_T}, 10"); e("s_cselect_b32 s64, s3, s64")
    e(f"s_cselect_b32 s{S_TYPE}, 2, s{S_TYPE}"); e(f"s_movk_i32 s3, 2752"); e(f"s_cselect_b32 s{S_STR}, 3072, s3")
    e(f"s_lshl1_add_u32 s3, s{S_T}, s{S_TG}"); e("s_sub_u32 s3, s3, 28"); e("s_lshl_b32 s3, s3, 8")
    e(f"s_lshl_b32 s67, s{S_T}, 4"); e(f"s_sub_u32 s67, s67, {14*16-86}")
    e(f"s_cmp_ge_u32 s{S_T}, 14"); e("s_cselect_b32 s64, s3, s64")
    e(f"s_cselect_b32 s{S_TYPE}, 3, s{S_TYPE}"); e(f"s_cselect_b32 s{S_U0}, s67, s{S_U0}")
    e(f"s_lshl_b32 s{S_STR64}, s{S_STR}, 6")
    e(f"s_cmp_eq_u32 s{S_TYPE}, 1"); e("s_cselect_b32 s66, 17, 15")
    if "emarks" in X: st.mark(11)
    e("s_movk_i32 s67, 3641"); e("s_movk_i32 s68, 0x13a")
    for p in range(9):
        src = "v1" if p == 0 else "v6"
        if p: e(f"v_add_u32 v6, 64, {'v1' if p == 1 else 'v6'}")
        e(f"v_mul_u32_u24 v5, s67, {src}"); e("v_lshrrev_b32 v5, 16, v5")
        e("v_mul_u32_u24 v7, 18, v5"); e(f"v_sub_u32 v7, {src}, v7"); e("v_min_u32 v7, s66, v7")
        e("v_mul_u32_u24 v5, 0x821, v5"); e("v_bfe_u32 v5, v5, 3, 12"); e("v_and_b32 v5, s68, v5")
        e("v_mul_u32_u24 v5, 0x101, v5"); e("v_bfe_u32 v5, v5, 8, 6")
        e(f"v_mul_u32_u24 v5, s{S_STR}, v5"); e(f"v_lshl_add_u32 v{V_VW+p}, v7, 4, v5")
    e("s_waitcnt lgkmcnt(0)")
    e(f"s_cmp_eq_u32 s{S_TG}, 1")
    e("s_cselect_b64 s[8:9], s[82:83], s[80:81]"); e(f"s_cselect_b32 s{S_DMAW}, {SEGB}, 0")
    e(f"s_cmp_ge_u32 s{S_TYPE}, 2")
    e("s_cselect_b64 s[8:9], s[28:29], s[8:9]")
    e(f"s_lshl_b32 s{S_KWEND}, s{S_STR64}, 3")
    e("s_add_u32 s8, s8, s64"); e("s_addc_u32 s9, s9, 0"); e(f"s_sub_u32 s10, s{S_KWEND}, s64"); e("s_mov_b32 s11, 0x00020000")
    e(f"s_mul_i32 s{S_HFO}, s{S_UH}, s{S_STR64}"); e(f"s_lshr_b32 s{S_HFO}, s{S_HFO}, 4")
    e(f"s_mul_i32 s3, s{S_UH}, 9216"); e(f"s_add_u32 s{S_DMAW}, s{S_DMAW}, s3"); e(f"s_add_u32 s{S_DMAW}, s{S_DMAW}, {WBASE}")
    e(f"s_mov_b32 s{S_TMP2}, {WST}"); e(f"s_mov_b32 s{S_CNT}, 0")
    e(f"s_mul_i32 s{S_KW}, s{S_RW}, s{S_STR64}"); e(f"s_mov_b32 s{S_DST}, 0")
    e("s_bfe_u32 s3, s2, 0x20003"); e(f"s_cmp_eq_u32 s3, s{S_WAVE}"); e("s_cselect_b32 s78, 1, 0")
    e("s_cbranch_scc0 K1_notlead")
    lab("K1_w0")
    for g in k1_dma():
        for x in g: e(x)
    e("s_cmp_eq_u32 s78, 0"); e("s_cbranch_scc1 K1_w0done")
    lab("K1_notlead")
    e(f"s_mov_b32 s{S_MASK}, 0xffff0000"); e(f"s_mov_b32 s{S_ONES}, 0x3f803f80")
    srd(20, 38, 39, WS_USED); srd(24, 36, 37, 256)
    e("s_and_b32 s3, s2, 7"); e("s_bfe_u32 s66, s2, 0x20003"); e(f"s_lshl2_add_u32 s{S_MT}, s3, s66"); e(f"s_lshr_b32 s{S_NT}, s2, 5")
    e(f"s_mul_i32 s3, s66, {opt('rym','11')}")
    e(f"s_and_b32 s66, s{S_NT}, {opt('rg','1')}")
    e(f"s_mul_i32 s{S_R2}, s66, {8 // (int(opt('rg','1')) + 1)}"); e(f"s_mul_i32 s{S_RY}, s66, {44 // (int(opt('rg','1')) + 1)}"); e(f"s_add_u32 s{S_RY}, s{S_RY}, s3")
    if "emarks" in X: st.mark(12)
    e(f"s_cmp_lt_u32 s{S_WAVE}, 4"); e("s_cbranch_scc1 K1_CONS")
    e("s_setprio 3")
    def capture(fn):
        n0 = len(L); fn(); r = L[n0:]; del L[n0:]; return r
    e(f"s_add_u32 s3, s{S_RW}, 1"); e("s_and_b32 s3, s3, 7"); e(f"s_mul_i32 s{S_KW}, s3, s{S_STR64}")
    e(f"s_mov_b32 s{S_DST}, 1"); e(f"s_add_u32 s{S_DMAW}, s{S_DMAW}, {WST}")
    e(f"s_lshl2_add_u32 s{S_XW}, s{S_GX}, s{S_Q}"); e(f"s_lshl_b32 s{S_XW}, s{S_XW}, 10")
    e(f"s_sub_u32 s{S_XI}, s{S_RW}, s{S_RX}"); e(f"s_and_b32 s{S_XI}, s{S_XI}, 7"); e(f"s_lshl_b32 s{S_XI}, s{S_XI}, 4")
    e("v_lshrrev_b32 v5, 3, v1"); e("v_bfe_u32 v6, v1, 4, 1"); e("v_lshlrev_b32 v6, 2, v6"); e("v_xor_b32 v6, v6, v4")
    e("v_lshlrev_b32 v5, 10, v5"); e(f"v_lshl_add_u32 v{V_DV}, v6, 4, v5")
    for r in range(4): e(f"v_mov_b64 {vr(V_ST+2*r,2)}, 0")
    e(f"s_mov_b32 s68, {fbits(1/512)}"); e(f"s_mov_b32 s69, {fbits(1e-5)}")
    WB = int(opt('wb', '24')); WB2 = int(opt('wb2', '32'))
    G4 = range(4)
    def fin(g):
        m, q = V_ST + 2 * g, V_ST + 2 * g + 1
        c = []
        for dpp in ("quad_perm:[1,0,3,2]", "quad_perm:[2,3,0,1]", "row_half_mirror"):
            c.append([f"v_add_f32_dpp v{r}, v{r}, v{r} {dpp} row_mask:0xf bank_mask:0xf" for r in (m, q)])
        c += [[f"v_mul_f32 v{m}, s68, v{m}", f"v_mul_f32 v{q}, s68, v{q}", f"v_fma_f32 v{q}, -v{m}, v{m}, v{q}", f"v_max_f32 v{q}, 0, v{q}",
               f"v_cvt_pk_bf16_f32 v{q}, v{m}, v{q}", f"v_lshlrev_b32 v{m}, 16, v{q}", f"v_and_b32 v{q}, s{S_MASK}, v{q}",
               f"v_add_f32 v{q}, s69, v{q}", f"v_cvt_pk_bf16_f32 v{q}, v{q}, v{q}", f"v_and_b32 v{q}, s{S_MASK}, v{q}", f"v_sqrt_f32 v{q}, v{q}"],
              [f"v_cvt_pk_bf16_f32 v{q}, v{q}, v{q}", f"v_and_b32 v{q}, s{S_MASK}, v{q}", f"v_rcp_f32 v{V_NA+2*g}, v{q}"],
              [f"v_mul_f32_e64 v{V_NA+2*g+1}, -v{m}, v{V_NA+2*g}"]]
        return c
    def mvw(gs):
        r = [f"s_set_gpr_idx_on s{S_XI}, gpr_idx(SRC0)", "s_nop 0"]
        for g in gs: r += [f"v_mov_b32 v{V_PK+4*g+h}, v{V_XR+4*g+h}" for h in range(4)]
        return r + ["s_set_gpr_idx_off"]
    def pre_u(g, c):
        r = []
        for j in range(4):
            x = V_XR + 16 * c + 4 * g + j
            r += [f"v_lshlrev_b32 v{V_UT+2*j}, 16, v{x}", f"v_and_b32 v{V_UT+2*j+1}, s{S_MASK}, v{x}"]
        return r
    def pre_n(g, c):
        a_ = V_NA + 2 * g
        return [f"v_pk_fma_f32 {vr(V_UT+2*j,2)}, {vr(V_UT+2*j,2)}, {vr(a_,2)}, {vr(a_,2)} op_sel:[0,0,1] op_sel_hi:[1,0,1]" for j in range(4)] + \
               [f"v_cvt_pk_bf16_f32 v{V_XR+16*c+4*g+j}, v{V_UT+2*j}, v{V_UT+2*j+1}" for j in range(4)]
    def chain(g):
        r = []
        for k, pc in enumerate(fin(g)):
            if k: r.append("s_nop 0")
            r += pc
        return r
    if "emarks" in X: st.mark(13)
    NPRE = int(opt('npre', '0'))
    pend = []
    nis = X0
    for i in range(32):
        if pend:
            for x in pend.pop(0): e(x)
        e(f"s_waitcnt vmcnt({nis - 1 - i})")
        for _ in range(2):
            if nis < 32 and nis - i <= XD:
                xload(nis); nis += 1
                if nis == WB: e("s_barrier")
                if nis == WB2: e("s_barrier")
        if "pmarks" in X and i in (0, 8, 16, 31): st.mark({0: 1, 8: 2, 16: 3, 31: 4}[i])
        g, c = divmod(i, 8)
        for j in range(4):
            r = V_XR + 16 * c + 4 * g + j
            e(f"v_dot2c_f32_bf16 v{V_ST+2*g}, s{S_ONES}, v{r}")
            e(f"v_dot2c_f32_bf16 v{V_ST+2*g+1}, v{r}, v{r}")
        if c == 7 and g < NPRE:
            assert not pend
            pend = [pre_u(g, cc) + (chain(g) if cc == 0 else []) + pre_n(g, cc) for cc in range(8)]
            pend[7] = pend[7] + mvw([g]) + k1_xw(g)
        elif c == 7 and g < 3:
            pend = [k1_unpack(g)] + fin(g); pend[-1] = pend[-1] + k1_norm(g) + k1_xw(g)
    for x in k1_unpack(3) + chain(3) + k1_norm(3) + k1_xw(3): e(x)
    for x in k1_xadv(): e(x)
    e("s_setprio 0")
    e("s_waitcnt lgkmcnt(0)")
    if "pmarks" in X: st.mark(5)
    e("s_barrier")
    if "pmarks" in X: st.mark(6)
    D = k1_dma()
    for g in D[5:]:
        for x in g: e(x)
    if "lmarks" in X:
        e("s_memtime s[98:99]"); e("s_waitcnt lgkmcnt(0)"); e("s_mov_b32 s97, s98"); e("s_mov_b32 s94, 0"); e("s_mov_b32 s95, 0"); e("s_mov_b32 s96, 0")
    lab("K1_PROD_loop")
    def weave(mem):
        N = [k1_norm(g) for g in range(4)]
        mem = list(mem)
        def dma(v):
            if not mem:
                for x in v: e(x)
                return
            pre, op = mem.pop(0)
            for x in pre: e(x)
            if v: e(v[0])
            elif len(pre) < 2 or "m0" in pre[-1]: e("s_nop 0")
            e(op)
            for x in v[1:]: e(x)
        for g in range(4):
            dma([])
            if g < NPRE:
                for x in mvw([g]): e(x)
                dma([])
            else:
                for x in k1_unpack(g): e(x)
                dma(N[g])
            for x in k1_xw(g): e(x)
        dma(k1_xadv())
        assert not mem
    weave([([x for x in g[:2] if x != "s_nop 0"], g[2]) for g in D])
    for x in D[8][3:]: e(x)
    e(f"s_add_u32 s{S_CNT}, s{S_CNT}, 1")
    def acc(k):
        if "lmarks" in X:
            e("s_memtime s[98:99]"); e("s_waitcnt lgkmcnt(0)"); e("s_sub_u32 s3, s98, s97"); e("s_mov_b32 s97, s98"); e(f"s_add_u32 s{k}, s{k}, s3")
    acc(94)
    e("s_waitcnt vmcnt(9) lgkmcnt(0)")
    acc(95)
    e("s_barrier")
    acc(96)
    e(f"s_cmp_lt_u32 s{S_CNT}, 6")
    e("s_cbranch_scc1 K1_PROD_loop")
    if "lmarks" in X:
        for k in range(3): e(f"v_writelane_b32 v255, s{94+k}, {24+k}")
    V_KF, V_PO, V_O, V_PQ, V_WO, V_AS = 28, 36, 44, 76, 124, 188
    e(f"s_lshl_b32 s3, s{S_NT}, 7")
    e("s_add_u32 s12, s30, s3"); e("s_addc_u32 s13, s31, 0"); e(f"s_sub_u32 s14, {512*1024}, s3"); e("s_mov_b32 s15, 0x00020000")
    e("s_add_u32 s16, s84, s3"); e("s_addc_u32 s17, s85, 0"); e(f"s_sub_u32 s18, {1376*1024}, s3"); e("s_mov_b32 s19, 0x00020000")
    e(f"s_lshl_b32 s64, s{S_Q}, 10")
    e(f"s_lshl_b32 s65, s{S_Q}, 17")
    e(f"s_lshl_b32 s67, s{S_R2}, 14")
    e(f"s_add_u32 s68, s{S_RY}, s{S_UH}"); e("s_lshl_b32 s68, s68, 14"); e(f"s_lshl_b32 s3, s{S_TG}, 13"); e("s_add_u32 s68, s68, s3")
    def wo_batch():
        for p in range(16):
            e(f"s_add_u32 m0, s64, {(0 if p < 8 else 36*2048) + 4096*(p%8)}")
            e("s_add_u32 s66, s65, s67" if p % 2 == 0 else "s_add_u32 s66, s66, 8192")
            e(f"buffer_load_dwordx4 v{V_DV}, s[12:15], s66 offen lds")
            if p % 2: e("s_add_u32 s67, s67, 16384"); e("s_and_b32 s67, s67, 0x1ffff")
    def rounds(sig, pi, n):
        for i in range(n):
            e(f"s_add_u32 s66, s68, {(pi + 2*i) * 16384}")
            if sig + 2*i == 26:
                e(f"s_lshl_b32 s69, s{S_UH}, 18"); e("s_add_u32 s66, s66, s69")
            e(f"s_sub_u32 s69, s66, {86*16384}")
            e(f"s_cselect_b32 s66, s66, s69")
            e(f"s_add_u32 m0, s64, {(sig + 2*i) * 2048}")
            e("s_nop 0")
            e(f"buffer_load_dwordx4 v{V_DV}, s[16:19], s66 offen lds")
    def early(sig, n):
        for i in range(n):
            sg = sig + 2 * i
            rounds(sg, sg + 8 if sg < 27 else sg + 24, 1)
    def lsig(off):
        e("s_mov_b64 exec, 1"); e(f"ds_add_u32 v27, v7 offset:{off}"); e("s_mov_b64 exec, -1")
    def lwait(off, n, tag, slp=0):
        lab(f"K_lw{tag}")
        if slp: e(f"s_sleep {slp}")
        e(f"ds_read_b32 v6, v27 offset:{off}"); e("s_waitcnt lgkmcnt(0)")
        e("v_readfirstlane_b32 s66, v6"); e(f"s_cmp_lt_u32 s66, {n}"); e(f"s_cbranch_scc1 K_lw{tag}")
    def tr_lane(dst):
        e("v_lshrrev_b32 v3, 5, v1"); e("v_bfe_u32 v4, v1, 2, 2"); e("v_lshl_add_u32 v3, v3, 2, v4"); e("v_lshlrev_b32 v3, 7, v3")
        e("v_bfe_u32 v4, v1, 3, 1"); e("v_lshl_add_u32 v3, v4, 6, v3")
        e("v_bfe_u32 v4, v1, 4, 1"); e("v_lshl_add_u32 v3, v4, 5, v3")
        e("v_and_b32 v4, 3, v1"); e(f"v_lshl_add_u32 v{dst}, v4, 3, v3")
    def wo_read(h0):
        for i in range(4):
            for nf in range(2):
                for rd in range(2):
                    e(f"ds_read_b64_tr_b16 {vr(V_WO+8*(h0+i)+4*nf+2*rd,2)}, v{12+nf} offset:{i*8192 + rd*4096}")
        e("s_waitcnt lgkmcnt(0)")
    e(f"buffer_load_dword v2, off, s[24:27], 0 {SC}")
    e("s_lshr_b32 s88, s2, 3"); e(f"s_lshl2_add_u32 s88, s88, s{S_Q}"); e("s_lshl_b32 s3, s2, 4"); e("s_add_u32 s88, s88, s3")
    e("s_and_b32 s88, s88, 127"); e("s_lshl_b32 s88, s88, 12")
    e("s_mov_b64 s[8:9], s[30:31]"); e("s_add_u32 s10, s88, 4096")
    e("v_lshlrev_b32 v20, 7, v1")
    e("buffer_load_dword v20, v20, s[8:11], s88 offen")
    R5 = [(54 + 2*i, 2*i) for i in range(4)] + [(62 + 2*i, 43 + 2*i) for i in range(4)]
    RR = [capture(lambda: rounds(sg, pi, 1)) for sg, pi in R5]
    weave([([x.strip() for x in r[:4]], r[5].strip()) for r in RR])
    tr_lane(12)
    e("v_add_u32 v12, s64, v12"); e("v_xor_b32 v13, 64, v12")
    e("s_waitcnt vmcnt(9) lgkmcnt(0)")
    e("s_barrier")
    e("s_mov_b32 s90, 0")
    lab("K1_zpoll")
    e("v_readfirstlane_b32 s66, v2")
    e("s_cmp_lg_u32 s66, 0"); e("s_cbranch_scc1 K1_zdone")
    e("s_sleep 4")
    e(f"buffer_load_dword v2, off, s[24:27], 0 {SC}")
    e("s_add_u32 s90, s90, 1"); e("s_cmp_lt_u32 s90, 0x100000")
    e("s_waitcnt vmcnt(0)")
    e("s_cbranch_scc1 K1_zpoll")
    lab("K1_zdone")
    early(16, 9)
    e("s_barrier")
    e(f"v_mov_b32 v27, {LCNT}"); e("v_mov_b32 v7, 1")
    NE = int(opt('ne', '0'))
    wo_batch()
    early(34, 1); early(52, 1)
    e("s_waitcnt vmcnt(10)")
    lsig(4)
    wo_read(0)
    e(f"v_add_u32 v12, {36*2048}, v12"); e(f"v_add_u32 v13, {36*2048}, v13")
    early(0, NE)
    e(f"s_waitcnt vmcnt({2 + NE})")
    wo_read(4)
    e(f"v_lshlrev_b32 v10, 4, v1")
    e(f"s_mul_i32 s3, s{S_Q}, 8704"); e(f"s_add_u32 s3, s3, {KV_OFF}")
    e("s_add_u32 s4, s38, s3"); e("s_addc_u32 s5, s39, 0"); e("s_movk_i32 s6, 8704"); e("s_mov_b32 s7, 0x00020000")
    e(f"s_mul_i32 s3, s{S_MT}, {2*NKS}"); e(f"s_lshl_b32 s65, s{S_Q}, 3"); e("s_add_u32 s3, s3, s65"); e("s_add_u32 s3, s3, 86"); e("s_lshl_b32 s70, s3, 10")
    e(f"s_mul_i32 s3, s{S_Q}, 4352"); e(f"s_add_u32 s3, s3, {KVP}")
    e("v_lshlrev_b32 v11, 3, v1"); e("v_add_u32 v11, s3, v11")
    e("v_and_b32 v3, 31, v1"); e("v_max_u32 v3, 15, v3"); e("v_lshlrev_b32 v3, 5, v3"); e("v_lshrrev_b32 v4, 5, v1")
    e("v_lshl_add_u32 v3, v4, 4, v3"); e(f"s_sub_u32 s3, s3, {15*32}"); e("v_add_u32 v14, s3, v3")
    e(f"s_lshr_b32 s71, s{S_MT}, 1"); e("s_lshl_b32 s71, s71, 7"); e(f"s_add_u32 s71, s71, {FLG_OFF + 2048}")
    e(f"s_mov_b32 s89, {fbits(1e-6)}")
    e(f"s_lshl_b32 s67, s{S_R2}, 10"); e(f"s_mul_i32 s88, s{S_R2}, 544")
    e("s_mov_b32 s90, 0"); e("v_lshlrev_b32 v4, 2, v1")
    e("s_barrier")
    if "now2" not in X:
        early(36, 8); early(2 * NE, 8 - NE)
        rounds(54, 35, 4); rounds(62, 78, 4)
    e("s_movk_i32 s65, 4096"); e("s_movk_i32 s69, 8192")
    e("s_waitcnt vmcnt(8)")
    lsig(12)
    def pq(i):
        e("s_add_u32 s66, s70, s67")
        e(f"buffer_load_dwordx4 {vr(V_PQ+8*(i%6),4)}, v10, s[20:23], s66 offen {SC}")
        e(f"s_add_u32 s66, s66, {NKS*1024}")
        e(f"buffer_load_dwordx4 {vr(V_PQ+8*(i%6)+4,4)}, v10, s[20:23], s66 offen {SC}")
        e("s_add_u32 s67, s67, 1024"); e("s_and_b32 s67, s67, 0x1fff")
    def kvld():
        for i in range(9):
            e(f"buffer_load_dwordx4 {vr(V_AS+4*i,4)}, v10, s[4:7], {['0','s65','s69'][i//4]} offen offset:{1024*(i%4)} {SC}")
    def kvcv(younger):
        for i in range(9):
            e(f"s_waitcnt vmcnt({younger + 8 - i})")
            e(f"v_cvt_pk_bf16_f32 v{V_AS+4*i}, v{V_AS+4*i}, v{V_AS+4*i+1}")
            e(f"v_cvt_pk_bf16_f32 v{V_AS+4*i+1}, v{V_AS+4*i+2}, v{V_AS+4*i+3}")
            if i == 8: e("s_mov_b64 exec, 0xffffffff")
            e(f"ds_write_b64 v11, {vr(V_AS+4*i,2)} offset:{512*i}")
        e("s_mov_b64 exec, -1")
    e("s_waitcnt vmcnt(0)")
    lsig(8)
    e(f"s_cmp_eq_u32 s{S_WAVE}, 4"); e("s_cbranch_scc0 K2_swait")
    e("s_mov_b64 exec, 7")
    lab("K2_spoll")
    e(f"buffer_load_dword v2, v4, s[20:23], s71 offen {SC}")
    e("s_add_u32 s90, s90, 1")
    e("s_waitcnt vmcnt(0)")
    e("v_cmp_ne_u32 vcc, 0, v2")
    e("s_cmp_eq_u32 vcc_lo, 7"); e("s_cbranch_scc1 K2_sset")
    e(f"s_sleep {opt('slp','3')}")
    e("s_cmp_lt_u32 s90, 0x100000"); e("s_cbranch_scc1 K2_spoll")
    lab("K2_sset")
    lsig(20)
    lab("K2_swait")
    lwait(20, 1, "s", 1)
    st.mark(7)
    e(f"s_setprio {opt('sp','1')}")
    kvld()
    pq(0); pq(1); pq(2)
    kvcv(6)
    e("s_waitcnt vmcnt(4)")
    def kf(i):
        e("v_add_u32 v3, s88, v14")
        e("s_add_u32 s88, s88, 544"); e(f"s_cmp_eq_u32 s88, {8*544}"); e("s_cselect_b32 s88, 0, s88")
        e(f"ds_read_b128 {vr(V_KF+4*(i%2),4)}, v3")
    def omf(k): return mfma(V_O + 16 * (k % 2), V_KF + 4 * ((k // 2) % 2), V_PQ + 8 * ((k // 2) % 6) + 4 * (k % 2), "0")
    def smf(k, nf): return mfma(V_AS + 32 * (k % 2) + 16 * nf, V_WO + 8 * (k // 2) + 4 * nf, V_PO + 4 * (k % 2), "0" if k < 2 else None)
    def valu(k):
        o = V_O + 16 * (k % 2)
        return [f"v_add_f32 v{o}, s89, v{o}", f"v_rcp_f32 v{o}, v{o}", "s_nop 0"] + \
               [f"v_mul_f32 v{o+8+j}, v{o}, v{o+8+j}" for j in range(8)] + \
               [f"v_cvt_pk_bf16_f32 v{V_PO+4*(k%2)+j}, v{o+8+2*j}, v{o+9+2*j}" for j in range(4)]
    kf(0); kf(1)
    e("s_waitcnt lgkmcnt(1)")
    e(omf(0)); e(omf(1))
    pq(3)
    e("s_nop 4")
    for x in valu(0): e(x)
    for k in range(16):
        v = valu(k + 1) if k < 15 else []
        if k + 2 < 16:
            if k % 2 == 0:
                h = k // 2 + 1
                vm = f" vmcnt({2 * min(2, 7 - h)})"
                e("s_waitcnt lgkmcnt(0)" + vm)
            e(omf(k + 2))
            if k % 2 == 1 and k // 2 + 2 < 8: kf(k // 2 + 2)
            if k % 2 == 1 and k // 2 + 4 < 8: pq(k // 2 + 4)
        else: e("s_nop 0")
        for x in v[:4] if v else ["s_nop 0"]: e(x)
        e(smf(k, 0))
        for x in v[4:10]: e(x)
        e(smf(k, 1))
        for x in v[10:]: e(x)
    e(f"s_mul_i32 s3, s{S_UH}, {27*2048}"); e(f"s_lshl_b32 s65, s{S_TG}, 14"); e("s_add_u32 s3, s3, s65"); e("v_add_u32 v3, s3, v10")
    st.mark(8)
    e("s_barrier")
    e("s_nop 4")
    for r in range(16): e(f"ds_write_b128 v3, {vr(V_AS+4*r,4)} offset:{1024*r}")
    e("s_waitcnt lgkmcnt(0)")
    e("s_barrier")
    if STAMP:
        st.mark(9); st.dump(S_WAVE, "K_END")
    e("s_endpgm")
    lab("K1_CONS")
    e("s_mov_b64 s[92:93], s[4:5]")
    e(f"s_lshl2_add_u32 s3, s2, s{S_WAVE}"); e("s_cmp_eq_u32 s3, 1"); e("s_cbranch_scc0 K1_nozero")
    for j in range(4): e(f"v_mov_b32 v{4+j}, 0")
    e("v_lshlrev_b32 v3, 4, v1")
    e(f"s_mov_b32 s3, {KV_OFF}")
    lab("K1_zloop")
    for j in range(4): e(f"buffer_store_dwordx4 v[4:7], v3, s[20:23], s3 offen offset:{1024*j} {SC}")
    e("s_add_u32 s3, s3, 4096"); e(f"s_cmp_lt_u32 s3, {WS_USED}"); e("s_cbranch_scc1 K1_zloop")
    e("v_mov_b32 v2, 1")
    e("s_waitcnt vmcnt(0)")
    e("s_mov_b64 exec, 1")
    e(f"buffer_store_dword v2, off, s[24:27], 0 {SC}")
    e("s_mov_b64 exec, -1")
    lab("K1_nozero")
    e("v_and_b32 v3, 31, v1"); e("v_lshrrev_b32 v4, 5, v1")
    e("v_bfe_u32 v5, v3, 4, 1"); e("v_xor_b32 v5, v5, v4")
    e(f"s_lshl_b32 s3, s{S_TG}, 13"); e(f"s_cmp_eq_u32 s{S_TYPE}, 2"); e("s_cselect_b32 s3, 0, s3")
    e("v_lshrrev_b32 v6, 3, v3"); e("v_lshl_add_u32 v6, v6, 10, s3"); e("v_and_b32 v3, 7, v3"); e("v_lshl_add_u32 v6, v3, 5, v6")
    e(f"v_lshl_add_u32 v{V_XA}, v5, 4, v6")
    e(f"s_cmp_eq_u32 s{S_TYPE}, 2"); e(f"s_movk_i32 s3, {SEGB}"); e("s_cselect_b32 s3, 128, s3"); e("s_cselect_b32 s66, 5, 7"); e(f"s_cselect_b32 s67, s{S_Q}, s{S_UH}")
    e("v_bfe_u32 v3, v1, 4, 1"); e(f"v_mul_u32_u24 v3, s3, v3")
    e("v_bfe_u32 v5, v1, 2, 2"); e("v_lshl_add_u32 v5, v4, 3, v5"); e("v_mul_u32_u24 v5, 288, v5")
    e("v_and_b32 v6, 3, v1"); e("v_lshlrev_b32 v6, 3, v6")
    e(f"s_lshl_b32 s3, s67, s66"); e(f"s_add_u32 s3, s3, {WBASE}")
    e(f"v_add3_u32 v{V_WA}, v3, v5, v6"); e(f"v_add_u32 v{V_WA}, s3, v{V_WA}")
    e("v_mov_b64 v[32:33], 0"); e("v_mov_b64 v[34:35], 0"); e("s_nop 1")
    for r in range(9): e(mfma(V_ACC + 16 * r, 32, 32, "0"))
    e(f"s_mov_b32 s{S_RST}, 0")
    e(f"v_mov_b32 v27, {LCNT}"); e(f"ds_write_b128 v27, v[32:35]"); e(f"ds_write_b128 v27, v[32:35] offset:16")
    e("s_barrier")
    st.mark()
    e("s_cmp_eq_u32 s78, 0"); e("s_cbranch_scc1 K1_w0")
    lab("K1_w0done")
    e("s_barrier")
    for g in k1_dma()[:5]:
        for x in g: e(x)
    e("s_waitcnt vmcnt(5)")
    e("s_barrier")
    st.mark()
    e("s_setprio 1")
    e(f"s_cmp_eq_u32 s{S_TYPE}, 2"); e("s_cbranch_scc1 K1_S8")
    e(f"s_cmp_eq_u32 s{S_TYPE}, 1"); e("s_cbranch_scc0 K1_N8")
    e(f"s_cmp_eq_u32 s{S_UH}, 1"); e("s_cbranch_scc1 K1_N9b")
    for var in ("N9a", "N9b", "N8", "S8"): k1_cons_loop(var)
    lab("K1_EPI")
    st.mark()
    e("s_waitcnt lgkmcnt(0)")
    e("v_lshlrev_b32 v10, 4, v1")
    e(f"s_lshl_b32 s3, s{S_MB}, 2"); e(f"s_lshl_b32 s64, s{S_TG}, 1"); e("s_add_u32 s3, s3, s64")
    e(f"s_mul_i32 s64, s3, {NKS}"); e(f"s_add_u32 s64, s64, s{S_U0}")
    e(f"s_add_u32 s66, s3, s{S_UH}"); e(f"s_mul_i32 s66, s66, {NKS}"); e(f"s_add_u32 s66, s66, s{S_U0}"); e("s_add_u32 s66, s66, 8"); e("s_lshl_b32 s66, s66, 10")
    e(f"s_lshl_b32 s3, s{S_UH}, 2"); e("s_add_u32 s64, s64, s3"); e("s_lshl_b32 s64, s64, 10")
    e(f"s_add_u32 s65, s64, {NKS*1024}")
    e(f"s_cmp_eq_u32 s{S_TYPE}, 2"); e("s_cbranch_scc1 K1_EPI_KV")
    e(f"s_cmp_eq_u32 s{S_TYPE}, 3"); e("s_cbranch_scc1 K1_EPI_Q")
    c0 = -2 * 0.7978845608028654 * LOG2E; c1 = c0 * 0.044715
    e(f"v_mov_b32 v12, {fbits(c1)}"); e(f"v_mov_b32 v13, {fbits(c0)}")
    def f_epi(items, tb):
        pr = []
        for k, (acc, soff, imm) in enumerate(items):
            pr += [(acc + 2 * j, acc + 8 + 2 * j, tb + 8 * k + 2 * j) for j in range(4)]
        n = 2 * len(pr); o = tb + 16
        for g, u, tt in pr: e(f"v_pk_mul_f32 {vr(tt,2)}, {vr(g,2)}, {vr(g,2)}")
        for g, u, tt in pr: e(f"v_pk_fma_f32 {vr(tt,2)}, {vr(tt,2)}, v[12:13], v[12:13] op_sel:[0,0,1] op_sel_hi:[1,0,1]")
        for g, u, tt in pr: e(f"v_pk_mul_f32 {vr(tt,2)}, {vr(tt,2)}, {vr(g,2)}")
        for j in range(n): e(f"v_exp_f32 v{tb+j}, v{tb+j}")
        for g, u, tt in pr: e(f"v_pk_mul_f32 {vr(g,2)}, {vr(g,2)}, {vr(u,2)}")
        for g, u, tt in pr: e(f"v_pk_add_f32 {vr(tt,2)}, {vr(tt,2)}, 1.0 op_sel_hi:[1,0]")
        for j in range(n): e(f"v_rcp_f32 v{tb+j}, v{tb+j}")
        for g, u, tt in pr: e(f"v_pk_mul_f32 {vr(g,2)}, {vr(g,2)}, {vr(tt,2)}")
        for j, (g, u, tt) in enumerate(pr): e(f"v_cvt_pk_bf16_f32 v{o+j}, v{g}, v{g+1}")
        for k, (acc, soff, imm) in enumerate(items):
            e(f"buffer_store_dwordx4 {vr(o+4*k,4)}, v10, s[20:23], s{soff} offen offset:{imm} {HSC}")
    for a in range(4):
        f_epi([(V_ACC + 32 * a, 64, 1024 * a), (V_ACC + 32 * a + 16, 65, 1024 * a)], 32 + 24 * (a % 2))
    e(f"s_cmp_eq_u32 s{S_TYPE}, 1"); e("s_cbranch_scc0 K1_JOIN")
    f_epi([(V_ACC + 128, 66, 0)], 32)
    e("s_branch K1_JOIN")
    lab("K1_EPI_Q")
    e(f"s_mov_b32 s68, {fbits(LOG2E)}"); e(f"s_mov_b32 s69, {fbits(1e-6)}")
    e("s_add_u32 s66, s64, 8192"); e("s_add_u32 s67, s65, 8192")
    def phi(acc, t):
        for j in range(8): e(f"v_pk_mul_f32 {vr(t+2*j,2)}, {vr(acc+2*j,2)}, s[68:69] op_sel_hi:[1,0]")
        for j in range(16): e(f"v_exp_f32_e64 v{t+j}, v{t+j} clamp")
        for j in range(16): e(f"v_max_f32 v{acc+j}, s69, v{acc+j}")
        for j in range(8): e(f"v_pk_add_f32 {vr(acc+2*j,2)}, {vr(acc+2*j,2)}, {vr(t+2*j,2)}")
    for i in range(8):
        a, f = i >> 1, i & 1
        acc = V_ACC + 16 * i; o = 48 + 8 * (i % 2)
        phi(acc, 32)
        for j in range(8): e(f"v_cvt_pk_bf16_f32 v{o+j}, v{acc+2*j}, v{acc+2*j+1}")
        e(f"buffer_store_dwordx4 {vr(o,4)}, v10, s[20:23], s{64+f} offen offset:{1024*a} {HSC}")
        e(f"buffer_store_dwordx4 {vr(o+4,4)}, v10, s[20:23], s{66+f} offen offset:{1024*a} {HSC}")
    e("s_branch K1_JOIN")
    lab("K1_EPI_KV")
    e(f"s_mov_b32 s68, {fbits(LOG2E)}"); e(f"s_mov_b32 s69, {fbits(1e-6)}")
    for r in range(4): e(f"v_mov_b32 v{80+r}, s{S_ONES}")
    e("v_and_b32 v3, 3, v1"); e("v_bfe_u32 v4, v1, 2, 1"); e("v_lshl_add_u32 v3, v4, 3, v3"); e("v_bfe_u32 v4, v1, 3, 1"); e("v_lshl_add_u32 v3, v4, 2, v3")
    e("v_lshrrev_b32 v4, 5, v1"); e("v_lshl_add_u32 v3, v4, 6, v3"); e("v_bfe_u32 v4, v1, 4, 1"); e("v_mul_u32_u24 v4, 4352, v4")
    e("v_lshl_add_u32 v3, v3, 2, v4")
    e(f"s_sub_u32 s3, s{S_T}, 10"); e(f"s_lshl3_add_u32 s3, s3, s{S_Q}"); e("s_mul_i32 s3, s3, 1088"); e(f"s_add_u32 s64, s3, {KV_OFF}")
    e("s_mov_b32 s66, 0xffff0000"); e("s_mov_b32 s67, 0xffff0000")
    DK, DZ = 224, V_ACC + 64
    prev = []
    for f in range(4):
        ak = V_ACC + 16 * f; av = V_ACC + 64 + 16 * f; A = 48 + 16 * (f % 2); B = 56 + 16 * (f % 2); t = 32
        for j in range(8): e(f"v_pk_mul_f32 {vr(t+2*j,2)}, {vr(ak+2*j,2)}, s[68:69] op_sel_hi:[1,0]")
        for j in range(16):
            if j % 3 == 0 and prev: e(prev.pop(0))
            e(f"v_exp_f32_e64 v{t+j}, v{t+j} clamp")
        for j in range(16): e(f"v_max_f32 v{ak+j}, s69, v{ak+j}")
        for j in range(8): e(f"v_cvt_pk_bf16_f32 v{B+j}, v{av+2*j}, v{av+2*j+1}")
        for j in range(8): e(f"v_pk_add_f32 {vr(ak+2*j,2)}, {vr(ak+2*j,2)}, {vr(t+2*j,2)}")
        for j in range(8): e(f"v_cvt_pk_bf16_f32 v{A+j}, v{ak+2*j}, v{ak+2*j+1}")
        prev = [mfma(DK, B, A, "0" if f == 0 else None), mfma(DK, B + 4, A + 4), mfma(DZ, 80, A, "0" if f == 0 else None), mfma(DZ, 80, A + 4)]
    if "kmarks" in X: st.mark(10)
    e("s_nop 1")
    for x in prev: e(x)
    e("s_nop 9")
    e("s_mov_b64 exec, s[66:67]")
    for r in range(8): e(f"v_mov_b32 v{DK+r}, v{DK+8+r}")
    e("s_mov_b64 exec, -1")
    for r in range(8):
        e(f"buffer_atomic_add_f32 v{DK+r}, v3, s[20:23], s64 offen offset:{64 + 64*(8*(r//4) + r%4)}")
    e("s_mov_b64 exec, 0xffffffff")
    e(f"buffer_atomic_add_f32 v{DZ}, v3, s[20:23], s64 offen")
    e("s_mov_b64 exec, -1")
    lab("K1_JOIN")
    st.mark()
    V_STG, V_TOK, XU, V_SS, V_AY, V_XRES, V_OUT = 32, 120, 168, 184, 200, 232, 11
    NT = 12
    tr_lane(12)
    e(f"s_lshl_b32 s3, s{S_UH}, 6"); e("v_xor_b32 v12, s3, v12")
    e(f"s_lshl_b32 s3, s{S_UH}, 14"); e(f"s_add_u32 s3, s3, {54*2048}"); e("v_add_u32 v14, s3, v12"); e("v_xor_b32 v15, 64, v14")
    e(f"s_mul_i32 s3, s{S_UH}, {27*2048}"); e("v_add_u32 v12, s3, v12"); e("v_xor_b32 v13, 64, v12")
    lwait(4, 4, "g")
    for j in range(8):
        for nf in range(2):
            for rd in range(2):
                e(f"ds_read_b64_tr_b16 {vr(V_STG+8*j+4*nf+2*rd,2)}, v{14+nf} offset:{j*2048 + rd*1024}")
    e(f"s_lshl_b32 s64, s{S_MB}, 7"); e(f"s_lshl2_add_u32 s64, s{S_T}, s64"); e(f"s_cmp_eq_u32 s{S_TYPE}, 3"); e(f"s_cselect_b32 s3, {2048-52}, 0")
    e("s_add_u32 s64, s64, s3"); e(f"s_add_u32 s64, s64, {FLG_OFF}")
    e("v_mov_b32 v7, 1")
    e("v_and_b32 v3, 31, v1"); e("v_lshrrev_b32 v4, 5, v1"); e(f"v_lshlrev_b32 v{V_OUT}, 10, v3"); e(f"v_lshl_add_u32 v{V_OUT}, v4, 4, v{V_OUT}")
    e(f"s_lshl_b32 s77, s{S_MT}, 16"); e(f"s_lshl_b32 s3, s{S_NT}, 7"); e("s_add_u32 s77, s77, s3")
    e(f"s_lshl_b32 s3, s{S_TG}, 15"); e("s_add_u32 s77, s77, s3"); e(f"s_lshl_b32 s3, s{S_UH}, 6"); e("s_add_u32 s77, s77, s3")
    srd(16, 92, 93, 2097152)
    e(f"s_lshl1_add_u32 s3, s{S_MT}, s{S_TG}"); e(f"s_mul_i32 s3, s3, {NKS*1024}")
    e("s_add_u32 s8, s38, s3"); e("s_addc_u32 s9, s39, 0"); e(f"s_mov_b32 s10, {86*1024}"); e("s_mov_b32 s11, 0x00020000")
    e(f"s_mul_i32 s79, s{S_UH}, 43"); e(f"s_add_u32 s79, s79, s{S_RY}"); e("s_sub_u32 s3, s79, 86"); e("s_cselect_b32 s79, s79, s3"); e("s_lshl_b32 s79, s79, 10")
    e("s_waitcnt vmcnt(0)")
    if "kmarks" in X: st.mark(13)
    e("s_mov_b64 exec, 1")
    e("ds_add_rtn_u32 v6, v27, v7")
    e("s_waitcnt lgkmcnt(0)")
    e("v_readfirstlane_b32 s66, v6")
    e("s_cmp_eq_u32 s66, 3"); e("s_cbranch_scc0 K2_noflag")
    e(f"s_cmp_eq_u32 s{S_TYPE}, 2"); e("s_cbranch_scc1 K2_kvflag")
    e(f"buffer_store_dword v7, off, s[20:23], s64 {SC if 'plainflag' not in X else ''}")
    if "wbl2" in X:
        e(f"s_cmp_eq_u32 s{S_T}, 9"); e("s_cbranch_scc0 K2_noflag"); e("buffer_wbl2 sc1")
    e("s_branch K2_noflag")
    lab("K2_kvflag")
    e("v_mov_b32 v6, 1")
    e(f"buffer_atomic_add v6, off, s[24:27], 0 offset:128 {SC}")
    e("s_waitcnt vmcnt(0)")
    e("v_readfirstlane_b32 s66, v6")
    e("s_and_b32 s66, s66, 63")
    e("s_cmp_eq_u32 s66, 63"); e("s_cbranch_scc0 K2_noflag")
    e("s_mov_b64 exec, 0xffff")
    e("v_lshlrev_b32 v6, 7, v1"); e(f"s_mov_b32 s66, {FLG_OFF + 2048}")
    e(f"buffer_store_dword v7, v6, s[20:23], s66 offen {SC}")
    lab("K2_noflag")
    e("s_mov_b64 exec, -1")
    st.mark()
    e("s_barrier")
    e(f"s_setprio {opt('yp','0')}")
    if "noxres" not in X:
        e(f"buffer_load_dwordx4 {vr(V_XRES,4)}, v{V_OUT}, s[16:19], s77 offen")
        e(f"buffer_load_dwordx4 {vr(V_XRES+4,4)}, v{V_OUT}, s[16:19], s77 offen offset:32")
    e(f"s_mul_i32 s3, s{S_UH}, {27*2048}"); e(f"s_lshl_b32 s65, s{S_TG}, 12"); e("s_add_u32 s64, s3, s65"); e(f"s_add_u32 s64, s64, 32768")
    e("v_add_u32 v16, s64, v10")
    e(f"s_sub_u32 s64, {27*2048 + 32768}, s3"); e("s_add_u32 s64, s64, s65"); e("v_add_u32 v17, s64, v10")
    e(f"s_lshl_b32 s64, s{S_TG}, 13"); e(f"s_lshl_b32 s65, s{S_UH}, 12"); e("s_add_u32 s64, s64, s65"); e("v_add_u32 v18, s64, v10"); e(f"v_add_u32 v19, {27*2048}, v18")
    e(f"s_mov_b32 s68, {fbits(-LOG2E)}"); e(f"s_mov_b32 s70, {86*1024}"); e("s_movk_i32 s71, 1024")
    e("s_waitcnt vmcnt(0)")
    srd(16, 86, 87, 2097152)
    for a_, b_ in ((0, 2), (1, 3), (4, 6), (5, 7)): e(f"v_permlane32_swap_b32 v{V_XRES+a_}, v{V_XRES+b_}")
    for j in range(8):
        e(f"v_lshlrev_b32 v{XU+2*j}, 16, v{V_XRES+j}"); e(f"v_and_b32 v{XU+1+2*j}, s{S_MASK}, v{V_XRES+j}")
    e(f"s_cmp_eq_u32 s{S_WAVE}, 0"); e("s_cbranch_scc0 K2_ywait")
    e("v_lshlrev_b32 v4, 2, v1")
    e(f"s_lshr_b32 s64, s{S_MT}, 1"); e("s_lshl_b32 s64, s64, 7"); e(f"s_add_u32 s64, s64, {FLG_OFF}")
    e("s_mov_b32 s90, 0"); e("s_mov_b64 exec, 0x3ff")
    lab("K2_poll")
    e(f"buffer_load_dword v5, v4, s[20:23], s64 offen {SC}")
    e("s_add_u32 s90, s90, 1")
    e("s_waitcnt vmcnt(0)")
    e("v_cmp_ne_u32 vcc, 0, v5")
    e("s_cmp_eq_u32 vcc_lo, 0x3ff"); e("s_cbranch_scc1 K2_yset")
    e(f"s_sleep {opt('slp','3')}")
    e("s_cmp_lt_u32 s90, 0x100000"); e("s_cbranch_scc1 K2_poll")
    lab("K2_yset")
    lsig(16)
    lab("K2_ywait")
    lwait(16, 1, "y", 1)
    st.mark()
    NS = 43
    def tok(j):
        e(f"buffer_load_dwordx4 {vr(V_TOK+4*(j%NT),4)}, v10, s[8:11], s79 offen {SC}")
        if j < NS - 1: e("s_add_u32 s79, s79, s71"); e("s_cmp_eq_u32 s79, s70"); e("s_cselect_b32 s79, 0, s79")
    TD = int(opt('td', '5')); ZP = int(opt('zp', '26')); Z2 = int(opt('z2', '36'))
    def wslot(j):
        if j <= ZP + 9: return V_STG + 8 * (j % 11)
        return wslot(ZP - 1 + (j - ZP - 10) % 3)
    def wr(j):
        b = wslot(j)
        for nf in range(2):
            for rd in range(2):
                if j < 35: e(f"ds_read_b64_tr_b16 {vr(b+4*nf+2*rd,2)}, v{12+nf} offset:{(j-8)*2048 + rd*1024}")
                else: e(f"ds_read_b64_tr_b16 {vr(b+4*nf+2*rd,2)}, v{14+nf} offset:{(j-35)*2048 + rd*1024}")
    used = {wslot(j) for j in range(ZP + 10, NS)}
    free = [V_STG + 8 * k for k in range(11) if V_STG + 8 * k not in used]
    assert Z2 >= ZP + 10 and ZP >= 18
    tq = [f + 4 * h for f in free for h in range(2)][:12]
    sread = [f"ds_read_b128 {vr(V_SS+4*r,4)}, v18 offset:{1024*r}" for r in range(4)]
    for k in range(1, 4):
        sread += [f"ds_read_b128 {vr(tq[4*(k-1)+r],4)}, v{18 + k//2} offset:{16384*(k%2) + 1024*r}" for r in range(4)]
    sadd = [f"v_add_f32 v{V_SS+4*r+c}, v{V_SS+4*r+c}, v{tq[4*(k-1)+r]+c}" for k in range(1, 4) for r in range(4) for c in range(4)]
    for j in range(TD): tok(j)
    lwait(12, 4, "r")
    for j in range(8, 11): wr(j)
    first_late = min(j for j in range(NS) if (j + 10 >= 35 and j < ZP) or (j >= ZP + 8 and j + 2 >= 35))
    for j in range(NS):
        if "ymarks" in X and j in (1, 8, 16, ZP, Z2): st.mark()
        if j == ZP: e("s_waitcnt lgkmcnt(0)"); e("s_barrier")
        if j == Z2: e("s_barrier")
        if "ymarks" in X and j == ZP: st.mark()
        if j == first_late: lwait(8, 4, "l")
        if j + TD < NS: tok(j + TD)
        nrd = 0
        if Z2 <= j < Z2 + 4:
            for x in sread[4*(j-Z2):4*(j-Z2)+4]: e(x)
        if 1 <= j < ZP: wr(j + 10)
        elif j >= ZP + 8 and j + 2 < NS: wr(j + 2)
        lg = ""
        if 8 <= j < ZP: lg = " lgkmcnt(12)"
        elif j >= ZP + 10: lg = f" lgkmcnt({4 * min(2, NS - 1 - j)})"
        e(f"s_waitcnt vmcnt({min(TD, NS - 1 - j)})" + lg)
        adds = []
        if j >= Z2 + 5: adds = [sadd.pop(0) for _ in range(min(len(sadd), 10))]
        for i_, nf in enumerate((1, 0)):
            e(mfma(V_AY + 16 * nf, wslot(j) + 4 * nf, V_TOK + 4 * (j % NT), "0" if j == 0 else None))
            for x in adds[5*i_:5*i_+5]: e(x)
    st.mark()
    for x in sadd: e(x)
    e("s_nop 10")
    for r in range(4): e(f"ds_write_b128 v16, {vr(V_AY+16+4*r,4)} offset:{1024*r}")
    e("s_waitcnt lgkmcnt(0)")
    e("s_barrier")
    for r in range(4): e(f"ds_read_b128 {vr(32+4*r,4)}, v17 offset:{1024*r}")
    for r in range(4):
        e(f"s_waitcnt lgkmcnt({3-r})")
        for j in (2*r, 2*r+1): e(f"v_pk_add_f32 {vr(V_AY+2*j,2)}, {vr(V_AY+2*j,2)}, {vr(32+2*j,2)}")
    for j in range(8): e(f"v_pk_mul_f32 {vr(32+2*j,2)}, {vr(V_AY+2*j,2)}, s[68:69] op_sel_hi:[1,0]")
    for j in range(16): e(f"v_exp_f32 v{32+j}, v{32+j}")
    for j in range(8): e(f"v_pk_mul_f32 {vr(V_AY+2*j,2)}, {vr(V_AY+2*j,2)}, {vr(V_SS+2*j,2)}")
    for j in range(8): e(f"v_pk_add_f32 {vr(32+2*j,2)}, {vr(32+2*j,2)}, 1.0 op_sel_hi:[1,0]")
    for h in range(2):
        for j in range(8*h, 8*h+8): e(f"v_rcp_f32 v{32+j}, v{32+j}")
        for j in range(4*h, 4*h+4): e(f"v_pk_fma_f32 {vr(32+2*j,2)}, {vr(32+2*j,2)}, {vr(V_AY+2*j,2)}, {vr(XU+2*j,2)}")
        for j in range(4*h, 4*h+4): e(f"v_cvt_pk_bf16_f32 v{64+j}, v{32+2*j}, v{33+2*j}")
        e("s_nop 1")
        for a_, b_ in ((0, 2), (1, 3)): e(f"v_permlane32_swap_b32 v{64+4*h+a_}, v{64+4*h+b_}")
        e(f"buffer_store_dwordx4 {vr(64+4*h,4)}, v{V_OUT}, s[16:19], s77 offen offset:{32*h}")
    if "fixspan" in X:
        lab("K_fix")
        e("s_memrealtime s[96:97]"); e("s_waitcnt lgkmcnt(0)"); e("s_sub_u32 s96, s96, s94"); e(f"s_cmp_lt_u32 s96, {opt('fix','5000')}"); e("s_cbranch_scc1 K_fix")
    if STAMP:
        st.mark(); e("s_waitcnt vmcnt(0)"); st.mark()
        st.dump(S_WAVE, "K_END")
    lab("K_END")
    e("s_endpgm")

hdr = f"""; Fused block in one launch: phase 1 = LayerNorm + QKV/gate/up GEMM + phi/GEGLU epilogues + kv reduction,
; @launch grid=(256,1,1) block=(512,1,1) lds=163840
.amdgcn_target "amdgcn-amd-amdhsa--gfx950"
.text"""
kernel()
kd = f""".amdhsa_kernel {NAME}_kernel
  .amdhsa_next_free_vgpr 256
  .amdhsa_next_free_sgpr 102
  .amdhsa_accum_offset 256
  .amdhsa_group_segment_fixed_size 0
  .amdhsa_kernarg_size 80
  .amdhsa_user_sgpr_count 2
  .amdhsa_user_sgpr_kernarg_segment_ptr 1
  .amdhsa_system_sgpr_workgroup_id_x 1
.end_amdhsa_kernel"""
open(OUT, "w").write(hdr + "\n" + "\n".join(L) + '\n.section .rodata,"a"\n.p2align 6\n' + kd + "\n")
```

```python
import sys, struct
STAMP = "--stamp" in sys.argv
OUT = [a for a in sys.argv[1:] if not a.startswith("--")]
NAME = "recurrent_scan__linear_attn_block__glu_gated_geglu__prompt"
OUT = OUT[0] if OUT else f"cdna_kernels/{NAME}.s"
X = set(a[2:] for a in sys.argv if a.startswith("--"))
def opt(name, dflt):
    r = [a[len(name)+3:] for a in sys.argv if a.startswith('--' + name + '=')]
    return r[0] if r else dflt

L = []
def e(s): L.append("    " + s)
def lab(s): L.append(s + ":")
def vr(b, n): return f"v[{b}:{b+n-1}]"
def fbits(x): return "0x%08x" % struct.unpack("<I", struct.pack("<f", x))[0]

NKS = 118
KV_OFF = 0x800000
KV_BYTES = 32 * 1088
FLG_OFF = KV_OFF + KV_BYTES
FLG_BYTES = 4096
WS_USED = FLG_OFF + FLG_BYTES
STAMP_OFF = 0x8000000
LOG2E = 1.4426950408889634
SC = "sc0 sc1"
HSC = "" if "plainh" in X else SC

def srd(d, lo, hi, size):
    e(f"s_mov_b32 s{d}, s{lo}"); e(f"s_mov_b32 s{d+1}, s{hi}")
    e(f"s_mov_b32 s{d+2}, {size}"); e(f"s_mov_b32 s{d+3}, 0x00020000")

class Stamps:
    def __init__(self): self.n = 0
    def mark(self, i=None):
        if "fixspan" in X and i is None:
            if self.n == int(opt('fixat', '0')): e("s_memrealtime s[94:95]"); e("s_waitcnt lgkmcnt(0)")
            self.n += 1
        if STAMP:
            k = self.n if i is None else i
            e("s_memtime s[98:99]"); e("s_memrealtime s[100:101]"); e("s_waitcnt lgkmcnt(0)")
            e(f"v_writelane_b32 v255, s98, {2*k}"); e(f"v_writelane_b32 v255, s100, {2*k+1}")
            if i is None: self.n += 1
    def dump(self, swave, label):
        if not STAMP: return
        e(f"s_cmp_lg_u32 s{swave}, {opt('sw', '0')}"); e(f"s_cbranch_scc1 {label}")
        srd(4, 38, 39, "0x10000000")
        e("s_lshl_b32 s3, s2, 7"); e(f"s_add_u32 s3, s3, {STAMP_OFF}")
        e("v_lshlrev_b32 v3, 2, v1"); e("s_mov_b64 exec, 0xffffffff")
        if "imarks" in X:
            for k in range(1, 9):
                e(f"v_readlane_b32 s98, v254, {k}"); e("s_nop 3"); e(f"v_writelane_b32 v255, s98, {21+k}")
        e(f"buffer_store_dword v255, v3, s[4:7], s3 offen")
        if "dbgspan" in X:
            e("v_lshlrev_b32 v3, 1, v1"); e("v_add_u32 v3, 6, v3"); e("s_mov_b32 exec_lo, 0x000aaaaa"); e("s_mov_b32 exec_hi, 0")
            e("buffer_atomic_umax v255, v3, s[24:27], 0 offen")
            e("v_not_b32 v4, v255"); e("s_mov_b64 exec, 2")
            e("buffer_atomic_umax v4, off, s[24:27], 0 offset:4")
st = Stamps()

XST = 16384; WBASE = 32768; SEGB = 18560; WST = 36992; KVP = 146432; LCNT = 144000; WOA = 38 * 2048
V_VW = 10
V_VX, V_XW, V_DV = 19, 88, 21
TAB = [4, 5, 0, 10, 6, 1, 11, 14, 7, 8, 2, 12, 9, 3, 13, 15]
V_NA = 22; V_ST = 30; V_UT = 40; V_PK = 72; V_XR = 96
V_XA, V_WA = 22, 26
V_SET = [32, 60]
V_ACC = 96
S_WAVE, S_TG, S_UH, S_MB, S_T, S_STR, S_U0, S_CNT = 40, 41, 42, 43, 44, 45, 46, 47
S_DMAW, S_KW, S_KS, S_HFO, S_Q, S_XI, S_MASK, S_ONES = 48, 49, 50, 51, 52, 53, 54, 55
S_RST, S_DST, S_TYPE, S_STR64, S_STR32, S_TMP, S_TMP2 = 56, 57, 58, 59, 60, 61, 62
S_RW, S_KWEND, S_RX, S_GX, S_XW = 72, 73, 63, 60, 79
S_MT, S_NT, S_R2, S_RY = 74, 75, 76, 91

def k1_dma():
    G = []
    for p in range(9):
        g = [f"s_add_u32 m0, s{S_DMAW}, {1024*p}"]
        g.append(f"s_add_u32 s{S_KS}, s{S_KW}, s{S_HFO}" if p in (0, 5) else "s_nop 0")
        g.append(f"buffer_load_dwordx4 v{V_VW+p}, s[8:11], s{S_KS} offen lds")
        G.append(g)
    G[-1] += [f"s_add_u32 s{S_KW}, s{S_KW}, s{S_STR64}", f"s_add_u32 s{S_DST}, s{S_DST}, 1",
              f"s_cmp_eq_u32 s{S_KW}, s{S_KWEND}", f"s_cselect_b32 s{S_KW}, 0, s{S_KW}",
              f"s_cmp_eq_u32 s{S_DST}, 3", f"s_cselect_b32 s{S_TMP}, {-2*WST & 0xffffffff}, s{S_TMP2}",
              f"s_cselect_b32 s{S_DST}, 0, s{S_DST}", f"s_add_u32 s{S_DMAW}, s{S_DMAW}, s{S_TMP}"]
    return G

def k1_reads(s_, p, var):
    b = V_SET[s_]
    if var == "S8":
        x = lambda f: f"ds_read_b128 {vr(b+4*f,4)}, v{V_XA} offset:{4096*f+256*p}"
        w = lambda a: [f"ds_read_b64_tr_b16 {vr(b+16+4*a+2*rd,2)}, v{V_WA} offset:{p*4608+1152*rd+SEGB*a}" for rd in range(2)]
        return [x(0)] + w(0) + w(1) + [x(1), x(2), x(3)]
    offs = [0, 32, 64, 96]
    if var == "N9a": offs.append(256)
    if var == "N9b": offs.append(128)
    def w(a): return [f"ds_read_b64_tr_b16 {vr(b+8+4*a,2)}, v{V_WA} offset:{p*4608+offs[a]}",
                      f"ds_read_b64_tr_b16 {vr(b+10+4*a,2)}, v{V_WA} offset:{p*4608+1152+offs[a]}"]
    r = [f"ds_read_b128 {vr(b,4)}, v{V_XA} offset:{256*p}"] + w(0) + [f"ds_read_b128 {vr(b+4,4)}, v{V_XA} offset:{4096+256*p}"]
    for a in range(1, len(offs)): r += w(a)
    return r

def mfma(d, a, b, c=None):
    return f"v_mfma_f32_32x32x16_bf16 {vr(d,16)}, {vr(a,4)}, {vr(b,4)}, " + (vr(d, 16) if c is None else c)

def k1_mfma(s_, var):
    b = V_SET[s_]
    m = []
    if var == "S8":
        return [mfma(V_ACC + 16 * (4 * a + f), b + 4 * f, b + 16 + 4 * a) for f in range(4) for a in range(2)]
    for a in range(4):
        for f in range(2):
            acc = V_ACC + 16 * (2 * a + f)
            W = b + 8 + 4 * a; X_ = b + 4 * f
            m.append(mfma(acc, X_, W) if var == "S8" else mfma(acc, W, X_))
    if var in ("N9a", "N9b"):
        m.append(mfma(V_ACC + 128, b + 24, b + (0 if var == "N9a" else 4)))
    return m

def k1_unpack(g):
    r = [f"s_set_gpr_idx_on s{S_XI}, gpr_idx(SRC1)", "s_nop 0"]
    for j in range(4 * g, 4 * g + 4):
        r.append(f"v_lshlrev_b32 v{V_UT+2*j}, 16, v{V_XR+j}")
        r.append(f"v_and_b32 v{V_UT+2*j+1}, s{S_MASK}, v{V_XR+j}")
    r.append("s_set_gpr_idx_off")
    return r
def k1_norm(g):
    a = V_NA + 2 * g; j0 = 4 * g
    return [f"v_fma_f32 v{V_UT+2*j0+k}, v{V_UT+2*j0+k}, v{a}, v{a+1}" for k in range(8)] + \
           [f"v_cvt_pk_bf16_f32 v{V_PK+j}, v{V_UT+2*j}, v{V_UT+2*j+1}" for j in range(j0, j0 + 4)]
def k1_xw(g):
    return [f"s_xor_b32 m0, s{S_XW}, {4096*g}", "s_nop 0"] + [f"ds_write_addtid_b32 v{V_PK+4*g+j} offset:{256*j}" for j in range(4)]
def k1_xadv():
    return [f"s_xor_b32 s{S_XW}, s{S_XW}, {XST}", f"s_add_u32 s{S_XI}, s{S_XI}, 16", f"s_and_b32 s{S_XI}, s{S_XI}, 127"]

def layout(body):
    n = len(body)
    for i, it in enumerate(body):
        if it[0] == 'm' and it[2]:
            cnt = 0; j = i; w = None
            while True:
                j = (j - 1) % n
                o = body[j]
                if o[0] == 'w0': break
                if o[0] == 'l':
                    if o[2] in it[2]: w = cnt; break
                    cnt += 1
                if j == i: break
            if w is not None: e(f"s_waitcnt lgkmcnt({min(w, 15)})")
        if it[1].endswith(":"): L.append(it[1])
        else: e(it[1])

def k1_cons_loop(var):
    def need(p):
        if var == "S8": return [[(p, 2)], [(p, 4)], [(p, 5)], [], [(p, 6)], [], [(p, 7)], []]
        return [[(p, 2)], [(p, 3)], [(p, 5)], [], [(p, 7)], [], [(p, 9)], [], [(p, 11)]]
    rs = {'a': [2, 2, 2, 2, 2, 2, 0, 0, 0], 'b': [2, 1, 1, 2, 1, 1, 2, 1, 1] if var in ('N9a', 'N9b') else [2, 1, 1, 1, 2, 1, 1, 1]}[opt('rs', 'a')]
    if var == "S8": rs = [2, 2, 1, 1, 1, 1, 0, 0]
    lab(f"K1_{var}")
    for x in k1_reads(0, 0, var): e(x)
    B = [('x', f"K1_{var}_loop:")]
    def stepx(s_, p, extra):
        mf = k1_mfma(s_, var); rd = k1_reads(s_ ^ 1, p + 1, var); ri = 0
        for i, m in enumerate(mf):
            B.append(('m', m, need(p)[i]))
            for _ in range(rs[i]):
                if ri < len(rd): B.append(('l', rd[ri], (p + 1, ri))); ri += 1
            for x in extra.get(i, []): B.append(('x', x))
    stepx(0, 0, {})
    stepx(1, 1, {6: [f"s_add_u32 s{S_RST}, s{S_RST}, 1", f"s_cmp_eq_u32 s{S_RST}, 3",
                     f"s_cselect_b32 s{S_TMP}, {-2*WST & 0xffffffff}, s{S_TMP2}", f"s_cselect_b32 s{S_RST}, 0, s{S_RST}"]})
    stepx(0, 2, {7: [f"v_xor_b32 v{V_XA}, {XST}, v{V_XA}", f"v_add_u32 v{V_WA}, s{S_TMP}, v{V_WA}",
                     f"s_add_u32 s{S_CNT}, s{S_CNT}, 1", f"s_cmp_lt_u32 s{S_CNT}, 8"]})
    m = k1_mfma(1, var); nd = need(3)
    B.append(('m', m[0], nd[0])); B.append(('m', m[1], nd[1]))
    if "imarks" in X: B.append(('x', "s_memtime s[98:99]"))
    B.append(('w0', "s_waitcnt vmcnt(0) lgkmcnt(0)"))
    B.append(('x', "s_barrier"))
    if "imarks" in X:
        if "bw" in X:
            B.append(('x', "s_memtime s[100:101]")); B.append(('x', "s_waitcnt lgkmcnt(0)")); B.append(('x', "s_mul_i32 s98, s98, -1")); B.append(('x', "s_mul_i32 s98, s98, 1"))
            B.append(('x', "v_mov_b32 v253, s98")); B.append(('x', "v_add_u32 v253, s100, v253")); B.append(('x', "s_nop 0")); B.append(('x', "v_readfirstlane_b32 s98, v253")); B.append(('x', "s_nop 3"))
        B.append(('x', f"s_mov_b32 m0, s{S_CNT}")); B.append(('x', "s_nop 0")); B.append(('x', "v_writelane_b32 v254, s98, m0"))
    r0 = k1_reads(0, 0, var); ri = 0
    for i in range(2, len(m)):
        B.append(('m', m[i], []))
        for _ in range(3 if i < 4 else 2):
            if ri < len(r0): B.append(('l', r0[ri], (0, ri))); ri += 1
    assert ri == len(r0)
    B.append(('x', f"s_cbranch_scc1 K1_{var}_loop"))
    layout(B)
    e("s_branch K1_EPI")

def kernel():
    LA = {'2': 1, '4': 2, '8': 3}[opt('a', '4')]
    L.append(f".globl {NAME}_kernel"); L.append(".p2align 8"); L.append(f".type {NAME}_kernel,@function"); lab(f"{NAME}_kernel")
    if STAMP: e("v_mov_b32 v255, 0")
    st.mark()
    e("s_load_dwordx2 s[4:5], s[0:1], 0")
    e("s_load_dwordx4 s[28:31], s[0:1], 8")
    e("s_load_dwordx8 s[80:87], s[0:1], 32")
    e("s_load_dwordx4 s[36:39], s[0:1], 64")
    e("s_cmp_ge_u32 s2, 256"); e("s_cbranch_scc1 K_END")
    e(f"s_and_b32 s3, s2, {(1 << LA) - 1}"); e(f"s_bfe_u32 s64, s2, {((4-LA) << 16) | 3:#x}")
    e(f"s_lshl_b32 s3, s3, {4-LA}"); e(f"s_add_u32 s{S_MB}, s3, s64")
    e(f"s_lshr_b32 s65, s2, {7-LA}")
    e("v_bfe_u32 v3, v0, 3, 5"); e("v_and_b32 v4, 7, v0")
    e(f"s_and_b32 s{S_GX}, s65, {int(opt('rx','7')) & 3}"); e(f"s_and_b32 s{S_RX}, s65, {int(opt('rx','7')) & 4}")
    e("v_lshrrev_b32 v5, 5, v0"); e("v_and_b32 v5, 4, v5"); e("v_xor_b32 v5, v5, v4")
    e(f"v_lshlrev_b32 v{V_VX}, 10, v3"); e(f"v_lshl_add_u32 v{V_VX}, v5, 4, v{V_VX}")
    e(f"s_lshl2_add_u32 s70, s{S_MB}, s{S_GX}"); e("s_lshl_b32 s70, s70, 8"); e(f"s_or_b32 s70, s70, s{S_RX}"); e("s_lshl_b32 s70, s70, 7")
    e("s_mov_b32 s6, 0x200000"); e("s_mov_b32 s7, 0x00020000")
    e("v_cmp_gt_u32 vcc, 0x100, v0"); e("s_cbranch_vccnz K1_cpf")
    def xload(i):
        g, c = divmod(i, 8)
        if c % 4 == 0 and i: e(f"s_xor_b32 s71, s70, {32768*g + 128*c}")
        e(f"buffer_load_dwordx4 {vr(V_XR+16*c+4*g,4)}, v{V_VX}, s[4:7], {'s71' if i >= 4 else 's70'} offen offset:{128*(c%4)}")
    XD = int(opt('xd', '8'))
    e("s_waitcnt lgkmcnt(0)")
    if "emarks" in X: st.mark(10)
    X0 = int(opt('x0', '4'))
    for i in range(X0): xload(i)
    e("s_branch K1_setup")
    lab("K1_cpf")
    e("s_getpc_b64 s[66:67]")
    lab("K1_pc")
    e("s_and_b32 s3, s2, 0xf8")
    e("v_add_lshl_u32 v5, v0, s3, 7"); e(f"v_min_u32 v5, K_END-K1_pc, v5")
    e("v_cmp_gt_u32 vcc, 8, v0"); e("s_and_saveexec_b64 s[68:69], vcc"); e("s_cbranch_execz K1_nocpf")
    e("global_load_dword v28, v5, s[66:67]")
    lab("K1_nocpf")
    e("s_mov_b64 exec, -1")
    lab("K1_setup")
    e("v_lshrrev_b32 v2, 6, v0"); e("v_and_b32 v1, 63, v0")
    e(f"v_readfirstlane_b32 s{S_WAVE}, v2")
    e(f"s_bfe_u32 s3, s2, {((3-LA) << 16) | LA:#x}" if LA < 3 else "s_mov_b32 s3, 0"); e(f"s_lshl_b32 s3, s3, {LA+1}"); e("s_add_u32 s3, s3, s65")
    e(f"s_lshl_b32 s{S_RW}, s2, {3-LA}"); e(f"s_and_b32 s{S_RW}, s{S_RW}, {int(opt('xr','7'))}")
    e("s_lshl_b32 s3, s3, 2")
    tv = sum(t << (4 * i) for i, t in enumerate(TAB))
    e(f"s_mov_b32 s64, {tv & 0xffffffff:#x}"); e(f"s_mov_b32 s65, {tv >> 32:#x}")
    e("s_lshr_b64 s[64:65], s[64:65], s3"); e(f"s_and_b32 s{S_T}, s64, 15")
    e(f"s_and_b32 s{S_Q}, s{S_WAVE}, 3"); e(f"s_and_b32 s{S_TG}, s{S_WAVE}, 1"); e(f"s_lshr_b32 s{S_UH}, s{S_Q}, 1")
    e(f"s_lshl_b32 s{S_U0}, s{S_T}, 3")
    e(f"s_mul_i32 s3, s{S_T}, 9"); e("s_sub_u32 s3, s3, 4")
    e(f"s_cmp_ge_u32 s{S_T}, 4"); e(f"s_cselect_b32 s{S_U0}, s3, s{S_U0}"); e(f"s_cselect_b32 s{S_TYPE}, 1, 0")
    e(f"s_lshl_b32 s64, s{S_U0}, 5")
    e(f"s_lshl2_add_u32 s3, s{S_TG}, s{S_T}"); e("s_sub_u32 s3, s3, 6"); e("s_lshl_b32 s3, s3, 8")
    e(f"s_cmp_ge_u32 s{S_T}, 10"); e("s_cselect_b32 s64, s3, s64")
    e(f"s_cselect_b32 s{S_TYPE}, 2, s{S_TYPE}"); e(f"s_movk_i32 s3, 2752"); e(f"s_cselect_b32 s{S_STR}, 3072, s3")
    e(f"s_lshl1_add_u32 s3, s{S_T}, s{S_TG}"); e("s_sub_u32 s3, s3, 28"); e("s_lshl_b32 s3, s3, 8")
    e(f"s_lshl_b32 s67, s{S_T}, 4"); e(f"s_sub_u32 s67, s67, {14*16-86}")
    e(f"s_cmp_ge_u32 s{S_T}, 14"); e("s_cselect_b32 s64, s3, s64")
    e(f"s_cselect_b32 s{S_TYPE}, 3, s{S_TYPE}"); e(f"s_cselect_b32 s{S_U0}, s67, s{S_U0}")
    e(f"s_lshl_b32 s{S_STR64}, s{S_STR}, 6")
    e(f"s_cmp_eq_u32 s{S_TYPE}, 1"); e("s_cselect_b32 s66, 17, 15")
    if "emarks" in X: st.mark(11)
    e("s_movk_i32 s67, 3641"); e("s_movk_i32 s68, 0x13a")
    for p in range(9):
        src = "v1" if p == 0 else "v6"
        if p: e(f"v_add_u32 v6, 64, {'v1' if p == 1 else 'v6'}")
        e(f"v_mul_u32_u24 v5, s67, {src}"); e("v_lshrrev_b32 v5, 16, v5")
        e("v_mul_u32_u24 v7, 18, v5"); e(f"v_sub_u32 v7, {src}, v7"); e("v_min_u32 v7, s66, v7")
        e("v_mul_u32_u24 v5, 0x821, v5"); e("v_bfe_u32 v5, v5, 3, 12"); e("v_and_b32 v5, s68, v5")
        e("v_mul_u32_u24 v5, 0x101, v5"); e("v_bfe_u32 v5, v5, 8, 6")
        e(f"v_mul_u32_u24 v5, s{S_STR}, v5"); e(f"v_lshl_add_u32 v{V_VW+p}, v7, 4, v5")
    e("s_waitcnt lgkmcnt(0)")
    e(f"s_cmp_eq_u32 s{S_TG}, 1")
    e("s_cselect_b64 s[8:9], s[82:83], s[80:81]"); e(f"s_cselect_b32 s{S_DMAW}, {SEGB}, 0")
    e(f"s_cmp_ge_u32 s{S_TYPE}, 2")
    e("s_cselect_b64 s[8:9], s[28:29], s[8:9]")
    e(f"s_lshl_b32 s{S_KWEND}, s{S_STR64}, 3")
    e("s_add_u32 s8, s8, s64"); e("s_addc_u32 s9, s9, 0"); e(f"s_sub_u32 s10, s{S_KWEND}, s64"); e("s_mov_b32 s11, 0x00020000")
    e(f"s_mul_i32 s{S_HFO}, s{S_UH}, s{S_STR64}"); e(f"s_lshr_b32 s{S_HFO}, s{S_HFO}, 4")
    e(f"s_mul_i32 s3, s{S_UH}, 9216"); e(f"s_add_u32 s{S_DMAW}, s{S_DMAW}, s3"); e(f"s_add_u32 s{S_DMAW}, s{S_DMAW}, {WBASE}")
    e(f"s_mov_b32 s{S_TMP2}, {WST}"); e(f"s_mov_b32 s{S_CNT}, 0")
    e(f"s_mul_i32 s{S_KW}, s{S_RW}, s{S_STR64}"); e(f"s_mov_b32 s{S_DST}, 0")
    e("s_bfe_u32 s3, s2, 0x20003"); e(f"s_cmp_eq_u32 s3, s{S_WAVE}"); e("s_cselect_b32 s78, 1, 0")
    e("s_cbranch_scc0 K1_notlead")
    lab("K1_w0")
    for g in k1_dma():
        for x in g: e(x)
    e("s_cmp_eq_u32 s78, 0"); e("s_cbranch_scc1 K1_w0done")
    LW1 = opt('lw1', '0') == '1'
    if LW1:
        e("s_add_u32 s78, s78, 1"); e("s_cmp_eq_u32 s78, 2"); e("s_cbranch_scc1 K1_w0")
    lab("K1_notlead")
    e(f"s_mov_b32 s{S_MASK}, 0xffff0000"); e(f"s_mov_b32 s{S_ONES}, 0x3f803f80")
    srd(20, 38, 39, WS_USED); srd(24, 36, 37, 256)
    e("s_and_b32 s3, s2, 7"); e("s_bfe_u32 s66, s2, 0x20003"); e(f"s_lshl2_add_u32 s{S_MT}, s3, s66"); e(f"s_lshr_b32 s{S_NT}, s2, 5")
    e(f"s_mul_i32 s3, s66, {opt('rym','11')}")
    e(f"s_and_b32 s66, s{S_NT}, {opt('rg','1')}")
    e(f"s_mul_i32 s{S_R2}, s66, {8 // (int(opt('rg','1')) + 1)}"); e(f"s_mul_i32 s{S_RY}, s66, {44 // (int(opt('rg','1')) + 1)}"); e(f"s_add_u32 s{S_RY}, s{S_RY}, s3")
    if "emarks" in X: st.mark(12)
    e(f"s_cmp_lt_u32 s{S_WAVE}, 4"); e("s_cbranch_scc1 K1_CONS")
    e("s_setprio 3")
    def capture(fn):
        n0 = len(L); fn(); r = L[n0:]; del L[n0:]; return r
    e(f"s_add_u32 s3, s{S_RW}, 1"); e("s_and_b32 s3, s3, 7"); e(f"s_mul_i32 s{S_KW}, s3, s{S_STR64}")
    e(f"s_mov_b32 s{S_DST}, 1"); e(f"s_add_u32 s{S_DMAW}, s{S_DMAW}, {WST}")
    e(f"s_lshl2_add_u32 s{S_XW}, s{S_GX}, s{S_Q}"); e(f"s_lshl_b32 s{S_XW}, s{S_XW}, 10")
    e(f"s_sub_u32 s{S_XI}, s{S_RW}, s{S_RX}"); e(f"s_and_b32 s{S_XI}, s{S_XI}, 7"); e(f"s_lshl_b32 s{S_XI}, s{S_XI}, 4")
    e("v_lshrrev_b32 v5, 3, v1"); e("v_bfe_u32 v6, v1, 4, 1"); e("v_lshlrev_b32 v6, 2, v6"); e("v_xor_b32 v6, v6, v4")
    e("v_lshlrev_b32 v5, 10, v5"); e(f"v_lshl_add_u32 v{V_DV}, v6, 4, v5")
    for r in range(4): e(f"v_mov_b64 {vr(V_ST+2*r,2)}, 0")
    e(f"s_mov_b32 s68, {fbits(1/512)}"); e(f"s_mov_b32 s69, {fbits(1e-5)}")
    WB = int(opt('wb', '24')); WB2 = int(opt('wb2', '32'))
    G4 = range(4)
    def fin(g):
        m, q = V_ST + 2 * g, V_ST + 2 * g + 1
        c = []
        for dpp in ("quad_perm:[1,0,3,2]", "quad_perm:[2,3,0,1]", "row_half_mirror"):
            c.append([f"v_add_f32_dpp v{r}, v{r}, v{r} {dpp} row_mask:0xf bank_mask:0xf" for r in (m, q)])
        c += [[f"v_mul_f32 v{m}, s68, v{m}", f"v_mul_f32 v{q}, s68, v{q}", f"v_fma_f32 v{q}, -v{m}, v{m}, v{q}", f"v_max_f32 v{q}, 0, v{q}",
               f"v_cvt_pk_bf16_f32 v{q}, v{m}, v{q}", f"v_lshlrev_b32 v{m}, 16, v{q}", f"v_and_b32 v{q}, s{S_MASK}, v{q}",
               f"v_add_f32 v{q}, s69, v{q}", f"v_cvt_pk_bf16_f32 v{q}, v{q}, v{q}", f"v_and_b32 v{q}, s{S_MASK}, v{q}", f"v_sqrt_f32 v{q}, v{q}"],
              [f"v_cvt_pk_bf16_f32 v{q}, v{q}, v{q}", f"v_and_b32 v{q}, s{S_MASK}, v{q}", f"v_rcp_f32 v{V_NA+2*g}, v{q}"],
              [f"v_mul_f32_e64 v{V_NA+2*g+1}, -v{m}, v{V_NA+2*g}"]]
        return c
    def mvw(gs):
        r = [f"s_set_gpr_idx_on s{S_XI}, gpr_idx(SRC0)", "s_nop 0"]
        for g in gs: r += [f"v_mov_b32 v{V_PK+4*g+h}, v{V_XR+4*g+h}" for h in range(4)]
        return r + ["s_set_gpr_idx_off"]
    def pre_u(g, c):
        r = []
        for j in range(4):
            x = V_XR + 16 * c + 4 * g + j
            r += [f"v_lshlrev_b32 v{V_UT+2*j}, 16, v{x}", f"v_and_b32 v{V_UT+2*j+1}, s{S_MASK}, v{x}"]
        return r
    def pre_n(g, c):
        a_ = V_NA + 2 * g
        return [f"v_pk_fma_f32 {vr(V_UT+2*j,2)}, {vr(V_UT+2*j,2)}, {vr(a_,2)}, {vr(a_,2)} op_sel:[0,0,1] op_sel_hi:[1,0,1]" for j in range(4)] + \
               [f"v_cvt_pk_bf16_f32 v{V_XR+16*c+4*g+j}, v{V_UT+2*j}, v{V_UT+2*j+1}" for j in range(4)]
    def chain(g):
        r = []
        for k, pc in enumerate(fin(g)):
            if k: r.append("s_nop 0")
            r += pc
        return r
    if "emarks" in X: st.mark(13)
    NPRE = int(opt('npre', '0'))
    pend = []
    nis = X0
    for i in range(32):
        if pend:
            for x in pend.pop(0): e(x)
        e(f"s_waitcnt vmcnt({nis - 1 - i})")
        for _ in range(2):
            if nis < 32 and nis - i <= XD:
                xload(nis); nis += 1
                if nis == WB: e("s_barrier")
                if nis == WB2: e("s_barrier")
        if "pmarks" in X and i in (0, 8, 16, 31): st.mark({0: 1, 8: 2, 16: 3, 31: 4}[i])
        g, c = divmod(i, 8)
        for j in range(4):
            r = V_XR + 16 * c + 4 * g + j
            e(f"v_dot2c_f32_bf16 v{V_ST+2*g}, s{S_ONES}, v{r}")
            e(f"v_dot2c_f32_bf16 v{V_ST+2*g+1}, v{r}, v{r}")
        if c == 7 and g < NPRE:
            assert not pend
            pend = [pre_u(g, cc) + (chain(g) if cc == 0 else []) + pre_n(g, cc) for cc in range(8)]
            pend[7] = pend[7] + mvw([g]) + k1_xw(g)
            if g == 0 and opt('front', '1') == '1': pend = [sum(pend, [])]
        elif c == 7 and g < 3:
            pend = [k1_unpack(g)] + fin(g); pend[-1] = pend[-1] + k1_norm(g) + k1_xw(g)
    for x in k1_unpack(3) + chain(3) + k1_norm(3) + k1_xw(3): e(x)
    for x in k1_xadv(): e(x)
    e("s_setprio 0")
    e("s_waitcnt lgkmcnt(0)")
    if "pmarks" in X: st.mark(5)
    e("s_barrier")
    if "pmarks" in X: st.mark(6)
    D = k1_dma()
    if LW1: e("s_bfe_u32 s3, s2, 0x20003"); e(f"s_cmp_eq_u32 s3, s{S_Q}"); e("s_cbranch_scc1 K1_pw1")
    for g in D[5:]:
        for x in g[:3]: e(x)
    lab("K1_pw1")
    for x in D[8][3:]: e(x)
    if "lmarks" in X:
        e("s_memtime s[98:99]"); e("s_waitcnt lgkmcnt(0)"); e("s_mov_b32 s97, s98"); e("s_mov_b32 s94, 0"); e("s_mov_b32 s95, 0"); e("s_mov_b32 s96, 0")
    if "pprio" in X: e("s_setprio 2")
    lab("K1_PROD_loop")
    def weave(mem):
        N = [k1_norm(g) for g in range(4)]
        mem = list(mem)
        def dma(v):
            if not mem:
                for x in v: e(x)
                return
            pre, op = mem.pop(0)
            for x in pre: e(x)
            TH = int(opt('th', '99'))
            if TH < 99:
                e(f"s_waitcnt vmcnt({TH})"); v = [None] + list(v)
            elif v: e(v[0])
            elif len(pre) < 2 or "m0" in pre[-1]: e("s_nop 0")
            e(op)
            for x in v[1:]: e(x)
        if opt('wv', '0') == '0':
            for g in range(4):
                dma([])
                if g < NPRE:
                    for x in mvw([g]): e(x)
                    dma([])
                else:
                    for x in k1_unpack(g): e(x)
                    dma(N[g])
                for x in k1_xw(g): e(x)
            dma(k1_xadv())
        elif opt('wv', '0') == '2':
            for g in range(4):
                dma([]);
                if g == 0: dma([])
                u = k1_unpack(g)
                for x in u: e(x)
                dma(N[g][:11]) if False else None
                for x in N[g][:11]: e(x)
                e(k1_xw(g)[0]); e(N[g][11]); [e(x) for x in k1_xw(g)[2:]]
                dma([])
            for x in k1_xadv(): e(x)
        else:
            def unp(gs):
                r = [f"s_set_gpr_idx_on s{S_XI}, gpr_idx(SRC1)", "s_nop 0"]
                for g in gs:
                    for j in range(4 * g, 4 * g + 4):
                        if g < NPRE: r.append(f"v_or_b32 v{V_PK+j}, 0, v{V_XR+j}")
                        else: r += [f"v_lshlrev_b32 v{V_UT+2*j}, 16, v{V_XR+j}", f"v_and_b32 v{V_UT+2*j+1}, s{S_MASK}, v{V_XR+j}"]
                return r + ["s_set_gpr_idx_off"]
            def xw(g, v):
                w = k1_xw(g)
                e(w[0]); e(v[0] if v else "s_nop 0")
                for x in w[2:]: e(x)
                for x in v[1:]: e(x)
            xa = k1_xadv()
            dma([])
            for half in range(2):
                for x in unp([2 * half, 2 * half + 1]): e(x)
                for g in (2 * half, 2 * half + 1):
                    n = N[g] if g >= NPRE else []
                    dma(n[:6]); dma(n[6:11])
                    if n: e(k1_xw(g)[0]); e(n[11]); [e(x) for x in k1_xw(g)[2:]]
                    else: xw(g, [])
            for x in xa: e(x)
        assert not mem
    weave([([x for x in g[:2] if x != "s_nop 0"], g[2]) for g in D])
    for x in D[8][3:]: e(x)
    e(f"s_add_u32 s{S_CNT}, s{S_CNT}, 1")
    def acc(k):
        if "lmarks" in X:
            e("s_memtime s[98:99]"); e("s_waitcnt lgkmcnt(0)"); e("s_sub_u32 s3, s98, s97"); e("s_mov_b32 s97, s98"); e(f"s_add_u32 s{k}, s{k}, s3")
    acc(94)
    e("s_waitcnt vmcnt(9) lgkmcnt(0)")
    acc(95)
    e("s_barrier")
    acc(96)
    e(f"s_cmp_lt_u32 s{S_CNT}, 6")
    e("s_cbranch_scc1 K1_PROD_loop")
    if "lmarks" in X:
        for k in range(3): e(f"v_writelane_b32 v255, s{94+k}, {24+k}")
    V_KF, V_PO, V_O, V_PQ, V_WO, V_AS = 28, 36, 44, 76, 124, 188
    e(f"s_lshl_b32 s3, s{S_NT}, 7")
    e("s_add_u32 s12, s30, s3"); e("s_addc_u32 s13, s31, 0"); e(f"s_sub_u32 s14, {512*1024}, s3"); e("s_mov_b32 s15, 0x00020000")
    e("s_add_u32 s16, s84, s3"); e("s_addc_u32 s17, s85, 0"); e(f"s_sub_u32 s18, {1376*1024}, s3"); e("s_mov_b32 s19, 0x00020000")
    e(f"s_lshl_b32 s64, s{S_Q}, 10")
    e(f"s_lshl_b32 s65, s{S_Q}, 17")
    e(f"s_lshl_b32 s67, s{S_R2}, 14")
    e(f"s_add_u32 s68, s{S_RY}, s{S_UH}"); e("s_lshl_b32 s68, s68, 14"); e(f"s_lshl_b32 s3, s{S_TG}, 13"); e("s_add_u32 s68, s68, s3")
    def wo_batch():
        for p in range(16):
            e(f"s_add_u32 m0, s64, {(0 if p < 8 else 36*2048) + 4096*(p%8)}")
            e("s_add_u32 s66, s65, s67" if p % 2 == 0 else "s_add_u32 s66, s66, 8192")
            e(f"buffer_load_dwordx4 v{V_DV}, s[12:15], s66 offen lds")
            if p % 2: e("s_add_u32 s67, s67, 16384"); e("s_and_b32 s67, s67, 0x1ffff")
    def rounds(sig, pi, n):
        for i in range(n):
            e(f"s_add_u32 s66, s68, {(pi + 2*i) * 16384}")
            if sig + 2*i == 26:
                e(f"s_lshl_b32 s69, s{S_UH}, 18"); e("s_add_u32 s66, s66, s69")
            e(f"s_sub_u32 s69, s66, {86*16384}")
            e(f"s_cselect_b32 s66, s66, s69")
            e(f"s_add_u32 m0, s64, {(sig + 2*i) * 2048}")
            e("s_nop 0")
            e(f"buffer_load_dwordx4 v{V_DV}, s[16:19], s66 offen lds")
    def early(sig, n):
        for i in range(n):
            sg = sig + 2 * i
            rounds(sg, sg + 8 if sg < 27 else sg + 24, 1)
    def lsig(off):
        e("s_mov_b64 exec, 1"); e(f"ds_add_u32 v27, v7 offset:{off}"); e("s_mov_b64 exec, -1")
    def lwait(off, n, tag, slp=0):
        lab(f"K_lw{tag}")
        if slp: e(f"s_sleep {slp}")
        e(f"ds_read_b32 v6, v27 offset:{off}"); e("s_waitcnt lgkmcnt(0)")
        e("v_readfirstlane_b32 s66, v6"); e(f"s_cmp_lt_u32 s66, {n}"); e(f"s_cbranch_scc1 K_lw{tag}")
    def tr_lane(dst):
        e("v_lshrrev_b32 v3, 5, v1"); e("v_bfe_u32 v4, v1, 2, 2"); e("v_lshl_add_u32 v3, v3, 2, v4"); e("v_lshlrev_b32 v3, 7, v3")
        e("v_bfe_u32 v4, v1, 3, 1"); e("v_lshl_add_u32 v3, v4, 6, v3")
        e("v_bfe_u32 v4, v1, 4, 1"); e("v_lshl_add_u32 v3, v4, 5, v3")
        e("v_and_b32 v4, 3, v1"); e(f"v_lshl_add_u32 v{dst}, v4, 3, v3")
    def wo_read(h0):
        for i in range(4):
            for nf in range(2):
                for rd in range(2):
                    e(f"ds_read_b64_tr_b16 {vr(V_WO+8*(h0+i)+4*nf+2*rd,2)}, v{12+nf} offset:{i*8192 + rd*4096}")
        e("s_waitcnt lgkmcnt(0)")
    e(f"buffer_load_dword v2, off, s[24:27], 0 {SC}")
    e("s_lshr_b32 s88, s2, 3"); e(f"s_lshl2_add_u32 s88, s88, s{S_Q}"); e("s_lshl_b32 s3, s2, 4"); e("s_add_u32 s88, s88, s3")
    e("s_and_b32 s88, s88, 127"); e("s_lshl_b32 s88, s88, 12")
    e("s_mov_b64 s[8:9], s[30:31]"); e("s_add_u32 s10, s88, 4096")
    e("v_lshlrev_b32 v20, 7, v1")
    e("buffer_load_dword v20, v20, s[8:11], s88 offen")
    R5 = [(54 + 2*i, 2*i) for i in range(4)] + [(62 + 2*i, 43 + 2*i) for i in range(4)]
    RR = [capture(lambda: rounds(sg, pi, 1)) for sg, pi in R5]
    weave([([x.strip() for x in r[:4]], r[5].strip()) for r in RR])
    tr_lane(12)
    e("v_add_u32 v12, s64, v12"); e("v_xor_b32 v13, 64, v12")
    e("s_waitcnt vmcnt(9) lgkmcnt(0)")
    e("s_setprio 0")
    e("s_barrier")
    e("s_mov_b32 s90, 0")
    lab("K1_zpoll")
    e("v_readfirstlane_b32 s66, v2")
    e("s_cmp_lg_u32 s66, 0"); e("s_cbranch_scc1 K1_zdone")
    e("s_sleep 4")
    e(f"buffer_load_dword v2, off, s[24:27], 0 {SC}")
    e("s_add_u32 s90, s90, 1"); e("s_cmp_lt_u32 s90, 0x100000")
    e("s_waitcnt vmcnt(0)")
    e("s_cbranch_scc1 K1_zpoll")
    lab("K1_zdone")
    early(16, 9)
    e("s_barrier")
    e(f"v_mov_b32 v27, {LCNT}"); e("v_mov_b32 v7, 1")
    NE = int(opt('ne', '0'))
    wo_batch()
    early(34, 1); early(52, 1)
    e("s_waitcnt vmcnt(10)")
    lsig(4)
    wo_read(0)
    e(f"v_add_u32 v12, {36*2048}, v12"); e(f"v_add_u32 v13, {36*2048}, v13")
    early(0, NE)
    e(f"s_waitcnt vmcnt({2 + NE})")
    wo_read(4)
    e(f"v_lshlrev_b32 v10, 4, v1")
    e(f"s_mul_i32 s3, s{S_Q}, 8704"); e(f"s_add_u32 s3, s3, {KV_OFF}")
    e("s_add_u32 s4, s38, s3"); e("s_addc_u32 s5, s39, 0"); e("s_movk_i32 s6, 8704"); e("s_mov_b32 s7, 0x00020000")
    e(f"s_mul_i32 s3, s{S_MT}, {2*NKS}"); e(f"s_lshl_b32 s65, s{S_Q}, 3"); e("s_add_u32 s3, s3, s65"); e("s_add_u32 s3, s3, 86"); e("s_lshl_b32 s70, s3, 10")
    e(f"s_mul_i32 s3, s{S_Q}, 4352"); e(f"s_add_u32 s3, s3, {KVP}")
    e("v_lshlrev_b32 v11, 3, v1"); e("v_add_u32 v11, s3, v11")
    e("v_and_b32 v3, 31, v1"); e("v_max_u32 v3, 15, v3"); e("v_lshlrev_b32 v3, 5, v3"); e("v_lshrrev_b32 v4, 5, v1")
    e("v_lshl_add_u32 v3, v4, 4, v3"); e(f"s_sub_u32 s3, s3, {15*32}"); e("v_add_u32 v14, s3, v3")
    e(f"s_lshr_b32 s71, s{S_MT}, 1"); e("s_lshl_b32 s71, s71, 7"); e(f"s_add_u32 s71, s71, {FLG_OFF + 2048}")
    e(f"s_mov_b32 s89, {fbits(1e-6)}")
    e(f"s_lshl_b32 s67, s{S_R2}, 10"); e(f"s_mul_i32 s88, s{S_R2}, 544")
    e("s_mov_b32 s90, 0"); e("v_lshlrev_b32 v4, 2, v1")
    e("s_barrier")
    if "now2" not in X:
        early(36, 8); early(2 * NE, 8 - NE)
        rounds(54, 35, 4); rounds(62, 78, 4)
    e("s_movk_i32 s65, 4096"); e("s_movk_i32 s69, 8192")
    e("s_waitcnt vmcnt(8)")
    lsig(12)
    def pq(i):
        e("s_add_u32 s66, s70, s67")
        e(f"buffer_load_dwordx4 {vr(V_PQ+8*(i%6),4)}, v10, s[20:23], s66 offen {SC}")
        e(f"s_add_u32 s66, s66, {NKS*1024}")
        e(f"buffer_load_dwordx4 {vr(V_PQ+8*(i%6)+4,4)}, v10, s[20:23], s66 offen {SC}")
        e("s_add_u32 s67, s67, 1024"); e("s_and_b32 s67, s67, 0x1fff")
    def kvld():
        for i in range(9):
            e(f"buffer_load_dwordx4 {vr(V_AS+4*i,4)}, v10, s[4:7], {['0','s65','s69'][i//4]} offen offset:{1024*(i%4)} {SC}")
    def kvcv(younger):
        for i in range(9):
            e(f"s_waitcnt vmcnt({younger + 8 - i})")
            e(f"v_cvt_pk_bf16_f32 v{V_AS+4*i}, v{V_AS+4*i}, v{V_AS+4*i+1}")
            e(f"v_cvt_pk_bf16_f32 v{V_AS+4*i+1}, v{V_AS+4*i+2}, v{V_AS+4*i+3}")
            if i == 8: e("s_mov_b64 exec, 0xffffffff")
            e(f"ds_write_b64 v11, {vr(V_AS+4*i,2)} offset:{512*i}")
        e("s_mov_b64 exec, -1")
    e("s_waitcnt vmcnt(0)")
    lsig(8)
    e(f"s_cmp_eq_u32 s{S_WAVE}, 4"); e("s_cbranch_scc0 K2_swait")
    e("s_mov_b64 exec, 7")
    lab("K2_spoll")
    e(f"buffer_load_dword v2, v4, s[20:23], s71 offen {SC}")
    e("s_add_u32 s90, s90, 1")
    e("s_waitcnt vmcnt(0)")
    e("v_cmp_ne_u32 vcc, 0, v2")
    e("s_cmp_eq_u32 vcc_lo, 7"); e("s_cbranch_scc1 K2_sset")
    e(f"s_sleep {opt('slp','3')}")
    e("s_cmp_lt_u32 s90, 0x100000"); e("s_cbranch_scc1 K2_spoll")
    lab("K2_sset")
    lsig(20)
    lab("K2_swait")
    lwait(20, 1, "s", 1)
    st.mark(7)
    e(f"s_setprio {opt('sp','1')}")
    kvld()
    pq(0); pq(1); pq(2)
    kvcv(6)
    e("s_waitcnt vmcnt(4)")
    def kf(i):
        e("v_add_u32 v3, s88, v14")
        e("s_add_u32 s88, s88, 544"); e(f"s_cmp_eq_u32 s88, {8*544}"); e("s_cselect_b32 s88, 0, s88")
        e(f"ds_read_b128 {vr(V_KF+4*(i%2),4)}, v3")
    def omf(k): return mfma(V_O + 16 * (k % 2), V_KF + 4 * ((k // 2) % 2), V_PQ + 8 * ((k // 2) % 6) + 4 * (k % 2), "0")
    def smf(k, nf): return mfma(V_AS + 32 * (k % 2) + 16 * nf, V_WO + 8 * (k // 2) + 4 * nf, V_PO + 4 * (k % 2), "0" if k < 2 else None)
    def valu(k):
        o = V_O + 16 * (k % 2)
        return [f"v_add_f32 v{o}, s89, v{o}", f"v_rcp_f32 v{o}, v{o}", "s_nop 0"] + \
               [f"v_mul_f32 v{o+8+j}, v{o}, v{o+8+j}" for j in range(8)] + \
               [f"v_cvt_pk_bf16_f32 v{V_PO+4*(k%2)+j}, v{o+8+2*j}, v{o+9+2*j}" for j in range(4)]
    kf(0); kf(1)
    e("s_waitcnt lgkmcnt(1)")
    e(omf(0)); e(omf(1))
    pq(3)
    e("s_nop 4")
    for x in valu(0): e(x)
    for k in range(16):
        v = valu(k + 1) if k < 15 else []
        if k + 2 < 16:
            if k % 2 == 0:
                h = k // 2 + 1
                vm = f" vmcnt({2 * min(2, 7 - h)})"
                e("s_waitcnt lgkmcnt(0)" + vm)
            e(omf(k + 2))
            if k % 2 == 1 and k // 2 + 2 < 8: kf(k // 2 + 2)
            if k % 2 == 1 and k // 2 + 4 < 8: pq(k // 2 + 4)
        else: e("s_nop 0")
        for x in v[:4] if v else ["s_nop 0"]: e(x)
        e(smf(k, 0))
        for x in v[4:10]: e(x)
        e(smf(k, 1))
        for x in v[10:]: e(x)
    e(f"s_mul_i32 s3, s{S_UH}, {27*2048}"); e(f"s_lshl_b32 s65, s{S_TG}, 14"); e("s_add_u32 s3, s3, s65"); e("v_add_u32 v3, s3, v10")
    st.mark(8)
    e("s_barrier")
    e("s_nop 4")
    for r in range(16): e(f"ds_write_b128 v3, {vr(V_AS+4*r,4)} offset:{1024*r}")
    e("s_waitcnt lgkmcnt(0)")
    e("s_barrier")
    if STAMP:
        st.mark(9); st.dump(S_WAVE, "K_END")
    e("s_endpgm")
    lab("K1_CONS")
    e("s_mov_b64 s[92:93], s[4:5]")
    e(f"s_lshl2_add_u32 s3, s2, s{S_WAVE}"); e("s_cmp_eq_u32 s3, 1"); e("s_cbranch_scc0 K1_nozero")
    for j in range(4): e(f"v_mov_b32 v{4+j}, 0")
    e("v_lshlrev_b32 v3, 4, v1")
    e(f"s_mov_b32 s3, {KV_OFF}")
    lab("K1_zloop")
    for j in range(4): e(f"buffer_store_dwordx4 v[4:7], v3, s[20:23], s3 offen offset:{1024*j} {SC}")
    e("s_add_u32 s3, s3, 4096"); e(f"s_cmp_lt_u32 s3, {WS_USED}"); e("s_cbranch_scc1 K1_zloop")
    e("v_mov_b32 v2, 1")
    e("s_waitcnt vmcnt(0)")
    e("s_mov_b64 exec, 1")
    e(f"buffer_store_dword v2, off, s[24:27], 0 {SC}")
    e("s_mov_b64 exec, -1")
    lab("K1_nozero")
    e("v_and_b32 v3, 31, v1"); e("v_lshrrev_b32 v4, 5, v1")
    e("v_bfe_u32 v5, v3, 4, 1"); e("v_xor_b32 v5, v5, v4")
    e(f"s_lshl_b32 s3, s{S_TG}, 13"); e(f"s_cmp_eq_u32 s{S_TYPE}, 2"); e("s_cselect_b32 s3, 0, s3")
    e("v_lshrrev_b32 v6, 3, v3"); e("v_lshl_add_u32 v6, v6, 10, s3"); e("v_and_b32 v3, 7, v3"); e("v_lshl_add_u32 v6, v3, 5, v6")
    e(f"v_lshl_add_u32 v{V_XA}, v5, 4, v6")
    e(f"s_cmp_eq_u32 s{S_TYPE}, 2"); e(f"s_movk_i32 s3, {SEGB}"); e("s_cselect_b32 s3, 128, s3"); e("s_cselect_b32 s66, 5, 7"); e(f"s_cselect_b32 s67, s{S_Q}, s{S_UH}")
    e("v_bfe_u32 v3, v1, 4, 1"); e(f"v_mul_u32_u24 v3, s3, v3")
    e("v_bfe_u32 v5, v1, 2, 2"); e("v_lshl_add_u32 v5, v4, 3, v5"); e("v_mul_u32_u24 v5, 288, v5")
    e("v_and_b32 v6, 3, v1"); e("v_lshlrev_b32 v6, 3, v6")
    e(f"s_lshl_b32 s3, s67, s66"); e(f"s_add_u32 s3, s3, {WBASE}")
    e(f"v_add3_u32 v{V_WA}, v3, v5, v6"); e(f"v_add_u32 v{V_WA}, s3, v{V_WA}")
    e("v_mov_b64 v[32:33], 0"); e("v_mov_b64 v[34:35], 0"); e("s_nop 1")
    for r in range(9): e(mfma(V_ACC + 16 * r, 32, 32, "0"))
    e(f"s_mov_b32 s{S_RST}, 0")
    e(f"v_mov_b32 v27, {LCNT}"); e(f"ds_write_b128 v27, v[32:35]"); e(f"ds_write_b128 v27, v[32:35] offset:16")
    e("s_barrier")
    st.mark()
    e("s_cmp_eq_u32 s78, 0"); e("s_cbranch_scc1 K1_w0")
    lab("K1_w0done")
    e("s_barrier")
    if LW1: e("s_cmp_lg_u32 s78, 0"); e("s_cbranch_scc1 K1_w1done")
    for g in k1_dma()[:5]:
        for x in g: e(x)
    lab("K1_w1done")
    e("s_waitcnt vmcnt(5)")
    e("s_barrier")
    st.mark()
    e("s_setprio 1")
    e(f"s_cmp_eq_u32 s{S_TYPE}, 2"); e("s_cbranch_scc1 K1_S8")
    e(f"s_cmp_eq_u32 s{S_TYPE}, 1"); e("s_cbranch_scc0 K1_N8")
    e(f"s_cmp_eq_u32 s{S_UH}, 1"); e("s_cbranch_scc1 K1_N9b")
    for var in ("N9a", "N9b", "N8", "S8"): k1_cons_loop(var)
    lab("K1_EPI")
    st.mark()
    e("s_waitcnt lgkmcnt(0)")
    e("v_lshlrev_b32 v10, 4, v1")
    e(f"s_lshl_b32 s3, s{S_MB}, 2"); e(f"s_lshl_b32 s64, s{S_TG}, 1"); e("s_add_u32 s3, s3, s64")
    e(f"s_mul_i32 s64, s3, {NKS}"); e(f"s_add_u32 s64, s64, s{S_U0}")
    e(f"s_add_u32 s66, s3, s{S_UH}"); e(f"s_mul_i32 s66, s66, {NKS}"); e(f"s_add_u32 s66, s66, s{S_U0}"); e("s_add_u32 s66, s66, 8"); e("s_lshl_b32 s66, s66, 10")
    e(f"s_lshl_b32 s3, s{S_UH}, 2"); e("s_add_u32 s64, s64, s3"); e("s_lshl_b32 s64, s64, 10")
    e(f"s_add_u32 s65, s64, {NKS*1024}")
    e(f"s_cmp_eq_u32 s{S_TYPE}, 2"); e("s_cbranch_scc1 K1_EPI_KV")
    e(f"s_cmp_eq_u32 s{S_TYPE}, 3"); e("s_cbranch_scc1 K1_EPI_Q")
    c0 = -2 * 0.7978845608028654 * LOG2E; c1 = c0 * 0.044715
    e(f"v_mov_b32 v12, {fbits(c1)}"); e(f"v_mov_b32 v13, {fbits(c0)}")
    def f_epi(items, tb):
        pr = []
        for k, (acc, soff, imm) in enumerate(items):
            pr += [(acc + 2 * j, acc + 8 + 2 * j, tb + 8 * k + 2 * j) for j in range(4)]
        n = 2 * len(pr); o = tb + 16
        for g, u, tt in pr: e(f"v_pk_mul_f32 {vr(tt,2)}, {vr(g,2)}, {vr(g,2)}")
        for g, u, tt in pr: e(f"v_pk_fma_f32 {vr(tt,2)}, {vr(tt,2)}, v[12:13], v[12:13] op_sel:[0,0,1] op_sel_hi:[1,0,1]")
        for g, u, tt in pr: e(f"v_pk_mul_f32 {vr(tt,2)}, {vr(tt,2)}, {vr(g,2)}")
        for j in range(n): e(f"v_exp_f32 v{tb+j}, v{tb+j}")
        for g, u, tt in pr: e(f"v_pk_mul_f32 {vr(g,2)}, {vr(g,2)}, {vr(u,2)}")
        for g, u, tt in pr: e(f"v_pk_add_f32 {vr(tt,2)}, {vr(tt,2)}, 1.0 op_sel_hi:[1,0]")
        for j in range(n): e(f"v_rcp_f32 v{tb+j}, v{tb+j}")
        for g, u, tt in pr: e(f"v_pk_mul_f32 {vr(g,2)}, {vr(g,2)}, {vr(tt,2)}")
        for j, (g, u, tt) in enumerate(pr): e(f"v_cvt_pk_bf16_f32 v{o+j}, v{g}, v{g+1}")
        for k, (acc, soff, imm) in enumerate(items):
            e(f"buffer_store_dwordx4 {vr(o+4*k,4)}, v10, s[20:23], s{soff} offen offset:{imm} {HSC}")
    for a in range(4):
        f_epi([(V_ACC + 32 * a, 64, 1024 * a), (V_ACC + 32 * a + 16, 65, 1024 * a)], 32 + 24 * (a % 2))
    e(f"s_cmp_eq_u32 s{S_TYPE}, 1"); e("s_cbranch_scc0 K1_JOIN")
    f_epi([(V_ACC + 128, 66, 0)], 32)
    e("s_branch K1_JOIN")
    lab("K1_EPI_Q")
    e(f"s_mov_b32 s68, {fbits(LOG2E)}"); e(f"s_mov_b32 s69, {fbits(1e-6)}")
    e("s_add_u32 s66, s64, 8192"); e("s_add_u32 s67, s65, 8192")
    def phi(acc, t):
        for j in range(8): e(f"v_pk_mul_f32 {vr(t+2*j,2)}, {vr(acc+2*j,2)}, s[68:69] op_sel_hi:[1,0]")
        for j in range(16): e(f"v_exp_f32_e64 v{t+j}, v{t+j} clamp")
        for j in range(16): e(f"v_max_f32 v{acc+j}, s69, v{acc+j}")
        for j in range(8): e(f"v_pk_add_f32 {vr(acc+2*j,2)}, {vr(acc+2*j,2)}, {vr(t+2*j,2)}")
    for i in range(8):
        a, f = i >> 1, i & 1
        acc = V_ACC + 16 * i; o = 48 + 8 * (i % 2)
        phi(acc, 32)
        for j in range(8): e(f"v_cvt_pk_bf16_f32 v{o+j}, v{acc+2*j}, v{acc+2*j+1}")
        e(f"buffer_store_dwordx4 {vr(o,4)}, v10, s[20:23], s{64+f} offen offset:{1024*a} {HSC}")
        e(f"buffer_store_dwordx4 {vr(o+4,4)}, v10, s[20:23], s{66+f} offen offset:{1024*a} {HSC}")
    e("s_branch K1_JOIN")
    lab("K1_EPI_KV")
    e(f"s_mov_b32 s68, {fbits(LOG2E)}"); e(f"s_mov_b32 s69, {fbits(1e-6)}")
    for r in range(4): e(f"v_mov_b32 v{80+r}, s{S_ONES}")
    e("v_and_b32 v3, 3, v1"); e("v_bfe_u32 v4, v1, 2, 1"); e("v_lshl_add_u32 v3, v4, 3, v3"); e("v_bfe_u32 v4, v1, 3, 1"); e("v_lshl_add_u32 v3, v4, 2, v3")
    e("v_lshrrev_b32 v4, 5, v1"); e("v_lshl_add_u32 v3, v4, 6, v3"); e("v_bfe_u32 v4, v1, 4, 1"); e("v_mul_u32_u24 v4, 4352, v4")
    e("v_lshl_add_u32 v3, v3, 2, v4")
    e(f"s_sub_u32 s3, s{S_T}, 10"); e(f"s_lshl3_add_u32 s3, s3, s{S_Q}"); e("s_mul_i32 s3, s3, 1088"); e(f"s_add_u32 s64, s3, {KV_OFF}")
    e("s_mov_b32 s66, 0xffff0000"); e("s_mov_b32 s67, 0xffff0000")
    DK, DZ = 224, V_ACC + 64
    prev = []
    for f in range(4):
        ak = V_ACC + 16 * f; av = V_ACC + 64 + 16 * f; A = 48 + 16 * (f % 2); B = 56 + 16 * (f % 2); t = 32
        for j in range(8): e(f"v_pk_mul_f32 {vr(t+2*j,2)}, {vr(ak+2*j,2)}, s[68:69] op_sel_hi:[1,0]")
        for j in range(16):
            if j % 3 == 0 and prev: e(prev.pop(0))
            e(f"v_exp_f32_e64 v{t+j}, v{t+j} clamp")
        for j in range(16): e(f"v_max_f32 v{ak+j}, s69, v{ak+j}")
        for j in range(8): e(f"v_cvt_pk_bf16_f32 v{B+j}, v{av+2*j}, v{av+2*j+1}")
        for j in range(8): e(f"v_pk_add_f32 {vr(ak+2*j,2)}, {vr(ak+2*j,2)}, {vr(t+2*j,2)}")
        for j in range(8): e(f"v_cvt_pk_bf16_f32 v{A+j}, v{ak+2*j}, v{ak+2*j+1}")
        prev = [mfma(DK, B, A, "0" if f == 0 else None), mfma(DK, B + 4, A + 4), mfma(DZ, 80, A, "0" if f == 0 else None), mfma(DZ, 80, A + 4)]
    if "kmarks" in X: st.mark(10)
    e("s_nop 1")
    for x in prev: e(x)
    e("s_nop 9")
    e("s_mov_b64 exec, s[66:67]")
    for r in range(8): e(f"v_mov_b32 v{DK+r}, v{DK+8+r}")
    e("s_mov_b64 exec, -1")
    for r in range(8):
        e(f"buffer_atomic_add_f32 v{DK+r}, v3, s[20:23], s64 offen offset:{64 + 64*(8*(r//4) + r%4)}")
    e("s_mov_b64 exec, 0xffffffff")
    e(f"buffer_atomic_add_f32 v{DZ}, v3, s[20:23], s64 offen")
    e("s_mov_b64 exec, -1")
    lab("K1_JOIN")
    st.mark()
    V_STG, V_TOK, XU, V_SS, V_AY, V_XRES, V_OUT = 32, 120, 168, 184, 200, 232, 11
    NT = 12
    tr_lane(12)
    e(f"s_lshl_b32 s3, s{S_UH}, 6"); e("v_xor_b32 v12, s3, v12")
    e(f"s_lshl_b32 s3, s{S_UH}, 14"); e(f"s_add_u32 s3, s3, {54*2048}"); e("v_add_u32 v14, s3, v12"); e("v_xor_b32 v15, 64, v14")
    e(f"s_mul_i32 s3, s{S_UH}, {27*2048}"); e("v_add_u32 v12, s3, v12"); e("v_xor_b32 v13, 64, v12")
    lwait(4, 4, "g")
    for j in range(8):
        for nf in range(2):
            for rd in range(2):
                e(f"ds_read_b64_tr_b16 {vr(V_STG+8*j+4*nf+2*rd,2)}, v{14+nf} offset:{j*2048 + rd*1024}")
    e(f"s_lshl_b32 s64, s{S_MB}, 7"); e(f"s_lshl2_add_u32 s64, s{S_T}, s64"); e(f"s_cmp_eq_u32 s{S_TYPE}, 3"); e(f"s_cselect_b32 s3, {2048-52}, 0")
    e("s_add_u32 s64, s64, s3"); e(f"s_add_u32 s64, s64, {FLG_OFF}")
    e("v_mov_b32 v7, 1")
    e("v_and_b32 v3, 31, v1"); e("v_lshrrev_b32 v4, 5, v1"); e(f"v_lshlrev_b32 v{V_OUT}, 10, v3"); e(f"v_lshl_add_u32 v{V_OUT}, v4, 4, v{V_OUT}")
    e(f"s_lshl_b32 s77, s{S_MT}, 16"); e(f"s_lshl_b32 s3, s{S_NT}, 7"); e("s_add_u32 s77, s77, s3")
    e(f"s_lshl_b32 s3, s{S_TG}, 15"); e("s_add_u32 s77, s77, s3"); e(f"s_lshl_b32 s3, s{S_UH}, 6"); e("s_add_u32 s77, s77, s3")
    srd(16, 92, 93, 2097152)
    e(f"s_lshl1_add_u32 s3, s{S_MT}, s{S_TG}"); e(f"s_mul_i32 s3, s3, {NKS*1024}")
    e("s_add_u32 s8, s38, s3"); e("s_addc_u32 s9, s39, 0"); e(f"s_mov_b32 s10, {86*1024}"); e("s_mov_b32 s11, 0x00020000")
    e(f"s_mul_i32 s79, s{S_UH}, 43"); e(f"s_add_u32 s79, s79, s{S_RY}"); e("s_sub_u32 s3, s79, 86"); e("s_cselect_b32 s79, s79, s3"); e("s_lshl_b32 s79, s79, 10")
    e("s_waitcnt vmcnt(0)")
    if "kmarks" in X: st.mark(13)
    e("s_mov_b64 exec, 1")
    e("ds_add_rtn_u32 v6, v27, v7")
    e("s_waitcnt lgkmcnt(0)")
    e("v_readfirstlane_b32 s66, v6")
    e("s_cmp_eq_u32 s66, 3"); e("s_cbranch_scc0 K2_noflag")
    e(f"s_cmp_eq_u32 s{S_TYPE}, 2"); e("s_cbranch_scc1 K2_kvflag")
    e(f"buffer_store_dword v7, off, s[20:23], s64 {SC if 'plainflag' not in X else ''}")
    if "wbl2" in X:
        e(f"s_cmp_eq_u32 s{S_T}, 9"); e("s_cbranch_scc0 K2_noflag"); e("buffer_wbl2 sc1")
    e("s_branch K2_noflag")
    lab("K2_kvflag")
    e("v_mov_b32 v6, 1")
    e(f"buffer_atomic_add v6, off, s[24:27], 0 offset:128 {SC}")
    e("s_waitcnt vmcnt(0)")
    e("v_readfirstlane_b32 s66, v6")
    e("s_and_b32 s66, s66, 63")
    e("s_cmp_eq_u32 s66, 63"); e("s_cbranch_scc0 K2_noflag")
    e("s_mov_b64 exec, 0xffff")
    e("v_lshlrev_b32 v6, 7, v1"); e(f"s_mov_b32 s66, {FLG_OFF + 2048}")
    e(f"buffer_store_dword v7, v6, s[20:23], s66 offen {SC}")
    lab("K2_noflag")
    e("s_mov_b64 exec, -1")
    st.mark()
    e("s_barrier")
    e(f"s_setprio {opt('yp','0')}")
    if "noxres" not in X:
        e(f"buffer_load_dwordx4 {vr(V_XRES,4)}, v{V_OUT}, s[16:19], s77 offen")
        e(f"buffer_load_dwordx4 {vr(V_XRES+4,4)}, v{V_OUT}, s[16:19], s77 offen offset:32")
    e(f"s_mul_i32 s3, s{S_UH}, {27*2048}"); e(f"s_lshl_b32 s65, s{S_TG}, 12"); e("s_add_u32 s64, s3, s65"); e(f"s_add_u32 s64, s64, 32768")
    e("v_add_u32 v16, s64, v10")
    e(f"s_sub_u32 s64, {27*2048 + 32768}, s3"); e("s_add_u32 s64, s64, s65"); e("v_add_u32 v17, s64, v10")
    e(f"s_lshl_b32 s64, s{S_TG}, 13"); e(f"s_lshl_b32 s65, s{S_UH}, 12"); e("s_add_u32 s64, s64, s65"); e("v_add_u32 v18, s64, v10"); e(f"v_add_u32 v19, {27*2048}, v18")
    e(f"s_mov_b32 s68, {fbits(-LOG2E)}"); e(f"s_mov_b32 s70, {86*1024}"); e("s_movk_i32 s71, 1024")
    e("s_waitcnt vmcnt(0)")
    srd(16, 86, 87, 2097152)
    for a_, b_ in ((0, 2), (1, 3), (4, 6), (5, 7)): e(f"v_permlane32_swap_b32 v{V_XRES+a_}, v{V_XRES+b_}")
    for j in range(8):
        e(f"v_lshlrev_b32 v{XU+2*j}, 16, v{V_XRES+j}"); e(f"v_and_b32 v{XU+1+2*j}, s{S_MASK}, v{V_XRES+j}")
    e(f"s_cmp_eq_u32 s{S_WAVE}, 0"); e("s_cbranch_scc0 K2_ywait")
    e("v_lshlrev_b32 v4, 2, v1")
    e(f"s_lshr_b32 s64, s{S_MT}, 1"); e("s_lshl_b32 s64, s64, 7"); e(f"s_add_u32 s64, s64, {FLG_OFF}")
    e("s_mov_b32 s90, 0"); e("s_mov_b64 exec, 0x3ff")
    lab("K2_poll")
    e(f"buffer_load_dword v5, v4, s[20:23], s64 offen {SC}")
    e("s_add_u32 s90, s90, 1")
    e("s_waitcnt vmcnt(0)")
    e("v_cmp_ne_u32 vcc, 0, v5")
    e("s_cmp_eq_u32 vcc_lo, 0x3ff"); e("s_cbranch_scc1 K2_yset")
    e(f"s_sleep {opt('slp','3')}")
    e("s_cmp_lt_u32 s90, 0x100000"); e("s_cbranch_scc1 K2_poll")
    lab("K2_yset")
    lsig(16)
    lab("K2_ywait")
    lwait(16, 1, "y", 1)
    st.mark()
    NS = 43
    def tok(j):
        e(f"buffer_load_dwordx4 {vr(V_TOK+4*(j%NT),4)}, v10, s[8:11], s79 offen {SC}")
        if j < NS - 1: e("s_add_u32 s79, s79, s71"); e("s_cmp_eq_u32 s79, s70"); e("s_cselect_b32 s79, 0, s79")
    TD = int(opt('td', '5')); ZP = int(opt('zp', '26')); Z2 = int(opt('z2', '36'))
    def wslot(j):
        if j <= ZP + 9: return V_STG + 8 * (j % 11)
        return wslot(ZP - 1 + (j - ZP - 10) % 3)
    def wr(j):
        b = wslot(j)
        for nf in range(2):
            for rd in range(2):
                if j < 35: e(f"ds_read_b64_tr_b16 {vr(b+4*nf+2*rd,2)}, v{12+nf} offset:{(j-8)*2048 + rd*1024}")
                else: e(f"ds_read_b64_tr_b16 {vr(b+4*nf+2*rd,2)}, v{14+nf} offset:{(j-35)*2048 + rd*1024}")
    used = {wslot(j) for j in range(ZP + 10, NS)}
    free = [V_STG + 8 * k for k in range(11) if V_STG + 8 * k not in used]
    assert Z2 >= ZP + 10 and ZP >= 18
    tq = [f + 4 * h for f in free for h in range(2)][:12]
    sread = [f"ds_read_b128 {vr(V_SS+4*r,4)}, v18 offset:{1024*r}" for r in range(4)]
    for k in range(1, 4):
        sread += [f"ds_read_b128 {vr(tq[4*(k-1)+r],4)}, v{18 + k//2} offset:{16384*(k%2) + 1024*r}" for r in range(4)]
    sadd = [f"v_add_f32 v{V_SS+4*r+c}, v{V_SS+4*r+c}, v{tq[4*(k-1)+r]+c}" for k in range(1, 4) for r in range(4) for c in range(4)]
    for j in range(TD): tok(j)
    lwait(12, 4, "r")
    for j in range(8, 11): wr(j)
    first_late = min(j for j in range(NS) if (j + 10 >= 35 and j < ZP) or (j >= ZP + 8 and j + 2 >= 35))
    for j in range(NS):
        if "ymarks" in X and j in (1, 8, 16, ZP, Z2): st.mark()
        if j == ZP: e("s_waitcnt lgkmcnt(0)"); e("s_barrier")
        if j == Z2: e("s_barrier")
        if "ymarks" in X and j == ZP: st.mark()
        if j == first_late: lwait(8, 4, "l")
        if j + TD < NS: tok(j + TD)
        nrd = 0
        if Z2 <= j < Z2 + 4:
            for x in sread[4*(j-Z2):4*(j-Z2)+4]: e(x)
        if 1 <= j < ZP: wr(j + 10)
        elif j >= ZP + 8 and j + 2 < NS: wr(j + 2)
        lg = ""
        if 8 <= j < ZP: lg = " lgkmcnt(12)"
        elif j >= ZP + 10: lg = f" lgkmcnt({4 * min(2, NS - 1 - j)})"
        e(f"s_waitcnt vmcnt({min(TD, NS - 1 - j)})" + lg)
        adds = []
        if j >= Z2 + 5: adds = [sadd.pop(0) for _ in range(min(len(sadd), 10))]
        for i_, nf in enumerate((1, 0)):
            e(mfma(V_AY + 16 * nf, wslot(j) + 4 * nf, V_TOK + 4 * (j % NT), "0" if j == 0 else None))
            for x in adds[5*i_:5*i_+5]: e(x)
    st.mark()
    for x in sadd: e(x)
    e("s_nop 10")
    for r in range(4): e(f"ds_write_b128 v16, {vr(V_AY+16+4*r,4)} offset:{1024*r}")
    e("s_waitcnt lgkmcnt(0)")
    e("s_barrier")
    for r in range(4): e(f"ds_read_b128 {vr(32+4*r,4)}, v17 offset:{1024*r}")
    for r in range(4):
        e(f"s_waitcnt lgkmcnt({3-r})")
        for j in (2*r, 2*r+1): e(f"v_pk_add_f32 {vr(V_AY+2*j,2)}, {vr(V_AY+2*j,2)}, {vr(32+2*j,2)}")
    for j in range(8): e(f"v_pk_mul_f32 {vr(32+2*j,2)}, {vr(V_AY+2*j,2)}, s[68:69] op_sel_hi:[1,0]")
    for j in range(16): e(f"v_exp_f32 v{32+j}, v{32+j}")
    for j in range(8): e(f"v_pk_mul_f32 {vr(V_AY+2*j,2)}, {vr(V_AY+2*j,2)}, {vr(V_SS+2*j,2)}")
    for j in range(8): e(f"v_pk_add_f32 {vr(32+2*j,2)}, {vr(32+2*j,2)}, 1.0 op_sel_hi:[1,0]")
    for h in range(2):
        for j in range(8*h, 8*h+8): e(f"v_rcp_f32 v{32+j}, v{32+j}")
        for j in range(4*h, 4*h+4): e(f"v_pk_fma_f32 {vr(32+2*j,2)}, {vr(32+2*j,2)}, {vr(V_AY+2*j,2)}, {vr(XU+2*j,2)}")
        for j in range(4*h, 4*h+4): e(f"v_cvt_pk_bf16_f32 v{64+j}, v{32+2*j}, v{33+2*j}")
        e("s_nop 1")
        for a_, b_ in ((0, 2), (1, 3)): e(f"v_permlane32_swap_b32 v{64+4*h+a_}, v{64+4*h+b_}")
        e(f"buffer_store_dwordx4 {vr(64+4*h,4)}, v{V_OUT}, s[16:19], s77 offen offset:{32*h}")
    if "fixspan" in X:
        lab("K_fix")
        e("s_memrealtime s[96:97]"); e("s_waitcnt lgkmcnt(0)"); e("s_sub_u32 s96, s96, s94"); e(f"s_cmp_lt_u32 s96, {opt('fix','5000')}"); e("s_cbranch_scc1 K_fix")
    if STAMP:
        st.mark(); e("s_waitcnt vmcnt(0)"); st.mark()
        st.dump(S_WAVE, "K_END")
    lab("K_END")
    e("s_endpgm")

hdr = f"""; Fused block in one launch: phase 1 = LayerNorm + QKV/gate/up GEMM + phi/GEGLU epilogues + kv reduction,
; @launch grid=(256,1,1) block=(512,1,1) lds=163840
.amdgcn_target "amdgcn-amd-amdhsa--gfx950"
.text"""
kernel()
kd = f""".amdhsa_kernel {NAME}_kernel
  .amdhsa_next_free_vgpr 256
  .amdhsa_next_free_sgpr 102
  .amdhsa_accum_offset 256
  .amdhsa_group_segment_fixed_size 0
  .amdhsa_kernarg_size 80
  .amdhsa_user_sgpr_count 2
  .amdhsa_user_sgpr_kernarg_segment_ptr 1
  .amdhsa_system_sgpr_workgroup_id_x 1
.end_amdhsa_kernel"""
open(OUT, "w").write(hdr + "\n" + "\n".join(L) + '\n.section .rodata,"a"\n.p2align 6\n' + kd + "\n")
```

```python
import sys, struct
STAMP = "--stamp" in sys.argv
OUT = [a for a in sys.argv[1:] if not a.startswith("--")]
NAME = "recurrent_scan__linear_attn_block__glu_gated_geglu__prompt"
OUT = OUT[0] if OUT else f"cdna_kernels/{NAME}.s"
X = set(a[2:] for a in sys.argv if a.startswith("--"))
def opt(name, dflt):
    r = [a[len(name)+3:] for a in sys.argv if a.startswith('--' + name + '=')]
    return r[0] if r else dflt

L = []
PH = [""]
def e(s):
    if PH[0] in ("s", "y") and "plainld" in X and s.startswith("buffer_load"): s = s.replace(" sc0 sc1", "")
    if PH[0] == "s" and "nosv" in X and s.split()[0] in ("v_mul_f32", "v_cvt_pk_bf16_f32", "v_rcp_f32", "v_add_f32", "v_mov_b32", "v_permlane16_swap_b32"): return
    if PH[0] == "s" and "nokv" in X and s.startswith("buffer_load") and ", v11," in s: s = s.replace(", v11,", ", v10,")
    if PH[0] == "s":
        if "nosld" in X and s.startswith("buffer_load_dwordx4"): return
        if "nosmf" in X and s.startswith("v_mfma"): return
        if "nosw" in X and s.startswith("ds_write_b128"): return
    if PH[0] == "y":
        if "noyld" in X and s.startswith("buffer_load_dwordx4"): return
        if "noymf" in X and s.startswith("v_mfma"): return
        if "noyrd" in X and s.startswith("ds_read_b64_tr"): return
    L.append("    " + s)
def lab(s): L.append(s + ":")
def vr(b, n): return f"v[{b}:{b+n-1}]"
def fbits(x): return "0x%08x" % struct.unpack("<I", struct.pack("<f", x))[0]

NKS = 118
KV_OFF = 0x800000
KV_BYTES = 32 * 1088
FLG_OFF = KV_OFF + KV_BYTES
FLG_BYTES = 4096
WS_USED = FLG_OFF + FLG_BYTES
STAMP_OFF = 0x8000000
LOG2E = 1.4426950408889634
B128 = opt("xl", "b128") == "b128"
SC = "sc0 sc1"
HSC = "" if "plainh" in X else SC

def srd(d, lo, hi, size):
    e(f"s_mov_b32 s{d}, s{lo}"); e(f"s_mov_b32 s{d+1}, s{hi}")
    e(f"s_mov_b32 s{d+2}, {size}"); e(f"s_mov_b32 s{d+3}, 0x00020000")

class Stamps:
    def __init__(self): self.n = 0
    def mark(self, i=None):
        if "fixspan" in X and i is None:
            if self.n == int(opt('fixat', '0')): e("s_memrealtime s[94:95]"); e("s_waitcnt lgkmcnt(0)")
            self.n += 1
        if STAMP:
            k = self.n if i is None else i
            e("s_memtime s[98:99]"); e("s_memrealtime s[100:101]"); e("s_waitcnt lgkmcnt(0)")
            e(f"v_writelane_b32 v255, s98, {2*k}"); e(f"v_writelane_b32 v255, s100, {2*k+1}")
            if i is None: self.n += 1
    def dump(self, swave, label):
        if not STAMP: return
        e(f"s_cmp_lg_u32 s{swave}, {opt('sw', '0')}"); e(f"s_cbranch_scc1 {label}")
        srd(4, 38, 39, "0x10000000")
        e("s_lshl_b32 s3, s2, 7"); e(f"s_add_u32 s3, s3, {STAMP_OFF}")
        e("v_lshlrev_b32 v3, 2, v1"); e("s_mov_b64 exec, 0xffffffff")
        if "imarks" in X:
            for k in range(1, 9):
                e(f"v_readlane_b32 s98, v254, {k}"); e("s_nop 3"); e(f"v_writelane_b32 v255, s98, {21+k}")
        e(f"buffer_store_dword v255, v3, s[4:7], s3 offen")
        if "dbgspan" in X:
            e("v_lshlrev_b32 v3, 1, v1"); e("v_add_u32 v3, 6, v3"); e("s_mov_b32 exec_lo, 0x000aaaaa"); e("s_mov_b32 exec_hi, 0")
            e("buffer_atomic_umax v255, v3, s[24:27], 0 offen")
            e("v_not_b32 v4, v255"); e("s_mov_b64 exec, 2")
            e("buffer_atomic_umax v4, off, s[24:27], 0 offset:4")
st = Stamps()

XST = 16384; WBASE = 32768; SEGB = 18560; WST = 36992; KVP = 146432; LCNT = 144000; WOA = 38 * 2048
V_VW = 10
V_VX, V_XW, V_DV = 19, 88, 21
TAB = [4, 5, 0, 10, 6, 1, 11, 14, 7, 8, 2, 12, 9, 3, 13, 15]
V_NA = 22; V_ST = 30; V_UT = 40; V_PK = 72; V_XR = 96
V_XA, V_WA = 22, 26
V_SET = [32, 60]
V_ACC = 96
S_WAVE, S_TG, S_UH, S_MB, S_T, S_STR, S_U0, S_CNT = 40, 41, 42, 43, 44, 45, 46, 47
S_DMAW, S_KW, S_KS, S_HFO, S_Q, S_XI, S_MASK, S_ONES = 48, 49, 50, 51, 52, 53, 54, 55
S_RST, S_DST, S_TYPE, S_STR64, S_STR32, S_TMP, S_TMP2 = 56, 57, 58, 59, 60, 61, 62
S_RW, S_KWEND, S_RX, S_GX, S_XW = 72, 73, 63, 60, 79
S_MT, S_NT, S_R2, S_RY = 74, 75, 76, 91

KS = int(opt('ks', '5')); SPL = opt('spl', '0') == '1'
def k1_dma():
    G = []
    for p in range(9):
        g = [f"s_add_u32 m0, s{S_DMAW}, {1024*p}"]
        g.append(f"s_add_u32 s{S_KS}, s{S_KW}, s{S_HFO}" if p in (0, KS) else "s_nop 0")
        g.append(f"buffer_load_dwordx4 v{V_VW+p}, s[8:11], s{S_KS} offen {opt('wf','')} lds")
        G.append(g)
    G[-1] += [f"s_add_u32 s{S_KW}, s{S_KW}, s{S_STR64}", f"s_add_u32 s{S_DST}, s{S_DST}, 1",
              f"s_cmp_eq_u32 s{S_KW}, s{S_KWEND}", f"s_cselect_b32 s{S_KW}, 0, s{S_KW}",
              f"s_cmp_eq_u32 s{S_DST}, 3", f"s_cselect_b32 s{S_TMP}, {-2*WST & 0xffffffff}, s{S_TMP2}",
              f"s_cselect_b32 s{S_DST}, 0, s{S_DST}", f"s_add_u32 s{S_DMAW}, s{S_DMAW}, s{S_TMP}"]
    return G

def k1_reads(s_, p, var):
    b = V_SET[s_]
    if var == "S8":
        x = lambda f: f"ds_read_b128 {vr(b+4*f,4)}, v{V_XA+p} offset:{4096*f}" if B128 else f"ds_read_b128 {vr(b+4*f,4)}, v{V_XA} offset:{4096*f+256*p}"
        w = lambda a: [f"ds_read_b64_tr_b16 {vr(b+16+4*a+2*rd,2)}, v{V_WA} offset:{p*4608+1152*rd+SEGB*a}" for rd in range(2)]
        return [x(0)] + w(0) + w(1) + [x(1), x(2), x(3)]
    offs = [0, 32, 64, 96]
    if var == "N9a": offs.append(256)
    if var == "N9b": offs.append(128)
    def w(a): return [f"ds_read_b64_tr_b16 {vr(b+8+4*a,2)}, v{V_WA} offset:{p*4608+offs[a]}",
                      f"ds_read_b64_tr_b16 {vr(b+10+4*a,2)}, v{V_WA} offset:{p*4608+1152+offs[a]}"]
    x = lambda f: f"ds_read_b128 {vr(b+4*f,4)}, v{V_XA+p} offset:{4096*f}" if B128 else f"ds_read_b128 {vr(b+4*f,4)}, v{V_XA} offset:{4096*f+256*p}"
    r = [x(0)] + w(0) + [x(1)]
    for a in range(1, len(offs)): r += w(a)
    return r

def mfma(d, a, b, c=None):
    return f"v_mfma_f32_32x32x16_bf16 {vr(d,16)}, {vr(a,4)}, {vr(b,4)}, " + (vr(d, 16) if c is None else c)

def k1_mfma(s_, var):
    b = V_SET[s_]
    m = []
    if var == "S8":
        return [mfma(V_ACC + 16 * (4 * a + f), b + 4 * f, b + 16 + 4 * a) for f in range(4) for a in ((1, 0) if (f % 2 and opt('snake', '1') == '1') else (0, 1))]
    for a in range(4):
        for f in ((1, 0) if (a % 2 and opt('snake', '1') == '1') else (0, 1)):
            acc = V_ACC + 16 * (2 * a + f)
            W = b + 8 + 4 * a; X_ = b + 4 * f
            m.append(mfma(acc, X_, W) if var == "S8" else mfma(acc, W, X_))
    if var in ("N9a", "N9b"):
        m.append(mfma(V_ACC + 128, b + 24, b + (0 if var == "N9a" else 4)))
    return m

def k1_unpack(g):
    r = [f"s_set_gpr_idx_on s{S_XI}, gpr_idx(SRC1)", "s_nop 0"]
    for j in range(4 * g, 4 * g + 4):
        r.append(f"v_lshlrev_b32 v{V_UT+2*j}, 16, v{V_XR+j}")
        r.append(f"v_and_b32 v{V_UT+2*j+1}, s{S_MASK}, v{V_XR+j}")
    r.append("s_set_gpr_idx_off")
    return r
def k1_norm(g):
    a = V_NA + 2 * g; j0 = 4 * g
    return [f"v_fma_f32 v{V_UT+2*j0+k}, v{V_UT+2*j0+k}, v{a}, v{a+1}" for k in range(8)] + \
           [f"v_cvt_pk_bf16_f32 v{V_PK+j}, v{V_UT+2*j}, v{V_UT+2*j+1}" for j in range(j0, j0 + 4)]
def k1_xw(g):
    if B128: return [f"ds_write_b128 v{V_XW+g}, {vr(V_PK+4*g,4)}", f"v_xor_b32 v{V_XW+g}, {XST}, v{V_XW+g}"]
    return [f"s_xor_b32 m0, s{S_XW}, {4096*g}", "s_nop 0"] + [f"ds_write_addtid_b32 v{V_PK+4*g+j} offset:{256*j}" for j in range(4)]
def k1_xadv():
    return [f"s_xor_b32 s{S_XW}, s{S_XW}, {XST}", f"s_add_u32 s{S_XI}, s{S_XI}, 16", f"s_and_b32 s{S_XI}, s{S_XI}, 127"]

def layout(body):
    n = len(body)
    for i, it in enumerate(body):
        if it[0] == 'm' and it[2]:
            cnt = 0; j = i; w = None
            while True:
                j = (j - 1) % n
                o = body[j]
                if o[0] == 'w0': break
                if o[0] == 'l':
                    if o[2] in it[2]: w = cnt; break
                    cnt += 1
                if j == i: break
            if w is not None: e(f"s_waitcnt lgkmcnt({min(w, 15)})")
        if it[1].endswith(":"): L.append(it[1])
        else: e(it[1])

def k1_cons_loop(var):
    def need(p):
        if var == "S8": return [[(p, 2)], [(p, 4)], [(p, 5)], [], [(p, 6)], [], [(p, 7)], []]
        return [[(p, 2)], [(p, 3)], [(p, 5)], [], [(p, 7)], [], [(p, 9)], [], [(p, 11)]]
    rs = {'a': [2, 2, 2, 2, 2, 2, 0, 0, 0], 'b': [2, 1, 1, 2, 1, 1, 2, 1, 1] if var in ('N9a', 'N9b') else [2, 1, 1, 1, 2, 1, 1, 1]}[opt('rs', 'a')]
    if var == "S8": rs = [2, 2, 1, 1, 1, 1, 0, 0]
    lab(f"K1_{var}")
    for x in k1_reads(0, 0, var): e(x)
    B = [('x', f"K1_{var}_loop:")]
    def stepx(s_, p, extra):
        mf = k1_mfma(s_, var); rd = k1_reads(s_ ^ 1, p + 1, var); ri = 0
        for i, m in enumerate(mf):
            B.append(('m', m, need(p)[i]))
            for _ in range(rs[i]):
                if ri < len(rd): B.append(('l', rd[ri], (p + 1, ri))); ri += 1
            for x in extra.get(i, []): B.append(('x', x))
    stepx(0, 0, {})
    stepx(1, 1, {6: [f"s_add_u32 s{S_RST}, s{S_RST}, 1", f"s_cmp_eq_u32 s{S_RST}, 3",
                     f"s_cselect_b32 s{S_TMP}, {-2*WST & 0xffffffff}, s{S_TMP2}", f"s_cselect_b32 s{S_RST}, 0, s{S_RST}"]})
    stepx(0, 2, {6: [f"v_xor_b32 v{V_XA+p}, {XST}, v{V_XA+p}" for p in range(1, 4)] if B128 else [],
                 7: [f"v_xor_b32 v{V_XA}, {XST}, v{V_XA}", f"v_add_u32 v{V_WA}, s{S_TMP}, v{V_WA}",
                     f"s_add_u32 s{S_CNT}, s{S_CNT}, 1", f"s_cmp_lt_u32 s{S_CNT}, 8"]})
    m = k1_mfma(1, var); nd = need(3)
    B.append(('m', m[0], nd[0])); B.append(('m', m[1], nd[1]))
    if "imarks" in X: B.append(('x', "s_memtime s[98:99]"))
    B.append(('w0', "s_waitcnt vmcnt(0) lgkmcnt(0)"))
    B.append(('x', "s_barrier"))
    if "imarks" in X:
        if "bw" in X:
            B.append(('x', "s_memtime s[100:101]")); B.append(('x', "s_waitcnt lgkmcnt(0)")); B.append(('x', "s_mul_i32 s98, s98, -1")); B.append(('x', "s_mul_i32 s98, s98, 1"))
            B.append(('x', "v_mov_b32 v253, s98")); B.append(('x', "v_add_u32 v253, s100, v253")); B.append(('x', "s_nop 0")); B.append(('x', "v_readfirstlane_b32 s98, v253")); B.append(('x', "s_nop 3"))
        B.append(('x', f"s_mov_b32 m0, s{S_CNT}")); B.append(('x', "s_nop 0")); B.append(('x', "v_writelane_b32 v254, s98, m0"))
    r0 = k1_reads(0, 0, var); ri = 0
    for i in range(2, len(m)):
        B.append(('m', m[i], []))
        for _ in range(3 if i < 4 else 2):
            if ri < len(r0): B.append(('l', r0[ri], (0, ri))); ri += 1
    assert ri == len(r0)
    B.append(('x', f"s_cbranch_scc1 K1_{var}_loop"))
    layout(B)
    e("s_branch K1_EPI")

def kernel():
    LA = {'2': 1, '4': 2, '8': 3}[opt('a', '4')]
    L.append(f".globl {NAME}_kernel"); L.append(".p2align 8"); L.append(f".type {NAME}_kernel,@function"); lab(f"{NAME}_kernel")
    if STAMP: e("v_mov_b32 v255, 0")
    st.mark()
    e("s_load_dwordx2 s[4:5], s[0:1], 0")
    e("s_load_dwordx4 s[28:31], s[0:1], 8")
    e("s_load_dwordx8 s[80:87], s[0:1], 32")
    e("s_load_dwordx4 s[36:39], s[0:1], 64")
    e("s_cmp_ge_u32 s2, 256"); e("s_cbranch_scc1 K_END")
    e(f"s_and_b32 s3, s2, {(1 << LA) - 1}"); e(f"s_bfe_u32 s64, s2, {((4-LA) << 16) | 3:#x}")
    e(f"s_lshl_b32 s3, s3, {4-LA}"); e(f"s_add_u32 s{S_MB}, s3, s64")
    e(f"s_lshr_b32 s65, s2, {7-LA}")
    e("v_bfe_u32 v3, v0, 3, 5"); e("v_and_b32 v4, 7, v0")
    e(f"s_and_b32 s{S_GX}, s65, {int(opt('rx','3')) & 3}"); e(f"s_and_b32 s{S_RX}, s65, {int(opt('rx','3')) & 4}")
    if B128: e("v_bfe_u32 v5, v0, 4, 3"); e("v_xor_b32 v5, v5, v4")
    else: e("v_lshrrev_b32 v5, 5, v0"); e("v_and_b32 v5, 4, v5"); e("v_xor_b32 v5, v5, v4")
    e(f"v_lshlrev_b32 v{V_VX}, 10, v3"); e(f"v_lshl_add_u32 v{V_VX}, v5, 4, v{V_VX}")
    e(f"s_lshl2_add_u32 s70, s{S_MB}, s{S_GX}"); e("s_lshl_b32 s70, s70, 8"); e(f"s_or_b32 s70, s70, s{S_RX}"); e("s_lshl_b32 s70, s70, 7")
    e("s_mov_b32 s6, 0x200000"); e("s_mov_b32 s7, 0x00020000")
    e("v_cmp_gt_u32 vcc, 0x100, v0"); e("s_cbranch_vccnz K1_cpf")
    def xload(i):
        g, c = divmod(i, 8)
        if c % 4 == 0 and i: e(f"s_xor_b32 s71, s70, {32768*g + 128*c}")
        e(f"buffer_load_dwordx4 {vr(V_XR+16*c+4*g,4)}, v{V_VX}, s[4:7], {'s71' if i >= 4 else 's70'} offen offset:{128*(c%4)} {opt('xf','')}")
    XD = int(opt('xd', '8'))
    e("s_waitcnt lgkmcnt(0)")
    if "emarks" in X: st.mark(10)
    X0 = int(opt('x0', '8'))
    for i in range(X0): xload(i)
    e("s_branch K1_setup")
    lab("K1_cpf")
    e("s_getpc_b64 s[66:67]")
    lab("K1_pc")
    e("s_and_b32 s3, s2, 0xf8")
    e("v_add_lshl_u32 v5, v0, s3, 7"); e(f"v_min_u32 v5, K_END-K1_pc, v5")
    e("v_cmp_gt_u32 vcc, 8, v0"); e("s_and_saveexec_b64 s[68:69], vcc"); e("s_cbranch_execz K1_nocpf")
    e("global_load_dword v21, v5, s[66:67]")
    lab("K1_nocpf")
    e("s_mov_b64 exec, -1")
    lab("K1_setup")
    e("v_lshrrev_b32 v2, 6, v0"); e("v_and_b32 v1, 63, v0")
    e(f"v_readfirstlane_b32 s{S_WAVE}, v2")
    e(f"s_bfe_u32 s3, s2, {((3-LA) << 16) | LA:#x}" if LA < 3 else "s_mov_b32 s3, 0"); e(f"s_lshl_b32 s3, s3, {LA+1}"); e("s_add_u32 s3, s3, s65")
    e(f"s_lshl_b32 s{S_RW}, s2, {3-LA}"); e(f"s_and_b32 s{S_RW}, s{S_RW}, {int(opt('xr','7'))}")
    e("s_lshl_b32 s3, s3, 2")
    tv = sum(t << (4 * i) for i, t in enumerate(TAB))
    e(f"s_mov_b32 s64, {tv & 0xffffffff:#x}"); e(f"s_mov_b32 s65, {tv >> 32:#x}")
    e("s_lshr_b64 s[64:65], s[64:65], s3"); e(f"s_and_b32 s{S_T}, s64, 15")
    e(f"s_and_b32 s{S_Q}, s{S_WAVE}, 3"); e(f"s_and_b32 s{S_TG}, s{S_WAVE}, 1"); e(f"s_lshr_b32 s{S_UH}, s{S_Q}, 1")
    e(f"s_lshl_b32 s{S_U0}, s{S_T}, 3")
    e(f"s_mul_i32 s3, s{S_T}, 9"); e("s_sub_u32 s3, s3, 4")
    e(f"s_cmp_ge_u32 s{S_T}, 4"); e(f"s_cselect_b32 s{S_U0}, s3, s{S_U0}"); e(f"s_cselect_b32 s{S_TYPE}, 1, 0")
    e(f"s_lshl_b32 s64, s{S_U0}, 5")
    e(f"s_lshl2_add_u32 s3, s{S_TG}, s{S_T}"); e("s_sub_u32 s3, s3, 6"); e("s_lshl_b32 s3, s3, 8")
    e(f"s_cmp_ge_u32 s{S_T}, 10"); e("s_cselect_b32 s64, s3, s64")
    e(f"s_cselect_b32 s{S_TYPE}, 2, s{S_TYPE}"); e(f"s_movk_i32 s3, 2752"); e(f"s_cselect_b32 s{S_STR}, 3072, s3")
    e(f"s_lshl1_add_u32 s3, s{S_T}, s{S_TG}"); e("s_sub_u32 s3, s3, 28"); e("s_lshl_b32 s3, s3, 8")
    e(f"s_lshl_b32 s67, s{S_T}, 4"); e(f"s_sub_u32 s67, s67, {14*16-86}")
    e(f"s_cmp_ge_u32 s{S_T}, 14"); e("s_cselect_b32 s64, s3, s64")
    e(f"s_cselect_b32 s{S_TYPE}, 3, s{S_TYPE}"); e(f"s_cselect_b32 s{S_U0}, s67, s{S_U0}")
    e(f"s_lshl_b32 s{S_STR64}, s{S_STR}, 6")
    e(f"s_cmp_eq_u32 s{S_TYPE}, 1"); e("s_cselect_b32 s66, 17, 15")
    if "emarks" in X: st.mark(11)
    e("s_movk_i32 s67, 3641"); e("s_movk_i32 s68, 0x13a")
    for p in range(9):
        src = "v1" if p == 0 else "v6"
        if p: e(f"v_add_u32 v6, 64, {'v1' if p == 1 else 'v6'}")
        e(f"v_mul_u32_u24 v5, s67, {src}"); e("v_lshrrev_b32 v5, 16, v5")
        e("v_mul_u32_u24 v7, 18, v5"); e(f"v_sub_u32 v7, {src}, v7"); e("v_min_u32 v7, s66, v7")
        if not B128:
            e("v_mul_u32_u24 v5, 0x821, v5"); e("v_bfe_u32 v5, v5, 3, 12"); e("v_and_b32 v5, s68, v5")
            e("v_mul_u32_u24 v5, 0x101, v5"); e("v_bfe_u32 v5, v5, 8, 6")
        e(f"v_mul_u32_u24 v5, s{S_STR}, v5"); e(f"v_lshl_add_u32 v{V_VW+p}, v7, 4, v5")
    e("s_waitcnt lgkmcnt(0)")
    e(f"s_cmp_eq_u32 s{S_TG}, 1")
    e("s_cselect_b64 s[8:9], s[82:83], s[80:81]"); e(f"s_cselect_b32 s{S_DMAW}, {SEGB}, 0")
    e(f"s_cmp_ge_u32 s{S_TYPE}, 2")
    e("s_cselect_b64 s[8:9], s[28:29], s[8:9]")
    e(f"s_lshl_b32 s{S_KWEND}, s{S_STR64}, 3")
    e("s_add_u32 s8, s8, s64"); e("s_addc_u32 s9, s9, 0"); e(f"s_sub_u32 s10, s{S_KWEND}, s64"); e("s_mov_b32 s11, 0x00020000")
    e(f"s_mul_i32 s{S_HFO}, s{S_UH}, s{S_STR64}"); e(f"s_lshr_b32 s{S_HFO}, s{S_HFO}, {1 if B128 else 4}")
    e(f"s_mul_i32 s3, s{S_UH}, 9216"); e(f"s_add_u32 s{S_DMAW}, s{S_DMAW}, s3"); e(f"s_add_u32 s{S_DMAW}, s{S_DMAW}, {WBASE}")
    e(f"s_mov_b32 s{S_TMP2}, {WST}"); e(f"s_mov_b32 s{S_CNT}, 0")
    e(f"s_mul_i32 s{S_KW}, s{S_RW}, s{S_STR64}"); e(f"s_mov_b32 s{S_DST}, 0")
    e("s_bfe_u32 s3, s2, 0x20003"); e(f"s_cmp_eq_u32 s3, s{S_WAVE}"); e("s_cselect_b32 s78, 1, 0")
    e("s_cbranch_scc0 K1_notlead")
    lab("K1_w0")
    for g in k1_dma():
        for x in g: e(x)
    e("s_cmp_eq_u32 s78, 0"); e("s_cbranch_scc1 K1_w0done")
    LW1 = opt('lw1', '0') == '1'
    if LW1:
        e("s_add_u32 s78, s78, 1"); e("s_cmp_eq_u32 s78, 2"); e("s_cbranch_scc1 K1_w0")
    lab("K1_notlead")
    e(f"s_mov_b32 s{S_MASK}, 0xffff0000"); e(f"s_mov_b32 s{S_ONES}, 0x3f803f80")
    srd(20, 38, 39, WS_USED); srd(24, 36, 37, 256)
    e("s_and_b32 s3, s2, 7"); e("s_bfe_u32 s66, s2, 0x20003"); e(f"s_lshl2_add_u32 s{S_MT}, s3, s66"); e(f"s_lshr_b32 s{S_NT}, s2, 5")
    e(f"s_mul_i32 s3, s66, {opt('rym','11')}")
    e(f"s_and_b32 s66, s{S_NT}, {opt('rg','1')}")
    e(f"s_mul_i32 s{S_R2}, s66, {8 // (int(opt('rg','1')) + 1)}"); e(f"s_mul_i32 s{S_RY}, s66, {44 // (int(opt('rg','1')) + 1)}"); e(f"s_add_u32 s{S_RY}, s{S_RY}, s3")
    if "emarks" in X: st.mark(12)
    e(f"s_cmp_lt_u32 s{S_WAVE}, 4"); e("s_cbranch_scc1 K1_CONS")
    e("s_setprio 3")
    def tr_lane(dst):
        e("v_lshrrev_b32 v3, 5, v1"); e("v_bfe_u32 v4, v1, 2, 2"); e("v_lshl_add_u32 v3, v3, 2, v4"); e("v_lshlrev_b32 v3, 7, v3")
        e("v_bfe_u32 v4, v1, 3, 1"); e("v_lshl_add_u32 v3, v4, 6, v3")
        e("v_bfe_u32 v4, v1, 4, 1"); e("v_lshl_add_u32 v3, v4, 5, v3")
        e("v_and_b32 v4, 3, v1"); e(f"v_lshl_add_u32 v{dst}, v4, 3, v3")
    def HOIST():
        e(f"s_lshl_b32 s3, s{S_NT}, 7")
        e("s_add_u32 s12, s30, s3"); e("s_addc_u32 s13, s31, 0"); e(f"s_sub_u32 s14, {512*1024}, s3"); e("s_mov_b32 s15, 0x00020000")
        e("s_add_u32 s16, s84, s3"); e("s_addc_u32 s17, s85, 0"); e(f"s_sub_u32 s18, {1376*1024}, s3"); e("s_mov_b32 s19, 0x00020000")
        e(f"s_lshl_b32 s64, s{S_Q}, 10")
        e(f"s_and_b32 s{S_R2}, s{S_NT}, {opt('hx','0')}")
        e(f"s_lshl1_add_u32 s65, s{S_Q}, s{S_R2}"); e("s_lshl_b32 s65, s65, 16")
        e(f"s_add_u32 s68, s{S_RY}, s{S_UH}"); e("s_lshl_b32 s68, s68, 14"); e(f"s_lshl_b32 s3, s{S_TG}, 13"); e("s_add_u32 s68, s68, s3")
        e("s_lshr_b32 s88, s2, 3"); e(f"s_lshl2_add_u32 s88, s88, s{S_Q}"); e("s_lshl_b32 s3, s2, 4"); e("s_add_u32 s88, s88, s3")
        e("s_and_b32 s88, s88, 127"); e("s_lshl_b32 s88, s88, 12")
        e("v_lshlrev_b32 v20, 7, v1")
        tr_lane(92)
        e("v_add_u32 v92, s64, v92"); e("v_xor_b32 v93, 64, v92")
    def capture(fn):
        n0 = len(L); fn(); r = L[n0:]; del L[n0:]; return r
    e(f"s_add_u32 s3, s{S_RW}, 1"); e("s_and_b32 s3, s3, 7"); e(f"s_mul_i32 s{S_KW}, s3, s{S_STR64}")
    e(f"s_mov_b32 s{S_DST}, 1"); e(f"s_add_u32 s{S_DMAW}, s{S_DMAW}, {WST}")
    e(f"s_lshl2_add_u32 s{S_XW}, s{S_GX}, s{S_Q}"); e(f"s_lshl_b32 s{S_XW}, s{S_XW}, 10")
    if B128:
        e(f"v_lshl_add_u32 v{V_XW}, v1, 4, s{S_XW}")
        for g in range(1, 4): e(f"v_xor_b32 v{V_XW+g}, {4096*g}, v{V_XW}")
    e(f"s_sub_u32 s{S_XI}, s{S_RW}, s{S_RX}"); e(f"s_and_b32 s{S_XI}, s{S_XI}, 7"); e(f"s_lshl_b32 s{S_XI}, s{S_XI}, 4")
    e("v_lshrrev_b32 v5, 3, v1"); e("v_bfe_u32 v6, v1, 4, 1"); e("v_lshlrev_b32 v6, 2, v6"); e("v_xor_b32 v6, v6, v4")
    e("v_lshlrev_b32 v5, 10, v5"); e(f"v_lshl_add_u32 v{V_DV}, v6, 4, v5")
    for r in range(4): e(f"v_mov_b64 {vr(V_ST+2*r,2)}, 0")
    e(f"s_mov_b32 s32, {fbits(1/512)}"); e(f"s_mov_b32 s33, {fbits(1e-5)}")
    HOIST()
    WB = int(opt('wb', '24')); WB2 = int(opt('wb2', '32'))
    G4 = range(4)
    def fin(g):
        m, q = V_ST + 2 * g, V_ST + 2 * g + 1
        c = []
        for dpp in ("quad_perm:[1,0,3,2]", "quad_perm:[2,3,0,1]", "row_half_mirror"):
            c.append([f"v_add_f32_dpp v{r}, v{r}, v{r} {dpp} row_mask:0xf bank_mask:0xf" for r in (m, q)])
        c += [[f"v_mul_f32 v{m}, s32, v{m}", f"v_mul_f32 v{q}, s32, v{q}", f"v_fma_f32 v{q}, -v{m}, v{m}, v{q}", f"v_max_f32 v{q}, 0, v{q}",
               f"v_cvt_pk_bf16_f32 v{q}, v{m}, v{q}", f"v_lshlrev_b32 v{m}, 16, v{q}", f"v_and_b32 v{q}, s{S_MASK}, v{q}",
               f"v_add_f32 v{q}, s33, v{q}", f"v_cvt_pk_bf16_f32 v{q}, v{q}, v{q}", f"v_and_b32 v{q}, s{S_MASK}, v{q}", f"v_sqrt_f32 v{q}, v{q}"],
              [f"v_cvt_pk_bf16_f32 v{q}, v{q}, v{q}", f"v_and_b32 v{q}, s{S_MASK}, v{q}", f"v_rcp_f32 v{V_NA+2*g}, v{q}"],
              [f"v_mul_f32_e64 v{V_NA+2*g+1}, -v{m}, v{V_NA+2*g}"]]
        return c
    def mvw(gs):
        r = [f"s_set_gpr_idx_on s{S_XI}, gpr_idx(SRC0)", "s_nop 0"]
        for g in gs: r += [f"v_mov_b32 v{V_PK+4*g+h}, v{V_XR+4*g+h}" for h in range(4)]
        return r + ["s_set_gpr_idx_off"]
    def pre_u(g, c):
        r = []
        for j in range(4):
            x = V_XR + 16 * c + 4 * g + j
            r += [f"v_lshlrev_b32 v{V_UT+2*j}, 16, v{x}", f"v_and_b32 v{V_UT+2*j+1}, s{S_MASK}, v{x}"]
        return r
    def pre_n(g, c):
        a_ = V_NA + 2 * g
        return [f"v_pk_fma_f32 {vr(V_UT+2*j,2)}, {vr(V_UT+2*j,2)}, {vr(a_,2)}, {vr(a_,2)} op_sel:[0,0,1] op_sel_hi:[1,0,1]" for j in range(4)] + \
               [f"v_cvt_pk_bf16_f32 v{V_XR+16*c+4*g+j}, v{V_UT+2*j}, v{V_UT+2*j+1}" for j in range(4)]
    def chain(g):
        r = []
        for k, pc in enumerate(fin(g)):
            if k: r.append("s_nop 0")
            r += pc
        return r
    if "emarks" in X: st.mark(13)
    NPRE = int(opt('npre', '0'))
    pend = []
    nis = X0
    for i in range(32):
        if pend:
            for x in pend.pop(0): e(x)
        e(f"s_waitcnt vmcnt({nis - 1 - i})")
        for _ in range(2):
            if nis < 32 and nis - i <= XD:
                xload(nis); nis += 1
                if nis == WB: e("s_barrier")
                if nis == WB2: e("s_barrier")
        if "pmarks" in X and i in (0, 8, 16, 31): st.mark({0: 1, 8: 2, 16: 3, 31: 4}[i])
        g, c = divmod(i, 8)
        for j in range(4):
            r = V_XR + 16 * c + 4 * g + j
            e(f"v_dot2c_f32_bf16 v{V_ST+2*g}, s{S_ONES}, v{r}")
            e(f"v_dot2c_f32_bf16 v{V_ST+2*g+1}, v{r}, v{r}")
        if c == 7 and g < NPRE:
            assert not pend
            pend = [pre_u(g, cc) + (chain(g) if cc == 0 else []) + pre_n(g, cc) for cc in range(8)]
            pend[7] = pend[7] + mvw([g]) + k1_xw(g)
            if g == 0 and opt('front', '1') == '1': pend = [sum(pend, [])]
        elif c == 7 and g < 3:
            pend = [k1_unpack(g)] + fin(g); pend[-1] = pend[-1] + k1_norm(g) + k1_xw(g)
    for x in k1_unpack(3) + chain(3) + k1_norm(3) + k1_xw(3): e(x)
    for x in k1_xadv(): e(x)
    e("s_setprio 0")
    e("s_waitcnt lgkmcnt(0)")
    if "pmarks" in X: st.mark(5)
    e("s_barrier")
    if "pmarks" in X: st.mark(6)
    D = k1_dma()
    if LW1: e("s_bfe_u32 s3, s2, 0x20003"); e(f"s_cmp_eq_u32 s3, s{S_Q}"); e("s_cbranch_scc1 K1_pw1")
    if not SPL:
        for g in D[KS:]:
            for x in g[:3]: e(x)
        lab("K1_pw1")
        for x in D[8][3:]: e(x)
    if "lmarks" in X:
        e("s_memtime s[98:99]"); e("s_waitcnt lgkmcnt(0)"); e("s_mov_b32 s97, s98"); e("s_mov_b32 s94, 0"); e("s_mov_b32 s95, 0"); e("s_mov_b32 s96, 0")
    PFN = int(opt('pfn', '0')); PF0 = int(opt('pf0', '1')); PFA = opt('pfa', '0') == '1'
    if PFN:
        NSLOT = 128 if PFA else 80
        NL = -(-15104 // (NSLOT * PFN))
        while 11008 % NL: NL += 1
        NI = 11008 // NL; NTOT = NSLOT * PFN
        assert NL <= 64 and (NTOT - NI) * NL >= 4096, (NL, NI, NTOT)
        if PFA: e("s_lshr_b32 s88, s2, 3")
        else:
            e("s_lshr_b32 s3, s2, 5"); e("s_cmp_gt_u32 s3, 4"); e("s_subb_u32 s3, s3, 2")
            e("s_bfe_u32 s88, s2, 0x20003"); e("s_lshl2_add_u32 s88, s3, s88")
        e(f"s_lshl2_add_u32 s88, s88, s{S_Q}")
        e("s_and_b32 s3, s2, 7"); e(f"s_mul_i32 s3, s3, {NTOT // 8}"); e("s_add_u32 s88, s88, s3")
        e(f"s_cmp_eq_u32 s{S_TYPE}, {9 if PFA else 1}"); e(f"s_cselect_b32 s89, 99, {PF0}")
        e("v_lshlrev_b32 v20, 7, v1"); e("s_mov_b32 s15, 0x00020000")
    lab("K1_PROD_loop")
    if PFN:
        e(f"s_sub_u32 s3, s{S_CNT}, s89"); e(f"s_cmp_lt_u32 s3, {PFN}"); e("s_cbranch_scc0 K1_nopf")
        e(f"s_sub_u32 s3, s88, {NTOT}"); e("s_cselect_b32 s88, s88, s3")
        e(f"s_sub_u32 s3, s88, {NI}"); e("s_cselect_b32 s3, s88, s3")
        e("s_cselect_b64 s[12:13], s[84:85], s[30:31]"); e(f"s_mov_b32 s66, {512*1024}"); e(f"s_cselect_b32 s66, {1376*1024}, s66")
        e(f"s_mul_i32 s3, s3, {NL*128}"); e(f"s_add_u32 s14, s3, {NL*128}"); e("s_min_u32 s14, s14, s66"); e(f"s_add_u32 s88, s88, {NSLOT}")
        e("buffer_load_dword v2, v20, s[12:15], s3 offen")
        lab("K1_nopf")
    def weave(mem):
        N = [k1_norm(g) for g in range(4)]
        mem = list(mem)
        def dma(v):
            if not mem:
                for x in v: e(x)
                return
            pre, op = mem.pop(0)
            for x in pre: e(x)
            TH = int(opt('th', '99'))
            if TH < 99:
                e(f"s_waitcnt vmcnt({TH})"); v = [None] + list(v)
            elif v: e(v[0])
            elif len(pre) < 2 or "m0" in pre[-1]: e("s_nop 0")
            e(op)
            for x in v[1:]: e(x)
        if opt('wv', '0') == '0':
            for g in range(4):
                dma([])
                if g < NPRE:
                    for x in mvw([g]): e(x)
                    dma([])
                else:
                    for x in k1_unpack(g): e(x)
                    dma(N[g])
                for x in k1_xw(g): e(x)
            dma(k1_xadv())
        elif opt('wv', '0') == '3':
            seq = []
            for g in range(4):
                if g < NPRE: seq += [("a", mvw([g]))]
                else: seq += [("a", k1_unpack(g))] + [("v", [x]) for x in N[g]]
                seq += [("w", k1_xw(g))]
            tot = sum(len(x[1]) for x in seq); nd = len(mem); done = 0; k = 0; held = []
            dma([]); k = 1
            for i, (t, ins) in enumerate(seq):
                if t == "w": held.append(ins); done += len(ins); continue
                if mem and done >= tot * k / nd and t == "v":
                    for h in held:
                        for x in h: e(x)
                    held = []
                    dma(ins); k += 1
                else:
                    if mem and done >= tot * k / nd:
                        for h in held:
                            for x in h: e(x)
                        held = []
                        dma([]); k += 1
                    for x in ins: e(x)
                done += len(ins)
            for x in k1_xadv(): e(x)
            for h in held:
                for x in h: e(x)
            while mem: dma([])
        elif opt('wv', '0') == '2':
            for g in range(4):
                dma([]);
                if g == 0: dma([])
                u = k1_unpack(g)
                for x in u: e(x)
                dma(N[g][:11]) if False else None
                for x in N[g][:11]: e(x)
                e(k1_xw(g)[0]); e(N[g][11]); [e(x) for x in k1_xw(g)[2:]]
                dma([])
            for x in k1_xadv(): e(x)
        else:
            def unp(gs):
                r = [f"s_set_gpr_idx_on s{S_XI}, gpr_idx(SRC1)", "s_nop 0"]
                for g in gs:
                    for j in range(4 * g, 4 * g + 4):
                        if g < NPRE: r.append(f"v_or_b32 v{V_PK+j}, 0, v{V_XR+j}")
                        else: r += [f"v_lshlrev_b32 v{V_UT+2*j}, 16, v{V_XR+j}", f"v_and_b32 v{V_UT+2*j+1}, s{S_MASK}, v{V_XR+j}"]
                return r + ["s_set_gpr_idx_off"]
            def xw(g, v):
                w = k1_xw(g)
                e(w[0]); e(v[0] if v else "s_nop 0")
                for x in w[2:]: e(x)
                for x in v[1:]: e(x)
            xa = k1_xadv()
            dma([])
            for half in range(2):
                for x in unp([2 * half, 2 * half + 1]): e(x)
                for g in (2 * half, 2 * half + 1):
                    n = N[g] if g >= NPRE else []
                    dma(n[:6]); dma(n[6:11])
                    if n: e(k1_xw(g)[0]); e(n[11]); [e(x) for x in k1_xw(g)[2:]]
                    else: xw(g, [])
            for x in xa: e(x)
        assert not mem
    DM = [([x for x in g[:2] if x != "s_nop 0"], g[2]) for g in D]
    if SPL: weave(DM[KS:] + [(D[8][3:] + DM[0][0], DM[0][1])] + DM[1:KS])
    else:
        weave(DM)
        for x in D[8][3:]: e(x)
    e(f"s_add_u32 s{S_CNT}, s{S_CNT}, 1")
    def acc(k):
        if "lmarks" in X:
            e("s_memtime s[98:99]"); e("s_waitcnt lgkmcnt(0)"); e("s_sub_u32 s3, s98, s97"); e("s_mov_b32 s97, s98"); e(f"s_add_u32 s{k}, s{k}, s3")
    acc(94)
    e(f"s_waitcnt vmcnt({KS if SPL else 9}) lgkmcnt(0)")
    acc(95)
    e("s_barrier")
    acc(96)
    e(f"s_cmp_lt_u32 s{S_CNT}, 6")
    e("s_cbranch_scc1 K1_PROD_loop")
    if "lmarks" in X:
        for k in range(3): e(f"v_writelane_b32 v255, s{94+k}, {24+k}")
    if SPL:
        for g in D[KS:]:
            for x in g[:3]: e(x)
    V_KF, V_PO, V_O, V_PQ, V_WO, V_AS = 28, 36, 44, 76, 124, 188
    def wo_batch():
        for p in range(16):
            e(f"s_add_u32 m0, s64, {(0 if p < 8 else 36*2048) + 4096*(p%8)}")
            e(f"s_xor_b32 s66, s65, {8192*p}")
            e(f"buffer_load_dwordx4 v{V_DV}, s[12:15], s66 offen lds")
    def rounds(sig, pi, n):
        for i in range(n):
            e(f"s_add_u32 s66, s68, {(pi + 2*i) * 16384}")
            if sig + 2*i == 24:
                e(f"s_mul_i32 s69, s{S_UH}, {34*16384}"); e("s_add_u32 s66, s66, s69")
            e(f"s_sub_u32 s69, s66, {86*16384}")
            e(f"s_cselect_b32 s66, s66, s69")
            e(f"s_add_u32 m0, s64, {(sig + 2*i) * 2048}")
            e("s_nop 0")
            e(f"buffer_load_dwordx4 v{V_DV}, s[16:19], s66 offen lds")
    def early(sig, n, pd=None):
        for i in range(n):
            sg = sig + 2 * i
            pi = sg + 23 if sg < 16 else sg - 8 if sg < 25 else sg + 26 if sg < 34 else sg - 17 if sg < 36 else sg + 30 if sg < 52 else sg + 8 if sg < 54 else sg - 53 if sg < 76 else sg - 14
            if pd is not None: e(f"s_waitcnt vmcnt({pd})")
            rounds(sg, pi, 1)
    def lsig(off):
        e("s_mov_b64 exec, 1"); e(f"ds_add_u32 v27, v7 offset:{off}"); e("s_mov_b64 exec, -1")
    def lwait(off, n, tag, slp=0):
        lab(f"K_lw{tag}")
        if slp: e(f"s_sleep {slp}")
        e(f"ds_read_b32 v6, v27 offset:{off}"); e("s_waitcnt lgkmcnt(0)")
        e("v_readfirstlane_b32 s66, v6"); e(f"s_cmp_lt_u32 s66, {n}"); e(f"s_cbranch_scc1 K_lw{tag}")
    def wo_read(h0):
        for i in range(4):
            for nf in range(2):
                for rd in range(2):
                    e(f"ds_read_b64_tr_b16 {vr(V_WO+8*(h0+i)+4*nf+2*rd,2)}, v{92+nf} offset:{i*8192 + rd*4096}")
        e("s_waitcnt lgkmcnt(0)")
    e(f"buffer_load_dword v2, off, s[24:27], 0 {SC}")
    e("s_mov_b64 s[8:9], s[30:31]"); e("s_add_u32 s10, s88, 4096")
    if PFN: e("s_mov_b32 s10, 0")
    e("buffer_load_dword v20, v20, s[8:11], s88 offen")
    R5 = [(54 + 2*i, 2*i) for i in range(4)] + [(62 + 2*i, 43 + 2*i) for i in range(4)]
    RR = [capture(lambda: rounds(sg, pi, 1)) for sg, pi in R5]
    weave([([x.strip() for x in r[:4]], r[5].strip()) for r in RR])
    S3 = opt('s3', '7')
    if S3 == '5': early(72, 4)
    e(f"s_waitcnt vmcnt({13 if S3 == '5' else 9}) lgkmcnt(0)")
    e("s_setprio 0")
    e("s_barrier")
    e("s_mov_b32 s90, 0")
    lab("K1_zpoll")
    e("v_readfirstlane_b32 s66, v2")
    e("s_cmp_ge_u32 s66, 16"); e("s_cbranch_scc1 K1_zdone")
    e("s_sleep 4")
    e(f"buffer_load_dword v2, off, s[24:27], 0 {SC}")
    e("s_add_u32 s90, s90, 1"); e("s_cmp_lt_u32 s90, 0x100000")
    e("s_waitcnt vmcnt(0)")
    e("s_cbranch_scc1 K1_zpoll")
    lab("K1_zdone")
    early(16, 9)
    if S3 == '6': early(72, 4)
    e("s_barrier")
    if "tmarks" in X: st.mark(1)
    e(f"v_mov_b32 v27, {LCNT}"); e("v_mov_b32 v7, 1")
    NE = int(opt('ne', '0'))
    wo_batch()
    early(34, 1); early(52, 1)
    if S3 == '7': early(72, 4)
    X7 = 4 if S3 == '7' else 0
    e(f"s_waitcnt vmcnt({10 + X7})")
    if "tmarks" in X: st.mark(2)
    lsig(4)
    wo_read(0)
    e(f"v_add_u32 v92, {36*2048}, v92"); e(f"v_add_u32 v93, {36*2048}, v93")
    early(0, NE)
    e(f"s_waitcnt vmcnt({2 + NE + X7})")
    wo_read(4)
    e(f"v_lshlrev_b32 v10, 4, v1")
    e(f"s_mul_i32 s3, s{S_MT}, {2*NKS}"); e(f"s_lshl_b32 s65, s{S_Q}, 3"); e("s_add_u32 s3, s3, s65"); e("s_add_u32 s3, s3, 86"); e("s_lshl_b32 s70, s3, 10")
    e(f"s_lshl_b32 s65, s{S_R2}, 12"); e("s_xor_b32 s3, s65, 4096")
    e("s_add_u32 s67, s70, s3"); e("s_add_u32 s70, s70, s65"); e(f"s_add_u32 s72, s70, {NKS*1024}"); e(f"s_add_u32 s73, s67, {NKS*1024}")
    e(f"s_lshl_b32 s4, s{S_Q}, 13"); e(f"s_add_u32 s4, s4, {KV_OFF}"); e("s_add_u32 s5, s4, s3"); e("s_add_u32 s4, s4, s65")
    e(f"s_lshl_b32 s6, s{S_Q}, 9"); e(f"s_add_u32 s6, s6, {KV_OFF + 32768}")
    e("v_lshrrev_b32 v3, 4, v1"); e("v_xor_b32 v3, 1, v3"); e("v_lshlrev_b32 v3, 4, v3")
    e("v_and_b32 v4, 15, v1"); e("v_lshl_add_u32 v11, v4, 6, v3")
    e("v_and_b32 v4, 3, v1"); e("v_lshl_add_u32 v14, v4, 6, v3"); e("v_bfe_u32 v4, v1, 3, 1"); e(f"v_xor_b32 v4, s{S_R2}, v4"); e("v_lshl_add_u32 v14, v4, 8, v14")
    e(f"s_lshr_b32 s71, s{S_MT}, 1"); e("s_lshl_b32 s71, s71, 7"); e(f"s_add_u32 s71, s71, {FLG_OFF + 2048}")
    e(f"s_mov_b32 s89, {fbits(1e-6)}")
    e("s_mov_b32 s90, 0"); e("v_lshlrev_b32 v4, 2, v1")
    e("s_waitcnt vmcnt(0)")
    if "tmarks" in X: st.mark(3)
    e("s_barrier")
    if "tmarks" in X: st.mark(4)
    if "now2" not in X:
        PD = int(opt('pd', '30'))
        for i in range(8):
            if i >= NE: early(2 * i, 1, PD)
            early(36 + 2 * i, 1, PD)
    LD = opt('ld', '0') == '1'
    def late():
        for i in range(2): rounds(54 + 2 * i, 39 + 2 * i, 1); rounds(62 + 2 * i, 82 + 2 * i, 1)
    if not LD:
        late()
        e("s_waitcnt vmcnt(4)")
        lsig(12)
    V_KR = V_PQ + 32; V_Z = 16
    def pq(i):
        e(f"buffer_load_dwordx4 {vr(V_KR+4*(i%4),4)}, v11, s[20:23], s{4 if i < 4 else 5} offen offset:{1024*(i%4)} {SC}")
        e(f"buffer_load_dwordx4 {vr(V_PQ+8*(i%4),4)}, v10, s[20:23], s{70 if i < 4 else 67} offen offset:{1024*(i%4)} {SC}")
        e(f"buffer_load_dwordx4 {vr(V_PQ+8*(i%4)+4,4)}, v10, s[20:23], s{72 if i < 4 else 73} offen offset:{1024*(i%4)} {SC}")
    e(f"s_cmp_eq_u32 s{S_WAVE}, 4"); e("s_cbranch_scc0 K2_snop")
    e("s_mov_b64 exec, 7")
    e(f"buffer_load_dword v2, v4, s[20:23], s71 offen {SC}")
    e("s_waitcnt vmcnt(1)")
    e("s_mov_b64 exec, 1"); e(f"ds_add_u32 v27, v7 offset:{12 if LD else 8}"); e("s_mov_b64 exec, 7")
    lab("K2_spoll")
    e("s_add_u32 s90, s90, 1")
    e("s_waitcnt vmcnt(0)")
    e("v_cmp_ne_u32 vcc, 0, v2")
    e("s_cmp_eq_u32 vcc_lo, 7"); e("s_cbranch_scc1 K2_sset")
    e(f"s_sleep {opt('slp','3')}")
    e(f"buffer_load_dword v2, v4, s[20:23], s71 offen {SC}")
    e("s_cmp_lt_u32 s90, 0x100000"); e("s_cbranch_scc1 K2_spoll")
    lab("K2_sset")
    lsig(20)
    e("s_branch K2_swait")
    lab("K2_snop")
    e("s_waitcnt vmcnt(0)")
    lsig(12 if LD else 8)
    lab("K2_swait")
    lwait(20, 1, "s", 1)
    st.mark(7)
    e(f"s_setprio {opt('sp','1')}")
    PH[0] = "s"
    e(f"buffer_load_dwordx4 {vr(V_Z,4)}, v14, s[20:23], s6 offen {SC}")
    SD = int(opt('sd', '3'))
    for i in range(SD): pq(i)
    def kf(i):
        f = V_KF + 4 * (i % 2); r = V_KR + 4 * (i % 4)
        return [f"v_cvt_pk_bf16_f32 v{f}, v{r}, v{r+1}", f"v_cvt_pk_bf16_f32 v{f+1}, v{r+2}, v{r+3}",
                f"v_mov_b32 v{f+2}, v{V_Z}", f"v_mov_b32 v{f+3}, v{V_Z+1}", "s_nop 0",
                f"v_permlane16_swap_b32 v{f+2}, v{f}", f"v_permlane16_swap_b32 v{f+3}, v{f+1}"]
    def omf(k): return mfma(V_O + 16 * (k % 2), V_KF + 4 * ((k // 2) % 2), V_PQ + 8 * ((k // 2) % 4) + 4 * (k % 2), "0")
    def smf(k, nf): return mfma(V_AS + 32 * (k % 2) + 16 * nf, V_WO + 8 * (k // 2) + 4 * nf, V_PO + 4 * (k % 2), "0" if k < 2 else None)
    def valu(k):
        o = V_O + 16 * (k % 2); d = o + k // 2
        return [f"v_add_f32 v{d}, s89, v{d}", f"v_rcp_f32 v{d}, v{d}", "s_nop 0"] + \
               [f"v_mul_f32 v{o+8+j}, v{d}, v{o+8+j}" for j in range(8)] + \
               [f"v_cvt_pk_bf16_f32 v{V_PO+4*(k%2)+j}, v{o+8+2*j}, v{o+9+2*j}" for j in range(4)]
    nh = SD
    e(f"s_waitcnt vmcnt({3*SD - 1})")
    e(f"v_cvt_pk_bf16_f32 v{V_Z}, v{V_Z}, v{V_Z+1}"); e(f"v_cvt_pk_bf16_f32 v{V_Z+1}, v{V_Z+2}, v{V_Z+3}")
    for x in kf(0): e(x)
    e(f"s_waitcnt vmcnt({3*SD - 3})"); e("s_nop 0")
    e(omf(0)); e(omf(1))
    pq(nh); nh += 1
    e(f"s_waitcnt vmcnt({3*(nh-1) - 1})")
    for x in kf(1): e(x)
    for x in valu(0): e(x)
    for k in range(16):
        v = valu(k + 1) if k < 15 else []
        h = k // 2 + 1
        if k + 2 < 16:
            if k % 2 == 0: e(f"s_waitcnt vmcnt({3 * (nh - 1 - h)})")
            e(omf(k + 2))
            if k % 2 == 1 and nh < 8: pq(nh); nh += 1
        else: e("s_nop 0")
        for x in v[:4] if v else ["s_nop 0"]: e(x)
        e(smf(k, 0))
        for x in v[4:10]: e(x)
        e(smf(k, 1))
        if k % 2 == 1 and h + 1 < 8:
            e(f"s_waitcnt vmcnt({3 * (nh - (h + 1)) - 1})")
            for x in kf(h + 1): e(x)
        for x in v[10:]: e(x)
    e(f"s_lshl_b32 s3, s{S_Q}, 3"); e("s_lshr_b32 s3, 0x24181000, s3"); e("s_and_b32 s3, s3, 255"); e("s_lshl_b32 s3, s3, 11"); e("v_add_u32 v3, s3, v10")
    if LD:
        late()
    st.mark(8)
    PB16 = opt('pb', '1') == '1'
    if PB16:
        e("s_nop 2")
        for r in range(32): e(f"v_cvt_pk_bf16_f32 v{V_PQ+r}, v{V_AS+2*r}, v{V_AS+2*r+1}")
    e("s_barrier")
    if PB16:
        for r in range(8): e(f"ds_write_b128 v3, {vr(V_PQ+4*r,4)} offset:{2048*r - 1024*(r%2)}")
    else:
        e("s_nop 4")
        for r in range(16): e(f"ds_write_b128 v3, {vr(V_AS+4*r,4)} offset:{1024*r}")
    if LD: e("s_waitcnt vmcnt(0)"); lsig(8)
    e("s_waitcnt lgkmcnt(0)")
    e("s_barrier")
    if STAMP:
        st.mark(9); st.dump(S_WAVE, "K_END")
    e("s_endpgm")
    PH[0] = ""
    lab("K1_CONS")
    e("s_mov_b64 s[92:93], s[4:5]")
    e("s_bfe_u32 s3, s2, 0x20003"); e("s_xor_b32 s3, s3, 1"); e(f"s_xor_b32 s3, s3, s{S_WAVE}"); e(f"s_or_b32 s3, s3, s{S_T}")
    e("s_cmp_eq_u32 s3, 0"); e("s_cbranch_scc0 K1_nozero")
    for j in range(4): e(f"v_mov_b32 v{4+j}, 0")
    e("v_lshlrev_b32 v3, 4, v1")
    e(f"s_mul_i32 s3, s{S_MB}, 3072"); e(f"s_add_u32 s3, s3, {KV_OFF}")
    assert 16 * 3072 >= WS_USED - KV_OFF
    for j in range(3): e(f"buffer_store_dwordx4 v[4:7], v3, s[20:23], s3 offen offset:{1024*j} {SC}")
    e("v_mov_b32 v2, 1")
    e("s_waitcnt vmcnt(0)")
    e("s_mov_b64 exec, 1")
    e(f"buffer_atomic_add v2, off, s[24:27], 0 sc1")
    e("s_mov_b64 exec, -1")
    lab("K1_nozero")
    e("v_and_b32 v3, 31, v1"); e("v_lshrrev_b32 v4, 5, v1")
    e("v_bfe_u32 v5, v3, 4, 1"); e("v_xor_b32 v5, v5, v4")
    e(f"s_lshl_b32 s3, s{S_TG}, 13"); e(f"s_cmp_eq_u32 s{S_TYPE}, 2"); e("s_cselect_b32 s3, 0, s3")
    if B128:
        e("v_bfe_u32 v5, v3, 1, 3"); e("v_xor_b32 v5, v5, v4"); e("v_lshl_add_u32 v6, v3, 7, s3"); e(f"v_lshl_add_u32 v{V_XA}, v5, 4, v6")
        for p in range(1, 4): e(f"v_xor_b32 v{V_XA+p}, {32*p}, v{V_XA}")
    else:
        e("v_lshrrev_b32 v6, 3, v3"); e("v_lshl_add_u32 v6, v6, 10, s3"); e("v_and_b32 v3, 7, v3"); e("v_lshl_add_u32 v6, v3, 5, v6")
        e(f"v_lshl_add_u32 v{V_XA}, v5, 4, v6")
    e(f"s_cmp_eq_u32 s{S_TYPE}, 2"); e(f"s_movk_i32 s3, {SEGB}"); e("s_cselect_b32 s3, 128, s3"); e("s_cselect_b32 s66, 5, 7"); e(f"s_cselect_b32 s67, s{S_Q}, s{S_UH}")
    e("v_bfe_u32 v3, v1, 4, 1"); e(f"v_mul_u32_u24 v3, s3, v3")
    e("v_bfe_u32 v5, v1, 2, 2"); e("v_lshl_add_u32 v5, v4, 3, v5"); e("v_mul_u32_u24 v5, 288, v5")
    e("v_and_b32 v6, 3, v1"); e("v_lshlrev_b32 v6, 3, v6")
    e(f"s_lshl_b32 s3, s67, s66"); e(f"s_add_u32 s3, s3, {WBASE}")
    e(f"v_add3_u32 v{V_WA}, v3, v5, v6"); e(f"v_add_u32 v{V_WA}, s3, v{V_WA}")
    DUM = opt('dum', '0') == '1'
    e("v_mov_b64 v[28:29], 0"); e("v_mov_b64 v[30:31], 0")
    e(f"s_mov_b32 s{S_RST}, 0")
    e(f"v_mov_b32 v27, {LCNT}"); e(f"ds_write_b128 v27, v[28:31]"); e(f"ds_write_b128 v27, v[28:31] offset:16")
    e(f"s_lshl_b32 s3, s{S_MB}, 2"); e(f"s_lshl1_add_u32 s3, s{S_TG}, s3")
    e(f"s_mul_i32 s64, s3, {NKS}"); e(f"s_add_u32 s64, s64, s{S_U0}")
    e(f"s_add_u32 s66, s3, s{S_UH}"); e(f"s_mul_i32 s66, s66, {NKS}"); e(f"s_add_u32 s66, s66, s{S_U0}"); e("s_add_u32 s66, s66, 8"); e("s_lshl_b32 s66, s66, 10")
    e(f"s_lshl2_add_u32 s64, s{S_UH}, s64"); e("s_lshl_b32 s64, s64, 10")
    e(f"s_add_u32 s65, s64, {NKS*1024}")
    if DUM:
        e(f"s_mov_b32 s{S_CNT}, 7"); e("s_mov_b32 s34, 1"); e("s_branch K1_sel")
        lab("K1_ret")
        e("s_mov_b32 s34, 0"); e(f"s_mov_b32 s{S_CNT}, 0"); e(f"s_mov_b32 s{S_RST}, 0")
        for p in range(4 if B128 else 1): e(f"v_xor_b32 v{V_XA+p}, {XST}, v{V_XA+p}")
        e(f"v_subrev_u32 v{V_WA}, s{S_TMP2}, v{V_WA}")
    else:
        e("s_barrier")
    st.mark()
    e("s_cmp_eq_u32 s78, 0"); e("s_cbranch_scc1 K1_w0")
    lab("K1_w0done")
    for r in range(9): e(mfma(V_ACC + 16 * r, 28, 28, "0"))
    e("s_barrier")
    if LW1: e("s_cmp_lg_u32 s78, 0"); e("s_cbranch_scc1 K1_w1done")
    for g in k1_dma()[:KS]:
        for x in g: e(x)
    lab("K1_w1done")
    e(f"s_waitcnt vmcnt({KS})")
    e("s_barrier")
    st.mark()
    e("s_setprio 1")
    lab("K1_sel")
    e(f"s_cmp_eq_u32 s{S_TYPE}, 2"); e("s_cbranch_scc1 K1_S8")
    e(f"s_cmp_eq_u32 s{S_TYPE}, 1"); e("s_cbranch_scc0 K1_N8")
    e(f"s_cmp_eq_u32 s{S_UH}, 1"); e("s_cbranch_scc1 K1_N9b")
    for var in ("N9a", "N9b", "N8", "S8"): k1_cons_loop(var)
    lab("K1_EPI")
    if DUM: e("s_cmp_eq_u32 s34, 1"); e("s_cbranch_scc1 K1_ret")
    st.mark()
    e("s_waitcnt lgkmcnt(0)")
    e("v_lshlrev_b32 v10, 4, v1")
    e(f"s_cmp_eq_u32 s{S_TYPE}, 2"); e("s_cbranch_scc1 K1_EPI_KV")
    e(f"s_cmp_eq_u32 s{S_TYPE}, 3"); e("s_cbranch_scc1 K1_EPI_Q")
    c0 = -2 * 0.7978845608028654 * LOG2E; c1 = c0 * 0.044715
    e(f"v_mov_b32 v12, {fbits(c1)}"); e(f"v_mov_b32 v13, {fbits(c0)}")
    def f_epi(items, tb):
        pr = []
        for k, (acc, soff, imm) in enumerate(items):
            pr += [(acc + 2 * j, acc + 8 + 2 * j, tb + 8 * k + 2 * j) for j in range(4)]
        n = 2 * len(pr); o = tb + 16
        if items[0][0] < V_ACC + 16 * int(opt('skip', '0')):
            for k, (acc, soff, imm) in enumerate(items):
                e(f"buffer_store_dwordx4 {vr(acc,4)}, v10, s[20:23], s{soff} offen offset:{imm} {HSC}")
            return
        for g, u, tt in pr: e(f"v_pk_mul_f32 {vr(tt,2)}, {vr(g,2)}, {vr(g,2)}")
        for g, u, tt in pr: e(f"v_pk_fma_f32 {vr(tt,2)}, {vr(tt,2)}, v[12:13], v[12:13] op_sel:[0,0,1] op_sel_hi:[1,0,1]")
        for g, u, tt in pr: e(f"v_pk_mul_f32 {vr(tt,2)}, {vr(tt,2)}, {vr(g,2)}")
        for j in range(n): e(f"v_exp_f32 v{tb+j}, v{tb+j}")
        for g, u, tt in pr: e(f"v_pk_mul_f32 {vr(g,2)}, {vr(g,2)}, {vr(u,2)}")
        for g, u, tt in pr: e(f"v_pk_add_f32 {vr(tt,2)}, {vr(tt,2)}, 1.0 op_sel_hi:[1,0]")
        for j in range(n): e(f"v_rcp_f32 v{tb+j}, v{tb+j}")
        for g, u, tt in pr: e(f"v_pk_mul_f32 {vr(g,2)}, {vr(g,2)}, {vr(tt,2)}")
        for j, (g, u, tt) in enumerate(pr): e(f"v_cvt_pk_bf16_f32 v{o+j}, v{g}, v{g+1}")
        for k, (acc, soff, imm) in enumerate(items):
            e(f"buffer_store_dwordx4 {vr(o+4*k,4)}, v10, s[20:23], s{soff} offen offset:{imm} {HSC}")
    for a in range(4):
        if a == 0 and opt('f1', '0') == '1':
            f_epi([(V_ACC, 64, 0)], 56); f_epi([(V_ACC + 16, 65, 0)], 32)
        else: f_epi([(V_ACC + 32 * a, 64, 1024 * a), (V_ACC + 32 * a + 16, 65, 1024 * a)], 32 + 24 * (a % 2))
    e(f"s_cmp_eq_u32 s{S_TYPE}, 1"); e("s_cbranch_scc0 K1_JOIN")
    f_epi([(V_ACC + 128, 66, 0)], 32)
    e("s_branch K1_JOIN")
    lab("K1_EPI_Q")
    e(f"s_mov_b32 s68, {fbits(LOG2E)}"); e(f"s_mov_b32 s69, {fbits(1e-6)}")
    e("s_add_u32 s66, s64, 8192"); e("s_add_u32 s67, s65, 8192")
    def phi(acc, t):
        for j in range(8): e(f"v_pk_mul_f32 {vr(t+2*j,2)}, {vr(acc+2*j,2)}, s[68:69] op_sel_hi:[1,0]")
        for j in range(16): e(f"v_exp_f32_e64 v{t+j}, v{t+j} clamp")
        for j in range(16): e(f"v_max_f32 v{acc+j}, s69, v{acc+j}")
        for j in range(8): e(f"v_pk_add_f32 {vr(acc+2*j,2)}, {vr(acc+2*j,2)}, {vr(t+2*j,2)}")
    QD = int(opt('qd', '0')); held = []
    for i in range(8):
        a, f = i >> 1, i & 1
        acc = V_ACC + 16 * i; o = acc
        if i >= int(opt('skip', '0')):
            phi(acc, 32)
            for j in range(8): e(f"v_cvt_pk_bf16_f32 v{o+j}, v{acc+2*j}, v{acc+2*j+1}")
        held += [f"buffer_store_dwordx4 {vr(o,4)}, v10, s[20:23], s{64+f} offen offset:{1024*a} {HSC}",
                 f"buffer_store_dwordx4 {vr(o+4,4)}, v10, s[20:23], s{66+f} offen offset:{1024*a} {HSC}"]
        if i < 8 - QD or i == 7:
            for x in held: e(x)
            held = []
    e("s_branch K1_JOIN")
    lab("K1_EPI_KV")
    e(f"s_mov_b32 s68, {fbits(LOG2E)}"); e(f"s_mov_b32 s69, {fbits(1e-6)}")
    for r in range(4): e(f"v_mov_b32 v{80+r}, s{S_ONES}")
    e("v_and_b32 v3, 3, v1"); e("v_bfe_u32 v4, v1, 2, 1"); e("v_lshl_add_u32 v3, v4, 3, v3"); e("v_bfe_u32 v4, v1, 3, 1"); e("v_lshl_add_u32 v3, v4, 2, v3")
    e("v_lshrrev_b32 v4, 5, v1"); e("v_lshl_add_u32 v3, v4, 6, v3"); e("v_bfe_u32 v4, v1, 4, 1"); e("v_lshlrev_b32 v3, 2, v3")
    e("v_lshl_add_u32 v5, v4, 8, v3"); e("v_lshl_add_u32 v3, v4, 12, v3")
    e(f"s_sub_u32 s3, s{S_T}, 10"); e(f"s_lshl3_add_u32 s3, s3, s{S_Q}"); e("s_lshl_b32 s64, s3, 10"); e(f"s_add_u32 s64, s64, {KV_OFF}")
    e("s_lshl_b32 s65, s3, 6"); e(f"s_add_u32 s65, s65, {KV_OFF + 32768}")
    e("s_mov_b32 s66, 0xffff0000"); e("s_mov_b32 s67, 0xffff0000")
    DK, DZ = 224, V_ACC + 64
    prev = []
    for f in range(4):
        ak = V_ACC + 16 * f; av = V_ACC + 64 + 16 * f; A = 48 + 16 * (f % 2); B = 56 + 16 * (f % 2); t = 32
        for j in range(8): e(f"v_pk_mul_f32 {vr(t+2*j,2)}, {vr(ak+2*j,2)}, s[68:69] op_sel_hi:[1,0]")
        for j in range(16):
            if j % 3 == 0 and prev: e(prev.pop(0))
            e(f"v_exp_f32_e64 v{t+j}, v{t+j} clamp")
        for j in range(16): e(f"v_max_f32 v{ak+j}, s69, v{ak+j}")
        for j in range(8): e(f"v_cvt_pk_bf16_f32 v{B+j}, v{av+2*j}, v{av+2*j+1}")
        for j in range(8): e(f"v_pk_add_f32 {vr(ak+2*j,2)}, {vr(ak+2*j,2)}, {vr(t+2*j,2)}")
        for j in range(8): e(f"v_cvt_pk_bf16_f32 v{A+j}, v{ak+2*j}, v{ak+2*j+1}")
        prev = [mfma(DK, B, A, "0" if f == 0 else None), mfma(DK, B + 4, A + 4), mfma(DZ, 80, A, "0" if f == 0 else None), mfma(DZ, 80, A + 4)]
    if "kmarks" in X: st.mark(10)
    e("s_nop 1")
    for x in prev: e(x)
    e("s_nop 9")
    e("s_mov_b64 exec, s[66:67]")
    for r in range(8): e(f"v_mov_b32 v{DK+r}, v{DK+8+r}")
    e("s_mov_b64 exec, -1")
    for r in range(8):
        e(f"buffer_atomic_add_f32 v{DK+r}, v3, s[20:23], s64 offen offset:{64*(8*(r//4) + r%4)}")
    e("s_mov_b64 exec, 0xffffffff")
    e(f"buffer_atomic_add_f32 v{DZ}, v5, s[20:23], s65 offen")
    e("s_mov_b64 exec, -1")
    lab("K1_JOIN")
    st.mark()
    V_STG, V_TOK, XU, V_SS, V_AY, V_XRES, V_OUT = 32, 120, 168, 184, 200, 232, 11
    NT = 12
    tr_lane(12)
    e(f"s_lshl_b32 s3, s{S_UH}, 6"); e("v_xor_b32 v12, s3, v12")
    for r, (b0, k) in ((14, (54, 8)), (20, (34, 18)), (24, (0, 36)), (28, (72, 4)), (12, (16, 9))):
        e(f"s_mul_i32 s3, s{S_UH}, {k*2048}"); e(f"s_add_u32 s3, s3, {b0*2048}"); e(f"v_add_u32 v{r}, s3, v12"); e(f"v_xor_b32 v{r+1}, 64, v{r}")
    lwait(4, 4, "g")
    for j in range(8):
        for nf in range(2):
            for rd in range(2):
                e(f"ds_read_b64_tr_b16 {vr(V_STG+8*j+4*nf+2*rd,2)}, v{14+nf} offset:{j*2048 + rd*1024}")
    e(f"s_lshl_b32 s64, s{S_MB}, 7"); e(f"s_lshl2_add_u32 s64, s{S_T}, s64"); e(f"s_cmp_eq_u32 s{S_TYPE}, 3"); e(f"s_cselect_b32 s3, {2048-52}, 0")
    e("s_add_u32 s64, s64, s3"); e(f"s_add_u32 s64, s64, {FLG_OFF}")
    e("v_mov_b32 v7, 1")
    e("v_and_b32 v3, 31, v1"); e("v_lshrrev_b32 v4, 5, v1"); e(f"v_lshlrev_b32 v{V_OUT}, 10, v3"); e(f"v_lshl_add_u32 v{V_OUT}, v4, 4, v{V_OUT}")
    e(f"s_lshl_b32 s77, s{S_MT}, 16"); e(f"s_lshl_b32 s3, s{S_NT}, 7"); e("s_add_u32 s77, s77, s3")
    e(f"s_lshl_b32 s3, s{S_TG}, 15"); e("s_add_u32 s77, s77, s3"); e(f"s_lshl_b32 s3, s{S_UH}, 6"); e("s_add_u32 s77, s77, s3")
    srd(16, 92, 93, 2097152)
    e(f"s_lshl1_add_u32 s3, s{S_MT}, s{S_TG}"); e(f"s_mul_i32 s3, s3, {NKS*1024}")
    e("s_add_u32 s8, s38, s3"); e("s_addc_u32 s9, s39, 0"); e(f"s_mov_b32 s10, {86*1024}"); e("s_mov_b32 s11, 0x00020000")
    e(f"s_mul_i32 s79, s{S_UH}, 43"); e(f"s_add_u32 s79, s79, s{S_RY}"); e("s_sub_u32 s3, s79, 86"); e("s_cselect_b32 s79, s79, s3"); e("s_lshl_b32 s79, s79, 10")
    e("s_waitcnt vmcnt(0)")
    if "kmarks" in X: st.mark(13)
    e("s_mov_b64 exec, 1")
    e("ds_add_rtn_u32 v6, v27, v7")
    e("s_waitcnt lgkmcnt(0)")
    e("v_readfirstlane_b32 s66, v6")
    e("s_cmp_eq_u32 s66, 3"); e("s_cbranch_scc0 K2_noflag")
    e(f"s_cmp_eq_u32 s{S_TYPE}, 2"); e("s_cbranch_scc1 K2_kvflag")
    e(f"buffer_store_dword v7, off, s[20:23], s64 {SC if 'plainflag' not in X else ''}")
    if "wbl2" in X:
        e(f"s_cmp_eq_u32 s{S_T}, 9"); e("s_cbranch_scc0 K2_noflag"); e("buffer_wbl2 sc1")
    e("s_branch K2_noflag")
    lab("K2_kvflag")
    e("v_mov_b32 v6, 1")
    e(f"buffer_atomic_add v6, off, s[24:27], 0 offset:128 {SC}")
    e("s_waitcnt vmcnt(0)")
    e("v_readfirstlane_b32 s66, v6")
    e("s_and_b32 s66, s66, 63")
    e("s_cmp_eq_u32 s66, 63"); e("s_cbranch_scc0 K2_noflag")
    e("s_mov_b64 exec, 0xffff")
    e("v_lshlrev_b32 v6, 7, v1"); e(f"s_mov_b32 s66, {FLG_OFF + 2048}")
    e(f"buffer_store_dword v7, v6, s[20:23], s66 offen {SC}")
    lab("K2_noflag")
    e("s_mov_b64 exec, -1")
    st.mark()
    e("s_barrier")
    e(f"s_setprio {opt('yp','0')}")
    e(f"s_lshl_b32 s64, s{S_WAVE}, 13"); e(f"s_add_u32 s3, s64, {32768 + 2048}"); e("v_add_u32 v16, s3, v10"); e("v_xor_b32 v17, 0x4000, v16")
    e(f"s_lshl_b32 s64, s{S_TG}, 13"); e(f"s_lshl_b32 s65, s{S_UH}, 12"); e("s_add_u32 s64, s64, s65"); e("v_add_u32 v18, s64, v10"); e(f"v_add_u32 v19, {36*2048}, v18")
    e(f"s_mov_b32 s68, {fbits(-LOG2E)}"); e(f"s_mov_b32 s70, {86*1024}"); e("s_movk_i32 s71, 1024")
    XPRE = opt('xpre', '1') == '1'
    if XPRE:
        e(f"buffer_load_dwordx4 {vr(V_XRES,4)}, v{V_OUT}, s[16:19], s77 offen")
        e(f"buffer_load_dwordx4 {vr(V_XRES+4,4)}, v{V_OUT}, s[16:19], s77 offen offset:32")
        srd(16, 86, 87, 2097152)
        e("s_waitcnt vmcnt(0)")
    e(f"s_cmp_eq_u32 s{S_WAVE}, 0"); e("s_cbranch_scc0 K2_ywait")
    e("v_lshlrev_b32 v4, 2, v1")
    e(f"s_lshr_b32 s64, s{S_MT}, 1"); e("s_lshl_b32 s64, s64, 7"); e(f"s_add_u32 s64, s64, {FLG_OFF}")
    e("s_mov_b32 s90, 0"); e("s_mov_b64 exec, 0x3ff")
    lab("K2_poll")
    e(f"buffer_load_dword v5, v4, s[20:23], s64 offen {SC}")
    e("s_add_u32 s90, s90, 1")
    e("s_waitcnt vmcnt(0)")
    e("v_cmp_ne_u32 vcc, 0, v5")
    e("s_cmp_eq_u32 vcc_lo, 0x3ff"); e("s_cbranch_scc1 K2_yset")
    e(f"s_sleep {opt('slp','3')}")
    e("s_cmp_lt_u32 s90, 0x100000"); e("s_cbranch_scc1 K2_poll")
    lab("K2_yset")
    lsig(16)
    lab("K2_ywait")
    lwait(16, 1, "y", 1)
    st.mark()
    NS = 43
    PH[0] = "y"
    def tok(j):
        e(f"buffer_load_dwordx4 {vr(V_TOK+4*(j%NT),4)}, v10, s[8:11], s79 offen {SC}")
        if j < NS - 1: e("s_add_u32 s79, s79, s71"); e("s_cmp_eq_u32 s79, s70"); e("s_cselect_b32 s79, 0, s79")
    TD = int(opt('td', '5')); ZP = int(opt('zp', '22')); Z2 = int(opt('z2', '30'))
    TD1 = int(opt('td1', str(TD))); JT = int(opt('jt', '12')); XJ = int(opt('xj', '10'))
    def wslot(j):
        if j <= ZP + 9: return V_STG + 8 * (j % 11)
        return wslot(ZP - 1 + (j - ZP - 10) % 3)
    def wr(j):
        b = wslot(j)
        for nf in range(2):
            for rd in range(2):
                r, j0 = (12, 8) if j < 17 else (20, 17) if j < 19 else (28, 19) if j < 23 else (24, 23) if j < 39 else (14, 39)
                e(f"ds_read_b64_tr_b16 {vr(b+4*nf+2*rd,2)}, v{r+nf} offset:{(j-j0)*2048 + rd*1024}")
    used = {wslot(j) for j in range(ZP + 10, NS)}
    free = [V_STG + 8 * k for k in range(11) if V_STG + 8 * k not in used]
    if PB16: free = [wslot(ZP + 2 + k) for k in range(8)]
    assert Z2 >= ZP + (7 if PB16 else 10) and ZP >= 21 and PB16 and XJ + TD1 + 2 < ZP
    tq = [f + 4 * h for f in free for h in range(2)][:12]
    sread = [f"ds_read_b128 {vr(V_SS+4*r,4)}, v18 offset:{1024*r}" for r in range(4)]
    for k in range(1, 4):
        sread += [f"ds_read_b128 {vr(tq[4*(k-1)+r],4)}, v{19 if k == 3 else 18} offset:{[0, 32768, 49152, 0][k] + 1024*r}" for r in range(4)]
    sadd = [f"v_add_f32 v{V_SS+4*r+c}, v{V_SS+4*r+c}, v{tq[4*(k-1)+r]+c}" for k in range(1, 4) for r in range(4) for c in range(4)]
    if PB16:
        sread = []
        for k in range(4):
            sread += [f"ds_read_b128 {vr(tq[2*k+r],4)}, v{19 if k == 3 else 18} offset:{[0, 32768, 49152, 0][k] + 1024*r}" for r in range(2)]
        sadd = []
        for k in range(4):
            for c in range(8):
                src = tq[2*k + c//4] + c % 4
                if k == 0: sadd += [f"v_lshlrev_b32 v{V_SS+2*c}, 16, v{src}", f"v_and_b32 v{V_SS+2*c+1}, s{S_MASK}, v{src}"]
                else:
                    t = 2 + (c % 2)
                    sadd += [f"v_lshlrev_b32 v{t}, 16, v{src}", f"v_and_b32 v{src}, s{S_MASK}, v{src}",
                             f"v_add_f32 v{V_SS+2*c}, v{V_SS+2*c}, v{t}", f"v_add_f32 v{V_SS+2*c+1}, v{V_SS+2*c+1}, v{src}"]
    for j in range(TD): tok(j)
    ntok = TD
    for j in range(8, 11): wr(j)
    first_late = min(j for j in range(NS) if (j + 10 >= 39 and j < ZP) or (j >= ZP + 8 and j + 2 >= 39))
    if first_late > (Z2 if LD else ZP): first_late = -1
    def pre(j):
        nonlocal ntok
        def f1():
            nonlocal ntok
            for _ in range(2):
                if ntok < NS and ntok - j <= (TD if j < JT else TD1): tok(ntok); ntok += 1
            if j == XJ and not XPRE:
                xat[0] = ntok
                e(f"buffer_load_dwordx4 {vr(V_XRES,4)}, v{V_OUT}, s[16:19], s77 offen")
                e(f"buffer_load_dwordx4 {vr(V_XRES+4,4)}, v{V_OUT}, s[16:19], s77 offen offset:32")
                srd(16, 86, 87, 2097152)
        def f2():
            if j == 13: lwait(12, 4, "r")
            if j == Z2: e("s_barrier")
            if j == first_late: lwait(8, 4, "l")
            if Z2 <= j < Z2 + 4:
                for x in sread[4*(j-Z2):4*(j-Z2)+4]: e(x)
            if 1 <= j < ZP: wr(j + 10)
            elif j >= ZP + 8 and j + 2 < NS: wr(j + 2)
            if j == ZP: e("s_waitcnt lgkmcnt(0)"); e("s_barrier")
        return capture(f1), capture(f2)
    xat = [None]
    xun = [f"v_permlane32_swap_b32 v{V_XRES+a_}, v{V_XRES+b_}" for a_, b_ in ((0, 2), (1, 3), (4, 6), (5, 7))]
    for j in range(8): xun += [f"v_lshlrev_b32 v{XU+2*j}, 16, v{V_XRES+j}", f"v_and_b32 v{XU+1+2*j}, s{S_MASK}, v{V_XRES+j}"]
    L.extend(pre(0)[0])
    for j in range(NS):
        if "ymarks" in X and j in (1, 8, 16, ZP - 1, ZP, Z2 - 1): st.mark()
        lg = ""
        if 8 <= j < ZP: lg = " lgkmcnt(12)"
        elif j >= ZP + 10: lg = f" lgkmcnt({4 * min(2, NS - 1 - j)})"
        elif PB16 and j == Z2 + 3: lg = " lgkmcnt(4)"
        e(f"s_waitcnt vmcnt({ntok - 1 - j + (2 if xat[0] is not None and j < xat[0] else 0)})" + lg)
        adds = []
        if j >= ZP and xun: adds = [xun.pop(0) for _ in range(min(len(xun), 4))]
        if j >= Z2 + (3 if PB16 else 5): adds = [sadd.pop(0) for _ in range(min(len(sadd), int(opt('na', '10'))))]
        A_, B_ = pre(j + 1) if j + 1 < NS else ([], [])
        e(mfma(V_AY + 16, wslot(j) + 4, V_TOK + 4 * (j % NT), "0" if j == 0 else None))
        L.extend(A_)
        for x in adds[:6]: e(x)
        e(mfma(V_AY, wslot(j), V_TOK + 4 * (j % NT), "0" if j == 0 else None))
        L.extend(B_)
        for x in adds[6:]: e(x)
    st.mark()
    for x in sadd: e(x)
    e("s_nop 10")
    for r in range(4): e(f"ds_write_b128 v16, {vr(V_AY+16+4*r,4)} offset:{4096*(r//2) + 1024*(r%2)}")
    e("s_waitcnt lgkmcnt(0)")
    e("s_barrier")
    for r in range(4): e(f"ds_read_b128 {vr(32+4*r,4)}, v17 offset:{4096*(r//2) + 1024*(r%2)}")
    for r in range(4):
        e(f"s_waitcnt lgkmcnt({3-r})")
        for j in (2*r, 2*r+1): e(f"v_pk_add_f32 {vr(V_AY+2*j,2)}, {vr(V_AY+2*j,2)}, {vr(32+2*j,2)}")
    for j in range(8): e(f"v_pk_mul_f32 {vr(32+2*j,2)}, {vr(V_AY+2*j,2)}, s[68:69] op_sel_hi:[1,0]")
    for j in range(16): e(f"v_exp_f32 v{32+j}, v{32+j}")
    for j in range(8): e(f"v_pk_mul_f32 {vr(V_AY+2*j,2)}, {vr(V_AY+2*j,2)}, {vr(V_SS+2*j,2)}")
    for j in range(8): e(f"v_pk_add_f32 {vr(32+2*j,2)}, {vr(32+2*j,2)}, 1.0 op_sel_hi:[1,0]")
    for h in range(2):
        for j in range(8*h, 8*h+8): e(f"v_rcp_f32 v{32+j}, v{32+j}")
        for j in range(4*h, 4*h+4): e(f"v_pk_fma_f32 {vr(32+2*j,2)}, {vr(32+2*j,2)}, {vr(V_AY+2*j,2)}, {vr(XU+2*j,2)}")
        for j in range(4*h, 4*h+4): e(f"v_cvt_pk_bf16_f32 v{64+j}, v{32+2*j}, v{33+2*j}")
        e("s_nop 1")
        for a_, b_ in ((0, 2), (1, 3)): e(f"v_permlane32_swap_b32 v{64+4*h+a_}, v{64+4*h+b_}")
        e(f"buffer_store_dwordx4 {vr(64+4*h,4)}, v{V_OUT}, s[16:19], s77 offen offset:{32*h}")
    if "fixspan" in X:
        lab("K_fix")
        e("s_memrealtime s[96:97]"); e("s_waitcnt lgkmcnt(0)"); e("s_sub_u32 s96, s96, s94"); e(f"s_cmp_lt_u32 s96, {opt('fix','5000')}"); e("s_cbranch_scc1 K_fix")
    if STAMP:
        st.mark(); e("s_waitcnt vmcnt(0)"); st.mark()
        st.dump(S_WAVE, "K_END")
    lab("K_END")
    e("s_endpgm")

hdr = f"""; Fused block in one launch: phase 1 = LayerNorm + QKV/gate/up GEMM + phi/GEGLU epilogues + kv reduction,
; @launch grid=(256,1,1) block=(512,1,1) lds=163840
.amdgcn_target "amdgcn-amd-amdhsa--gfx950"
.text"""
kernel()
kd = f""".amdhsa_kernel {NAME}_kernel
  .amdhsa_next_free_vgpr 256
  .amdhsa_next_free_sgpr 102
  .amdhsa_accum_offset 256
  .amdhsa_group_segment_fixed_size 0
  .amdhsa_kernarg_size 80
  .amdhsa_user_sgpr_count 2
  .amdhsa_user_sgpr_kernarg_segment_ptr 1
  .amdhsa_system_sgpr_workgroup_id_x 1
.end_amdhsa_kernel"""
open(OUT, "w").write(hdr + "\n" + "\n".join(L) + '\n.section .rodata,"a"\n.p2align 6\n' + kd + "\n")
```

```python
import sys, struct
STAMP = "--stamp" in sys.argv
OUT = [a for a in sys.argv[1:] if not a.startswith("--")]
NAME = "recurrent_scan__linear_attn_block__glu_gated_geglu__prompt"
OUT = OUT[0] if OUT else f"cdna_kernels/{NAME}.s"
X = set(a[2:] for a in sys.argv if a.startswith("--"))
def opt(name, dflt):
    r = [a[len(name)+3:] for a in sys.argv if a.startswith('--' + name + '=')]
    return r[0] if r else dflt

L = []
PH = [""]
def e(s):
    if PH[0] in ("s", "y") and "plainld" in X and s.startswith("buffer_load"): s = s.replace(" sc0 sc1", "")
    if PH[0] == "s" and "nosv" in X and s.split()[0] in ("v_mul_f32", "v_cvt_pk_bf16_f32", "v_rcp_f32", "v_add_f32", "v_mov_b32", "v_permlane16_swap_b32"): return
    if PH[0] == "s" and "nokv" in X and s.startswith("buffer_load") and ", v11," in s: s = s.replace(", v11,", ", v10,")
    if PH[0] == "s":
        if "nosld" in X and s.startswith("buffer_load_dwordx4"): return
        if "nosmf" in X and s.startswith("v_mfma"): return
        if "nosw" in X and s.startswith("ds_write_b128"): return
    if PH[0] == "y":
        if "noyld" in X and s.startswith("buffer_load_dwordx4"): return
        if "noymf" in X and s.startswith("v_mfma"): return
        if "noyrd" in X and s.startswith("ds_read_b64_tr"): return
    L.append("    " + s)
def lab(s): L.append(s + ":")
def vr(b, n): return f"v[{b}:{b+n-1}]"
def fbits(x): return "0x%08x" % struct.unpack("<I", struct.pack("<f", x))[0]

NKS = 118
KV_OFF = 0x800000
KV_BYTES = 32 * 1088
FLG_OFF = KV_OFF + 0x10000
FS = int(opt('fs', '7'))
FLG_BYTES = 256 << FS
WS_USED = FLG_OFF + FLG_BYTES
STAMP_OFF = 0x8000000
LOG2E = 1.4426950408889634
B128 = opt("xl", "b128") == "b128"
SC = "sc0 sc1"
HSC = "" if "plainh" in X else SC

def srd(d, lo, hi, size):
    e(f"s_mov_b32 s{d}, s{lo}"); e(f"s_mov_b32 s{d+1}, s{hi}")
    e(f"s_mov_b32 s{d+2}, {size}"); e(f"s_mov_b32 s{d+3}, 0x00020000")

class Stamps:
    def __init__(self): self.n = 0
    def mark(self, i=None):
        if "fixspan" in X and i is None:
            if self.n in (0, int(opt('fixat', '0'))): e("s_memrealtime s[94:95]"); e("s_waitcnt lgkmcnt(0)")
            self.n += 1
        if STAMP:
            k = self.n if i is None else i
            e("s_memtime s[98:99]"); e("s_memrealtime s[100:101]"); e("s_waitcnt lgkmcnt(0)")
            e(f"v_writelane_b32 v255, s98, {2*k}"); e(f"v_writelane_b32 v255, s100, {2*k+1}")
            if i is None: self.n += 1
    def dump(self, swave, label):
        if not STAMP: return
        e(f"s_cmp_lg_u32 s{swave}, {opt('sw', '0')}"); e(f"s_cbranch_scc1 {label}")
        srd(4, 38, 39, "0x10000000")
        e("s_lshl_b32 s3, s2, 7"); e(f"s_add_u32 s3, s3, {STAMP_OFF}")
        e("v_lshlrev_b32 v3, 2, v1"); e("s_mov_b64 exec, 0xffffffff")
        if "imarks" in X:
            for k in range(1, 9):
                e(f"v_readlane_b32 s98, v254, {k}"); e("s_nop 3"); e(f"v_writelane_b32 v255, s98, {21+k}")
        e(f"buffer_store_dword v255, v3, s[4:7], s3 offen")
        if "dbgspan" in X:
            e("v_lshlrev_b32 v3, 1, v1"); e("v_add_u32 v3, 6, v3"); e("s_mov_b32 exec_lo, 0x000aaaaa"); e("s_mov_b32 exec_hi, 0")
            e("buffer_atomic_umax v255, v3, s[24:27], 0 offen")
            e("v_not_b32 v4, v255"); e("s_mov_b64 exec, 2")
            e("buffer_atomic_umax v4, off, s[24:27], 0 offset:4")
st = Stamps()

XST = 16384; WBASE = 32768; SEGB = 18560; WST = 36992; KVP = 146432; LCNT = 144000; WOA = 38 * 2048
V_VW = 10
V_VX, V_XW, V_DV = 19, 88, 21
TAB = [4, 5, 0, 10, 6, 1, 11, 14, 7, 8, 2, 12, 9, 3, 13, 15]
V_NA = 22; V_ST = 30; V_UT = 40; V_PK = 72; V_XR = 96
V_XA, V_WA = 22, 26
V_SET = [32, 60]
V_ACC = 96
S_WAVE, S_TG, S_UH, S_MB, S_T, S_STR, S_U0, S_CNT = 40, 41, 42, 43, 44, 45, 46, 47
S_DMAW, S_KW, S_KS, S_HFO, S_Q, S_XI, S_MASK, S_ONES = 48, 49, 50, 51, 52, 53, 54, 55
S_RST, S_DST, S_TYPE, S_STR64, S_STR32, S_TMP, S_TMP2 = 56, 57, 58, 59, 60, 61, 62
S_RW, S_KWEND, S_RX, S_GX, S_XW = 72, 73, 63, 60, 79
S_MT, S_NT, S_R2, S_RY = 74, 75, 76, 91

KS = int(opt('ks', '5')); SPL = opt('spl', '0') == '1'
def k1_dma():
    G = []
    for p in range(9):
        g = [f"s_add_u32 m0, s{S_DMAW}, {1024*p}"]
        g.append(f"s_add_u32 s{S_KS}, s{S_KW}, s{S_HFO}" if p in (0, KS) else "s_nop 0")
        g.append(f"buffer_load_dwordx4 v{V_VW+p}, s[8:11], s{S_KS} offen {opt('wf','')} lds")
        G.append(g)
    G[-1] += [f"s_add_u32 s{S_KW}, s{S_KW}, s{S_STR64}", f"s_add_u32 s{S_DST}, s{S_DST}, 1",
              f"s_cmp_eq_u32 s{S_KW}, s{S_KWEND}", f"s_cselect_b32 s{S_KW}, 0, s{S_KW}",
              f"s_cmp_eq_u32 s{S_DST}, 3", f"s_cselect_b32 s{S_TMP}, {-2*WST & 0xffffffff}, s{S_TMP2}",
              f"s_cselect_b32 s{S_DST}, 0, s{S_DST}", f"s_add_u32 s{S_DMAW}, s{S_DMAW}, s{S_TMP}"]
    return G

def k1_reads(s_, p, var):
    b = V_SET[s_]
    if var == "S8":
        x = lambda f: f"ds_read_b128 {vr(b+4*f,4)}, v{V_XA+p} offset:{4096*f}" if B128 else f"ds_read_b128 {vr(b+4*f,4)}, v{V_XA} offset:{4096*f+256*p}"
        w = lambda a: [f"ds_read_b64_tr_b16 {vr(b+16+4*a+2*rd,2)}, v{V_WA} offset:{p*4608+1152*rd+SEGB*a}" for rd in range(2)]
        return [x(0)] + w(0) + w(1) + [x(1), x(2), x(3)]
    offs = [0, 32, 64, 96]
    if var == "N9a": offs.append(256)
    if var == "N9b": offs.append(128)
    def w(a): return [f"ds_read_b64_tr_b16 {vr(b+8+4*a,2)}, v{V_WA} offset:{p*4608+offs[a]}",
                      f"ds_read_b64_tr_b16 {vr(b+10+4*a,2)}, v{V_WA} offset:{p*4608+1152+offs[a]}"]
    x = lambda f: f"ds_read_b128 {vr(b+4*f,4)}, v{V_XA+p} offset:{4096*f}" if B128 else f"ds_read_b128 {vr(b+4*f,4)}, v{V_XA} offset:{4096*f+256*p}"
    r = [x(0)] + w(0) + [x(1)]
    for a in range(1, len(offs)): r += w(a)
    return r

def mfma(d, a, b, c=None):
    return f"v_mfma_f32_32x32x16_bf16 {vr(d,16)}, {vr(a,4)}, {vr(b,4)}, " + (vr(d, 16) if c is None else c)

def k1_mfma(s_, var):
    b = V_SET[s_]
    m = []
    if var == "S8":
        return [mfma(V_ACC + 16 * (4 * a + f), b + 4 * f, b + 16 + 4 * a) for f in range(4) for a in ((1, 0) if (f % 2 and opt('snake', '1') == '1') else (0, 1))]
    for a in range(4):
        for f in ((1, 0) if (a % 2 and opt('snake', '1') == '1') else (0, 1)):
            acc = V_ACC + 16 * (2 * a + f)
            W = b + 8 + 4 * a; X_ = b + 4 * f
            m.append(mfma(acc, X_, W) if var == "S8" else mfma(acc, W, X_))
    if var in ("N9a", "N9b"):
        m.append(mfma(V_ACC + 128, b + 24, b + (0 if var == "N9a" else 4)))
    return m

def k1_unpack(g):
    r = [f"s_set_gpr_idx_on s{S_XI}, gpr_idx(SRC1)", "s_nop 0"]
    for j in range(4 * g, 4 * g + 4):
        r.append(f"v_lshlrev_b32 v{V_UT+2*j}, 16, v{V_XR+j}")
        r.append(f"v_and_b32 v{V_UT+2*j+1}, s{S_MASK}, v{V_XR+j}")
    r.append("s_set_gpr_idx_off")
    return r
def k1_norm(g):
    a = V_NA + 2 * g; j0 = 4 * g
    return [f"v_fma_f32 v{V_UT+2*j0+k}, v{V_UT+2*j0+k}, v{a}, v{a+1}" for k in range(8)] + \
           [f"v_cvt_pk_bf16_f32 v{V_PK+j}, v{V_UT+2*j}, v{V_UT+2*j+1}" for j in range(j0, j0 + 4)]
def k1_xw(g):
    if B128: return [f"ds_write_b128 v{V_XW+g}, {vr(V_PK+4*g,4)}", f"v_xor_b32 v{V_XW+g}, {XST}, v{V_XW+g}"]
    return [f"s_xor_b32 m0, s{S_XW}, {4096*g}", "s_nop 0"] + [f"ds_write_addtid_b32 v{V_PK+4*g+j} offset:{256*j}" for j in range(4)]
def k1_xadv():
    return [f"s_xor_b32 s{S_XW}, s{S_XW}, {XST}", f"s_add_u32 s{S_XI}, s{S_XI}, 16", f"s_and_b32 s{S_XI}, s{S_XI}, 127"]

def layout(body):
    n = len(body)
    for i, it in enumerate(body):
        if it[0] == 'm' and it[2]:
            cnt = 0; j = i; w = None
            while True:
                j = (j - 1) % n
                o = body[j]
                if o[0] == 'w0': break
                if o[0] == 'l':
                    if o[2] in it[2]: w = cnt; break
                    cnt += 1
                if j == i: break
            if w is not None: e(f"s_waitcnt lgkmcnt({min(w, 15)})")
        if it[1].endswith(":"): L.append(it[1])
        else: e(it[1])

def k1_cons_loop(var):
    def need(p):
        if var == "S8": return [[(p, 2)], [(p, 4)], [(p, 5)], [], [(p, 6)], [], [(p, 7)], []]
        return [[(p, 2)], [(p, 3)], [(p, 5)], [], [(p, 7)], [], [(p, 9)], [], [(p, 11)]]
    rs = {'a': [2, 2, 2, 2, 2, 2, 0, 0, 0], 'b': [2, 1, 1, 2, 1, 1, 2, 1, 1] if var in ('N9a', 'N9b') else [2, 1, 1, 1, 2, 1, 1, 1]}[opt('rs', 'a')]
    if var == "S8": rs = [2, 2, 1, 1, 1, 1, 0, 0]
    lab(f"K1_{var}")
    for x in k1_reads(0, 0, var): e(x)
    B = [('x', f"K1_{var}_loop:")]
    def stepx(s_, p, extra):
        mf = k1_mfma(s_, var); rd = k1_reads(s_ ^ 1, p + 1, var); ri = 0
        for i, m in enumerate(mf):
            B.append(('m', m, need(p)[i]))
            for _ in range(rs[i]):
                if ri < len(rd): B.append(('l', rd[ri], (p + 1, ri))); ri += 1
            for x in extra.get(i, []): B.append(('x', x))
    stepx(0, 0, {})
    stepx(1, 1, {6: [f"s_add_u32 s{S_RST}, s{S_RST}, 1", f"s_cmp_eq_u32 s{S_RST}, 3",
                     f"s_cselect_b32 s{S_TMP}, {-2*WST & 0xffffffff}, s{S_TMP2}", f"s_cselect_b32 s{S_RST}, 0, s{S_RST}"]})
    stepx(0, 2, {6: [f"v_xor_b32 v{V_XA+p}, {XST}, v{V_XA+p}" for p in range(1, 4)] if B128 else [],
                 7: [f"v_xor_b32 v{V_XA}, {XST}, v{V_XA}", f"v_add_u32 v{V_WA}, s{S_TMP}, v{V_WA}",
                     f"s_add_u32 s{S_CNT}, s{S_CNT}, 1", f"s_cmp_lt_u32 s{S_CNT}, 8"]})
    m = k1_mfma(1, var); nd = need(3)
    B.append(('m', m[0], nd[0])); B.append(('m', m[1], nd[1]))
    if "imarks" in X: B.append(('x', "s_memtime s[98:99]"))
    B.append(('w0', "s_waitcnt vmcnt(0) lgkmcnt(0)"))
    B.append(('x', "s_barrier"))
    if "imarks" in X:
        if "bw" in X:
            B.append(('x', "s_memtime s[100:101]")); B.append(('x', "s_waitcnt lgkmcnt(0)")); B.append(('x', "s_mul_i32 s98, s98, -1")); B.append(('x', "s_mul_i32 s98, s98, 1"))
            B.append(('x', "v_mov_b32 v253, s98")); B.append(('x', "v_add_u32 v253, s100, v253")); B.append(('x', "s_nop 0")); B.append(('x', "v_readfirstlane_b32 s98, v253")); B.append(('x', "s_nop 3"))
        B.append(('x', f"s_mov_b32 m0, s{S_CNT}")); B.append(('x', "s_nop 0")); B.append(('x', "v_writelane_b32 v254, s98, m0"))
    r0 = k1_reads(0, 0, var); ri = 0
    for i in range(2, len(m)):
        B.append(('m', m[i], []))
        for _ in range(3 if i < 4 else 2):
            if ri < len(r0): B.append(('l', r0[ri], (0, ri))); ri += 1
    assert ri == len(r0)
    B.append(('x', f"s_cbranch_scc1 K1_{var}_loop"))
    layout(B)
    e("s_branch K1_EPI")

def kernel():
    LA = {'2': 1, '4': 2, '8': 3}[opt('a', '4')]
    L.append(f".globl {NAME}_kernel"); L.append(".p2align 8"); L.append(f".type {NAME}_kernel,@function"); lab(f"{NAME}_kernel")
    if STAMP: e("v_mov_b32 v255, 0")
    st.mark()
    e("s_load_dwordx2 s[4:5], s[0:1], 0")
    e("s_load_dwordx4 s[28:31], s[0:1], 8")
    e("s_load_dwordx8 s[80:87], s[0:1], 32")
    e("s_load_dwordx4 s[36:39], s[0:1], 64")
    e("s_cmp_ge_u32 s2, 256"); e("s_cbranch_scc1 K_END")
    e(f"s_and_b32 s3, s2, {(1 << LA) - 1}"); e(f"s_bfe_u32 s64, s2, {((4-LA) << 16) | 3:#x}")
    e(f"s_lshl_b32 s3, s3, {4-LA}"); e(f"s_add_u32 s{S_MB}, s3, s64")
    e(f"s_lshr_b32 s65, s2, {7-LA}")
    e("v_bfe_u32 v3, v0, 3, 5"); e("v_and_b32 v4, 7, v0")
    e(f"s_and_b32 s{S_GX}, s65, {int(opt('rx','3')) & 3}"); e(f"s_and_b32 s{S_RX}, s65, {int(opt('rx','3')) & 4}")
    if B128: e("v_bfe_u32 v5, v0, 4, 3"); e("v_xor_b32 v5, v5, v4")
    else: e("v_lshrrev_b32 v5, 5, v0"); e("v_and_b32 v5, 4, v5"); e("v_xor_b32 v5, v5, v4")
    e(f"v_lshlrev_b32 v{V_VX}, 10, v3"); e(f"v_lshl_add_u32 v{V_VX}, v5, 4, v{V_VX}")
    e(f"s_lshl2_add_u32 s70, s{S_MB}, s{S_GX}"); e("s_lshl_b32 s70, s70, 8"); e(f"s_or_b32 s70, s70, s{S_RX}"); e("s_lshl_b32 s70, s70, 7")
    e("s_mov_b32 s6, 0x200000"); e("s_mov_b32 s7, 0x00020000")
    e("v_cmp_gt_u32 vcc, 0x100, v0"); e("s_cbranch_vccnz K1_cpf")
    def xload(i):
        g, c = divmod(i, 8)
        if c % 4 == 0 and i: e(f"s_xor_b32 s71, s70, {32768*g + 128*c}")
        e(f"buffer_load_dwordx4 {vr(V_XR+16*c+4*g,4)}, v{V_VX}, s[4:7], {'s71' if i >= 4 else 's70'} offen offset:{128*(c%4)} {opt('xf','')}")
    XD = int(opt('xd', '8'))
    e("s_waitcnt lgkmcnt(0)")
    if "emarks" in X: st.mark(10)
    X0 = int(opt('x0', '8'))
    for i in range(X0): xload(i)
    e("s_branch K1_setup")
    lab("K1_cpf")
    e("s_getpc_b64 s[66:67]")
    lab("K1_pc")
    e("s_and_b32 s3, s2, 0xf8")
    e("v_add_lshl_u32 v5, v0, s3, 7"); e(f"v_min_u32 v5, K_END-K1_pc, v5")
    e("v_cmp_gt_u32 vcc, 8, v0"); e("s_and_saveexec_b64 s[68:69], vcc"); e("s_cbranch_execz K1_nocpf")
    e("global_load_dword v21, v5, s[66:67]")
    lab("K1_nocpf")
    e("s_mov_b64 exec, -1")
    lab("K1_setup")
    e("v_lshrrev_b32 v2, 6, v0"); e("v_and_b32 v1, 63, v0")
    e(f"v_readfirstlane_b32 s{S_WAVE}, v2")
    e(f"s_bfe_u32 s3, s2, {((3-LA) << 16) | LA:#x}" if LA < 3 else "s_mov_b32 s3, 0"); e(f"s_lshl_b32 s3, s3, {LA+1}"); e("s_add_u32 s3, s3, s65")
    e(f"s_lshl_b32 s{S_RW}, s2, {3-LA}"); e(f"s_and_b32 s{S_RW}, s{S_RW}, {int(opt('xr','7'))}")
    e("s_lshl_b32 s3, s3, 2")
    tv = sum(t << (4 * i) for i, t in enumerate(TAB))
    e(f"s_mov_b32 s64, {tv & 0xffffffff:#x}"); e(f"s_mov_b32 s65, {tv >> 32:#x}")
    e("s_lshr_b64 s[64:65], s[64:65], s3"); e(f"s_and_b32 s{S_T}, s64, 15")
    e(f"s_and_b32 s{S_Q}, s{S_WAVE}, 3"); e(f"s_and_b32 s{S_TG}, s{S_WAVE}, 1"); e(f"s_lshr_b32 s{S_UH}, s{S_Q}, 1")
    e(f"s_lshl_b32 s{S_U0}, s{S_T}, 3")
    e(f"s_mul_i32 s3, s{S_T}, 9"); e("s_sub_u32 s3, s3, 4")
    e(f"s_cmp_ge_u32 s{S_T}, 4"); e(f"s_cselect_b32 s{S_U0}, s3, s{S_U0}"); e(f"s_cselect_b32 s{S_TYPE}, 1, 0")
    e(f"s_lshl_b32 s64, s{S_U0}, 5")
    e(f"s_lshl2_add_u32 s3, s{S_TG}, s{S_T}"); e("s_sub_u32 s3, s3, 6"); e("s_lshl_b32 s3, s3, 8")
    e(f"s_cmp_ge_u32 s{S_T}, 10"); e("s_cselect_b32 s64, s3, s64")
    e(f"s_cselect_b32 s{S_TYPE}, 2, s{S_TYPE}"); e(f"s_movk_i32 s3, 2752"); e(f"s_cselect_b32 s{S_STR}, 3072, s3")
    e(f"s_lshl1_add_u32 s3, s{S_T}, s{S_TG}"); e("s_sub_u32 s3, s3, 28"); e("s_lshl_b32 s3, s3, 8")
    e(f"s_lshl_b32 s67, s{S_T}, 4"); e(f"s_sub_u32 s67, s67, {14*16-86}")
    e(f"s_cmp_ge_u32 s{S_T}, 14"); e("s_cselect_b32 s64, s3, s64")
    e(f"s_cselect_b32 s{S_TYPE}, 3, s{S_TYPE}"); e(f"s_cselect_b32 s{S_U0}, s67, s{S_U0}")
    e(f"s_lshl_b32 s{S_STR64}, s{S_STR}, 6")
    e(f"s_cmp_eq_u32 s{S_TYPE}, 1"); e("s_cselect_b32 s66, 17, 15")
    if "emarks" in X: st.mark(11)
    e("s_movk_i32 s67, 3641"); e("s_movk_i32 s68, 0x13a")
    for p in range(9):
        src = "v1" if p == 0 else "v6"
        if p: e(f"v_add_u32 v6, 64, {'v1' if p == 1 else 'v6'}")
        e(f"v_mul_u32_u24 v5, s67, {src}"); e("v_lshrrev_b32 v5, 16, v5")
        e("v_mul_u32_u24 v7, 18, v5"); e(f"v_sub_u32 v7, {src}, v7"); e("v_min_u32 v7, s66, v7")
        if not B128:
            e("v_mul_u32_u24 v5, 0x821, v5"); e("v_bfe_u32 v5, v5, 3, 12"); e("v_and_b32 v5, s68, v5")
            e("v_mul_u32_u24 v5, 0x101, v5"); e("v_bfe_u32 v5, v5, 8, 6")
        e(f"v_mul_u32_u24 v5, s{S_STR}, v5"); e(f"v_lshl_add_u32 v{V_VW+p}, v7, 4, v5")
    e("s_waitcnt lgkmcnt(0)")
    e(f"s_cmp_eq_u32 s{S_TG}, 1")
    e("s_cselect_b64 s[8:9], s[82:83], s[80:81]"); e(f"s_cselect_b32 s{S_DMAW}, {SEGB}, 0")
    e(f"s_cmp_ge_u32 s{S_TYPE}, 2")
    e("s_cselect_b64 s[8:9], s[28:29], s[8:9]")
    e(f"s_lshl_b32 s{S_KWEND}, s{S_STR64}, 3")
    e("s_add_u32 s8, s8, s64"); e("s_addc_u32 s9, s9, 0"); e(f"s_sub_u32 s10, s{S_KWEND}, s64"); e("s_mov_b32 s11, 0x00020000")
    e(f"s_mul_i32 s{S_HFO}, s{S_UH}, s{S_STR64}"); e(f"s_lshr_b32 s{S_HFO}, s{S_HFO}, {1 if B128 else 4}")
    e(f"s_mul_i32 s3, s{S_UH}, 9216"); e(f"s_add_u32 s{S_DMAW}, s{S_DMAW}, s3"); e(f"s_add_u32 s{S_DMAW}, s{S_DMAW}, {WBASE}")
    e(f"s_mov_b32 s{S_TMP2}, {WST}"); e(f"s_mov_b32 s{S_CNT}, 0")
    e(f"s_mul_i32 s{S_KW}, s{S_RW}, s{S_STR64}"); e(f"s_mov_b32 s{S_DST}, 0")
    e("s_bfe_u32 s3, s2, 0x20003"); e(f"s_cmp_eq_u32 s3, s{S_WAVE}"); e("s_cselect_b32 s78, 1, 0")
    e("s_cbranch_scc0 K1_notlead")
    lab("K1_w0")
    for g in k1_dma():
        for x in g: e(x)
    e("s_cmp_eq_u32 s78, 0"); e("s_cbranch_scc1 K1_w0done")
    LW1 = opt('lw1', '0') == '1'
    if LW1:
        e("s_add_u32 s78, s78, 1"); e("s_cmp_eq_u32 s78, 2"); e("s_cbranch_scc1 K1_w0")
    lab("K1_notlead")
    e(f"s_mov_b32 s{S_MASK}, 0xffff0000"); e(f"s_mov_b32 s{S_ONES}, 0x3f803f80")
    srd(20, 38, 39, WS_USED); srd(24, 36, 37, 256)
    e("s_mov_b64 s[92:93], s[4:5]")
    B2 = opt('b2', '2') == '2'
    if B2:
        e("s_bfe_u32 s3, s2, 0x20001"); e("s_bfe_u32 s66, s2, 0x30003"); e(f"s_lshl3_add_u32 s{S_MT}, s3, s66")
        e("s_and_b32 s3, s2, 1"); e(f"s_lshr_b32 s{S_NT}, s2, 6"); e(f"s_lshl2_add_u32 s{S_NT}, s3, s{S_NT}")
    else:
        e("s_and_b32 s3, s2, 7"); e("s_bfe_u32 s66, s2, 0x20003"); e(f"s_lshl2_add_u32 s{S_MT}, s3, s66"); e(f"s_lshr_b32 s{S_NT}, s2, 5")
    e(f"s_mul_i32 s3, s66, {opt('rym','5')}")
    e(f"s_and_b32 s66, s{S_NT}, {opt('rg','0')}")
    e(f"s_mul_i32 s{S_R2}, s66, {8 // (int(opt('rg','0')) + 1)}"); e(f"s_mul_i32 s{S_RY}, s66, {44 // (int(opt('rg','0')) + 1)}"); e(f"s_add_u32 s{S_RY}, s{S_RY}, s3")
    if "emarks" in X: st.mark(12)
    e(f"s_cmp_lt_u32 s{S_WAVE}, 4"); e("s_cbranch_scc1 K1_CONS")
    e("s_setprio 3")
    def tr_lane(dst):
        e("v_lshrrev_b32 v3, 5, v1"); e("v_bfe_u32 v4, v1, 2, 2"); e("v_lshl_add_u32 v3, v3, 2, v4"); e("v_lshlrev_b32 v3, 7, v3")
        e("v_bfe_u32 v4, v1, 3, 1"); e("v_lshl_add_u32 v3, v4, 6, v3")
        e("v_bfe_u32 v4, v1, 4, 1"); e("v_lshl_add_u32 v3, v4, 5, v3")
        e("v_and_b32 v4, 3, v1"); e(f"v_lshl_add_u32 v{dst}, v4, 3, v3")
    def HOIST():
        e(f"s_lshl_b32 s3, s{S_NT}, 7")
        e("s_add_u32 s12, s30, s3"); e("s_addc_u32 s13, s31, 0"); e(f"s_sub_u32 s14, {512*1024}, s3"); e("s_mov_b32 s15, 0x00020000")
        e("s_add_u32 s16, s84, s3"); e("s_addc_u32 s17, s85, 0"); e(f"s_sub_u32 s18, {1376*1024}, s3"); e("s_mov_b32 s19, 0x00020000")
        e(f"s_lshl_b32 s64, s{S_Q}, 10")
        e(f"s_and_b32 s{S_R2}, s{S_NT}, {opt('hx','0')}")
        e(f"s_lshl1_add_u32 s65, s{S_Q}, s{S_R2}"); e("s_lshl_b32 s65, s65, 16")
        e(f"s_add_u32 s68, s{S_RY}, s{S_UH}"); e("s_lshl_b32 s68, s68, 14"); e(f"s_lshl_b32 s3, s{S_TG}, 13"); e("s_add_u32 s68, s68, s3")
        e("s_lshr_b32 s88, s2, 3"); e(f"s_lshl2_add_u32 s88, s88, s{S_Q}"); e("s_lshl_b32 s3, s2, 4"); e("s_add_u32 s88, s88, s3")
        e("s_and_b32 s88, s88, 127"); e("s_lshl_b32 s88, s88, 12")
        if B2:
            e("v_lshrrev_b32 v20, 2, v1"); e("v_lshlrev_b32 v20, 10, v20"); e("v_and_b32 v5, 3, v1"); e("v_lshl_add_u32 v20, v5, 7, v20")
            e("s_and_b32 s3, s2, 1"); e("s_lshl_b32 s3, s3, 9"); e("v_add_u32 v20, s3, v20")
        else: e("v_lshlrev_b32 v20, 7, v1")
        tr_lane(92)
        e("v_add_u32 v92, s64, v92"); e("v_xor_b32 v93, 64, v92")
    def capture(fn):
        n0 = len(L); fn(); r = L[n0:]; del L[n0:]; return r
    e(f"s_add_u32 s3, s{S_RW}, 1"); e("s_and_b32 s3, s3, 7"); e(f"s_mul_i32 s{S_KW}, s3, s{S_STR64}")
    e(f"s_mov_b32 s{S_DST}, 1"); e(f"s_add_u32 s{S_DMAW}, s{S_DMAW}, {WST}")
    e(f"s_lshl2_add_u32 s{S_XW}, s{S_GX}, s{S_Q}"); e(f"s_lshl_b32 s{S_XW}, s{S_XW}, 10")
    if B128:
        e(f"v_lshl_add_u32 v{V_XW}, v1, 4, s{S_XW}")
        for g in range(1, 4): e(f"v_xor_b32 v{V_XW+g}, {4096*g}, v{V_XW}")
    e(f"s_sub_u32 s{S_XI}, s{S_RW}, s{S_RX}"); e(f"s_and_b32 s{S_XI}, s{S_XI}, 7"); e(f"s_lshl_b32 s{S_XI}, s{S_XI}, 4")
    e("v_lshrrev_b32 v5, 3, v1"); e("v_bfe_u32 v6, v1, 4, 1"); e("v_lshlrev_b32 v6, 2, v6"); e("v_xor_b32 v6, v6, v4")
    e("v_lshlrev_b32 v5, 10, v5"); e(f"v_lshl_add_u32 v{V_DV}, v6, 4, v5")
    for r in range(4): e(f"v_mov_b64 {vr(V_ST+2*r,2)}, 0")
    e(f"s_mov_b32 s32, {fbits(1/512)}"); e(f"s_mov_b32 s33, {fbits(1e-5)}")
    HOIST()
    WB = int(opt('wb', '24')); WB2 = int(opt('wb2', '32'))
    G4 = range(4)
    def fin(g):
        m, q = V_ST + 2 * g, V_ST + 2 * g + 1
        c = []
        for dpp in ("quad_perm:[1,0,3,2]", "quad_perm:[2,3,0,1]", "row_half_mirror"):
            c.append([f"v_add_f32_dpp v{r}, v{r}, v{r} {dpp} row_mask:0xf bank_mask:0xf" for r in (m, q)])
        c += [[f"v_mul_f32 v{m}, s32, v{m}", f"v_mul_f32 v{q}, s32, v{q}", f"v_fma_f32 v{q}, -v{m}, v{m}, v{q}", f"v_max_f32 v{q}, 0, v{q}",
               f"v_cvt_pk_bf16_f32 v{q}, v{m}, v{q}", f"v_lshlrev_b32 v{m}, 16, v{q}", f"v_and_b32 v{q}, s{S_MASK}, v{q}",
               f"v_add_f32 v{q}, s33, v{q}", f"v_cvt_pk_bf16_f32 v{q}, v{q}, v{q}", f"v_and_b32 v{q}, s{S_MASK}, v{q}", f"v_sqrt_f32 v{q}, v{q}"],
              [f"v_cvt_pk_bf16_f32 v{q}, v{q}, v{q}", f"v_and_b32 v{q}, s{S_MASK}, v{q}", f"v_rcp_f32 v{V_NA+2*g}, v{q}"],
              [f"v_mul_f32_e64 v{V_NA+2*g+1}, -v{m}, v{V_NA+2*g}"]]
        return c
    def mvw(gs):
        r = [f"s_set_gpr_idx_on s{S_XI}, gpr_idx(SRC0)", "s_nop 0"]
        for g in gs: r += [f"v_mov_b32 v{V_PK+4*g+h}, v{V_XR+4*g+h}" for h in range(4)]
        return r + ["s_set_gpr_idx_off"]
    def pre_u(g, c):
        r = []
        for j in range(4):
            x = V_XR + 16 * c + 4 * g + j
            r += [f"v_lshlrev_b32 v{V_UT+2*j}, 16, v{x}", f"v_and_b32 v{V_UT+2*j+1}, s{S_MASK}, v{x}"]
        return r
    def pre_n(g, c):
        a_ = V_NA + 2 * g
        return [f"v_pk_fma_f32 {vr(V_UT+2*j,2)}, {vr(V_UT+2*j,2)}, {vr(a_,2)}, {vr(a_,2)} op_sel:[0,0,1] op_sel_hi:[1,0,1]" for j in range(4)] + \
               [f"v_cvt_pk_bf16_f32 v{V_XR+16*c+4*g+j}, v{V_UT+2*j}, v{V_UT+2*j+1}" for j in range(4)]
    def chain(g):
        r = []
        for k, pc in enumerate(fin(g)):
            if k: r.append("s_nop 0")
            r += pc
        return r
    if "emarks" in X: st.mark(13)
    NPRE = int(opt('npre', '0'))
    pend = []
    nis = X0
    for i in range(32):
        if pend:
            for x in pend.pop(0): e(x)
        e(f"s_waitcnt vmcnt({nis - 1 - i})")
        for _ in range(2):
            if nis < 32 and nis - i <= XD:
                xload(nis); nis += 1
                if nis == WB: e("s_barrier")
                if nis == WB2: e("s_barrier")
        if "pmarks" in X and i in (0, 8, 16, 31): st.mark({0: 1, 8: 2, 16: 3, 31: 4}[i])
        g, c = divmod(i, 8)
        for j in range(4):
            r = V_XR + 16 * c + 4 * g + j
            e(f"v_dot2c_f32_bf16 v{V_ST+2*g}, s{S_ONES}, v{r}")
            e(f"v_dot2c_f32_bf16 v{V_ST+2*g+1}, v{r}, v{r}")
        if c == 7 and g < NPRE:
            assert not pend
            pend = [pre_u(g, cc) + (chain(g) if cc == 0 else []) + pre_n(g, cc) for cc in range(8)]
            pend[7] = pend[7] + mvw([g]) + k1_xw(g)
            if g == 0 and opt('front', '1') == '1': pend = [sum(pend, [])]
        elif c == 7 and g < 3:
            pend = [k1_unpack(g)] + fin(g); pend[-1] = pend[-1] + k1_norm(g) + k1_xw(g)
    for x in k1_unpack(3) + chain(3) + k1_norm(3) + k1_xw(3): e(x)
    for x in k1_xadv(): e(x)
    e("s_setprio 0")
    e("s_waitcnt lgkmcnt(0)")
    if "pmarks" in X: st.mark(5)
    e("s_barrier")
    if "pmarks" in X: st.mark(6)
    D = k1_dma()
    if LW1: e("s_bfe_u32 s3, s2, 0x20003"); e(f"s_cmp_eq_u32 s3, s{S_Q}"); e("s_cbranch_scc1 K1_pw1")
    if not SPL:
        for g in D[KS:]:
            for x in g[:3]: e(x)
        lab("K1_pw1")
        for x in D[8][3:]: e(x)
    if "lmarks" in X:
        e("s_memtime s[98:99]"); e("s_waitcnt lgkmcnt(0)"); e("s_mov_b32 s97, s98"); e("s_mov_b32 s94, 0"); e("s_mov_b32 s95, 0"); e("s_mov_b32 s96, 0")
    PFN = int(opt('pfn', '0')); PF0 = int(opt('pf0', '1')); PFA = opt('pfa', '0') == '1'
    if PFN:
        NSLOT = 128 if PFA else 80
        NL = -(-15104 // (NSLOT * PFN))
        while 11008 % NL: NL += 1
        NI = 11008 // NL; NTOT = NSLOT * PFN
        assert NL <= 64 and (NTOT - NI) * NL >= 4096, (NL, NI, NTOT)
        if PFA: e("s_lshr_b32 s88, s2, 3")
        else:
            e("s_lshr_b32 s3, s2, 5"); e("s_cmp_gt_u32 s3, 4"); e("s_subb_u32 s3, s3, 2")
            e("s_bfe_u32 s88, s2, 0x20003"); e("s_lshl2_add_u32 s88, s3, s88")
        e(f"s_lshl2_add_u32 s88, s88, s{S_Q}")
        e("s_and_b32 s3, s2, 7"); e(f"s_mul_i32 s3, s3, {NTOT // 8}"); e("s_add_u32 s88, s88, s3")
        e(f"s_cmp_eq_u32 s{S_TYPE}, {9 if PFA else 1}"); e(f"s_cselect_b32 s89, 99, {PF0}")
        e("v_lshlrev_b32 v20, 7, v1"); e("s_mov_b32 s15, 0x00020000")
    lab("K1_PROD_loop")
    if PFN:
        e(f"s_sub_u32 s3, s{S_CNT}, s89"); e(f"s_cmp_lt_u32 s3, {PFN}"); e("s_cbranch_scc0 K1_nopf")
        e(f"s_sub_u32 s3, s88, {NTOT}"); e("s_cselect_b32 s88, s88, s3")
        e(f"s_sub_u32 s3, s88, {NI}"); e("s_cselect_b32 s3, s88, s3")
        e("s_cselect_b64 s[12:13], s[84:85], s[30:31]"); e(f"s_mov_b32 s66, {512*1024}"); e(f"s_cselect_b32 s66, {1376*1024}, s66")
        e(f"s_mul_i32 s3, s3, {NL*128}"); e(f"s_add_u32 s14, s3, {NL*128}"); e("s_min_u32 s14, s14, s66"); e(f"s_add_u32 s88, s88, {NSLOT}")
        e("buffer_load_dword v2, v20, s[12:15], s3 offen")
        lab("K1_nopf")
    def weave(mem):
        N = [k1_norm(g) for g in range(4)]
        mem = list(mem)
        def dma(v):
            if not mem:
                for x in v: e(x)
                return
            pre, op = mem.pop(0)
            for x in pre: e(x)
            TH = int(opt('th', '99'))
            if TH < 99:
                e(f"s_waitcnt vmcnt({TH})"); v = [None] + list(v)
            elif v: e(v[0])
            elif len(pre) < 2 or "m0" in pre[-1]: e("s_nop 0")
            e(op)
            for x in v[1:]: e(x)
        if opt('wv', '0') == '0':
            for g in range(4):
                dma([])
                if g < NPRE:
                    for x in mvw([g]): e(x)
                    dma([])
                else:
                    for x in k1_unpack(g): e(x)
                    dma(N[g])
                for x in k1_xw(g): e(x)
            dma(k1_xadv())
        elif opt('wv', '0') == '3':
            seq = []
            for g in range(4):
                if g < NPRE: seq += [("a", mvw([g]))]
                else: seq += [("a", k1_unpack(g))] + [("v", [x]) for x in N[g]]
                seq += [("w", k1_xw(g))]
            tot = sum(len(x[1]) for x in seq); nd = len(mem); done = 0; k = 0; held = []
            dma([]); k = 1
            for i, (t, ins) in enumerate(seq):
                if t == "w": held.append(ins); done += len(ins); continue
                if mem and done >= tot * k / nd and t == "v":
                    for h in held:
                        for x in h: e(x)
                    held = []
                    dma(ins); k += 1
                else:
                    if mem and done >= tot * k / nd:
                        for h in held:
                            for x in h: e(x)
                        held = []
                        dma([]); k += 1
                    for x in ins: e(x)
                done += len(ins)
            for x in k1_xadv(): e(x)
            for h in held:
                for x in h: e(x)
            while mem: dma([])
        elif opt('wv', '0') == '2':
            for g in range(4):
                dma([]);
                if g == 0: dma([])
                u = k1_unpack(g)
                for x in u: e(x)
                dma(N[g][:11]) if False else None
                for x in N[g][:11]: e(x)
                e(k1_xw(g)[0]); e(N[g][11]); [e(x) for x in k1_xw(g)[2:]]
                dma([])
            for x in k1_xadv(): e(x)
        else:
            def unp(gs):
                r = [f"s_set_gpr_idx_on s{S_XI}, gpr_idx(SRC1)", "s_nop 0"]
                for g in gs:
                    for j in range(4 * g, 4 * g + 4):
                        if g < NPRE: r.append(f"v_or_b32 v{V_PK+j}, 0, v{V_XR+j}")
                        else: r += [f"v_lshlrev_b32 v{V_UT+2*j}, 16, v{V_XR+j}", f"v_and_b32 v{V_UT+2*j+1}, s{S_MASK}, v{V_XR+j}"]
                return r + ["s_set_gpr_idx_off"]
            def xw(g, v):
                w = k1_xw(g)
                e(w[0]); e(v[0] if v else "s_nop 0")
                for x in w[2:]: e(x)
                for x in v[1:]: e(x)
            xa = k1_xadv()
            dma([])
            for half in range(2):
                for x in unp([2 * half, 2 * half + 1]): e(x)
                for g in (2 * half, 2 * half + 1):
                    n = N[g] if g >= NPRE else []
                    dma(n[:6]); dma(n[6:11])
                    if n: e(k1_xw(g)[0]); e(n[11]); [e(x) for x in k1_xw(g)[2:]]
                    else: xw(g, [])
            for x in xa: e(x)
        assert not mem
    DM = [([x for x in g[:2] if x != "s_nop 0"], g[2]) for g in D]
    if SPL: weave(DM[KS:] + [(D[8][3:] + DM[0][0], DM[0][1])] + DM[1:KS])
    else:
        weave(DM)
        for x in D[8][3:]: e(x)
    e(f"s_add_u32 s{S_CNT}, s{S_CNT}, 1")
    def acc(k):
        if "lmarks" in X:
            e("s_memtime s[98:99]"); e("s_waitcnt lgkmcnt(0)"); e("s_sub_u32 s3, s98, s97"); e("s_mov_b32 s97, s98"); e(f"s_add_u32 s{k}, s{k}, s3")
    acc(94)
    e(f"s_waitcnt vmcnt({KS if SPL else 9}) lgkmcnt(0)")
    acc(95)
    e("s_barrier")
    acc(96)
    e(f"s_cmp_lt_u32 s{S_CNT}, 6")
    e("s_cbranch_scc1 K1_PROD_loop")
    if "lmarks" in X:
        for k in range(3): e(f"v_writelane_b32 v255, s{94+k}, {24+k}")
    if SPL:
        for g in D[KS:]:
            for x in g[:3]: e(x)
    V_KF, V_PO, V_O, V_PQ, V_WO, V_AS = 28, 36, 44, 76, 124, 188
    def wo_batch():
        for p in range(16):
            e(f"s_add_u32 m0, s64, {(0 if p < 8 else 36*2048) + 4096*(p%8)}")
            e(f"s_xor_b32 s66, s65, {8192*p}")
            e(f"buffer_load_dwordx4 v{V_DV}, s[12:15], s66 offen lds")
    def rounds(sig, pi, n):
        for i in range(n):
            e(f"s_add_u32 s66, s68, {(pi + 2*i) * 16384}")
            if sig + 2*i == 24:
                e(f"s_mul_i32 s69, s{S_UH}, {34*16384}"); e("s_add_u32 s66, s66, s69")
            e(f"s_sub_u32 s69, s66, {86*16384}")
            e(f"s_cselect_b32 s66, s66, s69")
            e(f"s_add_u32 m0, s64, {(sig + 2*i) * 2048}")
            e("s_nop 0")
            e(f"buffer_load_dwordx4 v{V_DV}, s[16:19], s66 offen lds")
    def early(sig, n, pd=None):
        for i in range(n):
            sg = sig + 2 * i
            pi = sg + 23 if sg < 16 else sg - 8 if sg < 25 else sg + 26 if sg < 34 else sg - 17 if sg < 36 else sg + 30 if sg < 52 else sg + 8 if sg < 54 else sg - 53 if sg < 76 else sg - 14
            if pd is not None: e(f"s_waitcnt vmcnt({pd})")
            rounds(sg, pi, 1)
    def lsig(off):
        e("s_mov_b64 exec, 1"); e(f"ds_add_u32 v27, v7 offset:{off}"); e("s_mov_b64 exec, -1")
    def lwait(off, n, tag, slp=0):
        lab(f"K_lw{tag}")
        if slp: e(f"s_sleep {slp}")
        e(f"ds_read_b32 v6, v27 offset:{off}"); e("s_waitcnt lgkmcnt(0)")
        e("v_readfirstlane_b32 s66, v6"); e(f"s_cmp_lt_u32 s66, {n}"); e(f"s_cbranch_scc1 K_lw{tag}")
    def wo_read(h0):
        for i in range(4):
            for nf in range(2):
                for rd in range(2):
                    e(f"ds_read_b64_tr_b16 {vr(V_WO+8*(h0+i)+4*nf+2*rd,2)}, v{92+nf} offset:{i*8192 + rd*4096}")
        e("s_waitcnt lgkmcnt(0)")
    e(f"buffer_load_dword v2, off, s[24:27], 0 {SC}")
    e("s_mov_b64 s[8:9], s[30:31]"); e("s_add_u32 s10, s88, 4096")
    if PFN: e("s_mov_b32 s10, 0")
    e("buffer_load_dword v20, v20, s[8:11], s88 offen")
    R5 = [(54 + 2*i, 2*i) for i in range(4)] + [(62 + 2*i, 43 + 2*i) for i in range(4)]
    RR = [capture(lambda: rounds(sg, pi, 1)) for sg, pi in R5]
    weave([([x.strip() for x in r[:4]], r[5].strip()) for r in RR])
    S3 = opt('s3', '7')
    if S3 == '5': early(72, 4)
    e(f"s_waitcnt vmcnt({13 if S3 == '5' else 9}) lgkmcnt(0)")
    e("s_setprio 0")
    e("s_barrier")
    e("s_mov_b32 s90, 0")
    lab("K1_zpoll")
    e("v_readfirstlane_b32 s66, v2")
    e("s_cmp_ge_u32 s66, 16"); e("s_cbranch_scc1 K1_zdone")
    e("s_sleep 4")
    e(f"buffer_load_dword v2, off, s[24:27], 0 {SC}")
    e("s_add_u32 s90, s90, 1"); e("s_cmp_lt_u32 s90, 0x100000")
    e("s_waitcnt vmcnt(0)")
    e("s_cbranch_scc1 K1_zpoll")
    lab("K1_zdone")
    early(16, 9)
    if S3 == '6': early(72, 4)
    e("s_barrier")
    if "tmarks" in X: st.mark(1)
    e(f"v_mov_b32 v27, {LCNT}"); e("v_mov_b32 v7, 1")
    NE = int(opt('ne', '0'))
    wo_batch()
    early(34, 1); early(52, 1)
    if S3 == '7': early(72, 4)
    X7 = 4 if S3 == '7' else 0
    e(f"s_waitcnt vmcnt({10 + X7})")
    if "tmarks" in X: st.mark(2)
    lsig(4)
    wo_read(0)
    e(f"v_add_u32 v92, {36*2048}, v92"); e(f"v_add_u32 v93, {36*2048}, v93")
    early(0, NE)
    e(f"s_waitcnt vmcnt({2 + NE + X7})")
    wo_read(4)
    e(f"v_lshlrev_b32 v10, 4, v1")
    e(f"s_mul_i32 s3, s{S_MT}, {2*NKS}"); e(f"s_lshl_b32 s65, s{S_Q}, 3"); e("s_add_u32 s3, s3, s65"); e("s_add_u32 s3, s3, 86"); e("s_lshl_b32 s70, s3, 10")
    e(f"s_lshl_b32 s65, s{S_R2}, 12"); e("s_xor_b32 s3, s65, 4096")
    e("s_add_u32 s67, s70, s3"); e("s_add_u32 s70, s70, s65"); e(f"s_add_u32 s72, s70, {NKS*1024}"); e(f"s_add_u32 s73, s67, {NKS*1024}")
    e(f"s_lshl_b32 s4, s{S_Q}, 13"); e(f"s_add_u32 s4, s4, {KV_OFF}"); e("s_add_u32 s5, s4, s3"); e("s_add_u32 s4, s4, s65")
    e(f"s_lshl_b32 s6, s{S_Q}, 9"); e(f"s_add_u32 s6, s6, {KV_OFF + 32768}")
    e("v_lshrrev_b32 v3, 4, v1"); e("v_xor_b32 v3, 1, v3"); e("v_lshlrev_b32 v3, 4, v3")
    e("v_and_b32 v4, 15, v1"); e("v_lshl_add_u32 v11, v4, 6, v3")
    e("v_and_b32 v4, 3, v1"); e("v_lshl_add_u32 v14, v4, 6, v3"); e("v_bfe_u32 v4, v1, 3, 1"); e(f"v_xor_b32 v4, s{S_R2}, v4"); e("v_lshl_add_u32 v14, v4, 8, v14")
    e(f"s_lshr_b32 s71, s{S_MT}, 1"); e(f"s_lshl_b32 s71, s71, {FS+4}"); e(f"s_add_u32 s71, s71, {FLG_OFF}")
    e(f"s_mov_b32 s89, {fbits(1e-6)}")
    e("s_mov_b32 s90, 0")
    e("v_lshrrev_b32 v3, 2, v1"); e("v_and_b32 v5, 3, v1"); e("v_lshl_add_u32 v3, v3, 4, v5"); e(f"v_lshlrev_b32 v3, {FS}, v3")
    e("v_or_b32 v4, 14, v1"); e("v_and_b32 v4, 15, v4"); e(f"v_lshlrev_b32 v4, {FS}, v4"); e(f"s_mov_b32 s88, {FLG_OFF + (10 << FS)}")
    e("v_lshrrev_b32 v5, 3, v1"); e("v_and_b32 v6, 7, v1"); e("v_xor_b32 v6, v6, v5"); e("v_lshlrev_b32 v5, 10, v5"); e("v_lshl_add_u32 v15, v6, 4, v5")
    srd(12, 92, 93, 2097152)
    e(f"s_lshl2_add_u32 s77, s{S_MT}, s{S_Q}"); e("s_lshl_b32 s77, s77, 14"); e(f"s_lshl_b32 s3, s{S_NT}, 7"); e("s_add_u32 s77, s77, s3")
    e("s_waitcnt vmcnt(0)")
    if "tmarks" in X: st.mark(3)
    e("s_barrier")
    if "tmarks" in X: st.mark(4)
    if opt('vp', '1') != '0': e(f"s_setprio {opt('vp', '1')}")
    LD = False
    RL = []
    for i in range(8):
        if i >= NE: RL.append(capture(lambda: early(2 * i, 1)))
        RL.append(capture(lambda: early(36 + 2 * i, 1)))
    NRES = len(RL)
    for i in range(2):
        RL.append(capture(lambda: rounds(54 + 2 * i, 39 + 2 * i, 1))); RL.append(capture(lambda: rounds(62 + 2 * i, 82 + 2 * i, 1)))
    V_KR = V_PQ + 32; V_Z = 16
    def pq(i):
        e(f"buffer_load_dwordx4 {vr(V_KR+4*(i%4),4)}, v11, s[20:23], s{4 if i < 4 else 5} offen offset:{1024*(i%4)} {SC}")
        e(f"buffer_load_dwordx4 {vr(V_PQ+8*(i%4),4)}, v10, s[20:23], s{70 if i < 4 else 67} offen offset:{1024*(i%4)} {SC}")
        e(f"buffer_load_dwordx4 {vr(V_PQ+8*(i%4)+4,4)}, v10, s[20:23], s{72 if i < 4 else 73} offen offset:{1024*(i%4)} {SC}")
    def kf(i):
        f = V_KF + 4 * (i % 2); r = V_KR + 4 * (i % 4)
        return [f"v_cvt_pk_bf16_f32 v{f}, v{r}, v{r+1}", f"v_cvt_pk_bf16_f32 v{f+1}, v{r+2}, v{r+3}",
                f"v_mov_b32 v{f+2}, v{V_Z}", f"v_mov_b32 v{f+3}, v{V_Z+1}", "s_nop 0",
                f"v_permlane16_swap_b32 v{f+2}, v{f}", f"v_permlane16_swap_b32 v{f+3}, v{f+1}"]
    def omf(k): return mfma(V_O + 16 * (k % 2), V_KF + 4 * ((k // 2) % 2), V_PQ + 8 * ((k // 2) % 4) + 4 * (k % 2), "0")
    def smf(k, nf): return mfma(V_AS + 32 * (k % 2) + 16 * nf, V_WO + 8 * (k // 2) + 4 * nf, V_PO + 4 * (k % 2), "0" if k < 2 else None)
    def valu(k):
        o = V_O + 16 * (k % 2); d = o + k // 2
        return [f"v_add_f32 v{d}, s89, v{d}", f"v_rcp_f32 v{d}, v{d}", "s_nop 0"] + \
               [f"v_mul_f32 v{o+8+j}, v{d}, v{o+8+j}" for j in range(8)] + \
               [f"v_cvt_pk_bf16_f32 v{V_PO+4*(k%2)+j}, v{o+8+2*j}, v{o+9+2*j}" for j in range(4)]
    def sphase(rl, nres):
        rl = list(rl); ops = []
        def ld(i): pq(i); ops.extend([("k", i), ("p", i, 0), ("p", i, 1)])
        def dm(n):
            for _ in range(n):
                if rl: L.extend(rl.pop(0)); ops.append(("d", len([o for o in ops if o[0] == "d"])))
        sig = [nres == 0]
        def wait(tag):
            i = ops.index(tag); e(f"s_waitcnt vmcnt({len(ops) - 1 - i})")
            if not sig[0] and ("d", nres - 1) in ops[:i]: lsig(12); sig[0] = True
        st.mark(7)
        e(f"s_setprio {opt('sp','1')}")
        PH[0] = "s"
        e(f"buffer_load_dwordx4 {vr(V_Z,4)}, v14, s[20:23], s6 offen {SC}")
        SD = int(opt('sd', '3')); DPS = int(opt('dps', '2'))
        for i in range(SD): ld(i)
        nh = SD
        wait(("k", 0))
        if opt('nz', '0') == '1': lsig(8)
        e(f"v_cvt_pk_bf16_f32 v{V_Z}, v{V_Z}, v{V_Z+1}"); e(f"v_cvt_pk_bf16_f32 v{V_Z+1}, v{V_Z+2}, v{V_Z+3}")
        for x in kf(0): e(x)
        wait(("p", 0, 1)); e("s_nop 0")
        e(omf(0)); e(omf(1))
        ld(nh); nh += 1
        wait(("k", 1))
        for x in kf(1): e(x)
        for x in valu(0): e(x)
        for k in range(16):
            v = valu(k + 1) if k < 15 else []
            h = k // 2 + 1
            if k + 2 < 16:
                if k % 2 == 0: wait(("p", h, 1))
                e(omf(k + 2))
                if k % 2 == 1 and nh < 8: ld(nh); nh += 1
                elif k % 2 == 0: dm(2 * DPS)
            else: e("s_nop 0")
            for x in v[:4] if v else ["s_nop 0"]: e(x)
            e(smf(k, 0))
            for x in v[4:10]: e(x)
            e(smf(k, 1))
            if k % 2 == 1 and h + 1 < 8:
                wait(("k", h + 1))
                for x in kf(h + 1): e(x)
            for x in v[10:]: e(x)
        assert not rl
        if not sig[0] or ops[-1][0] == "d":
            e("s_waitcnt vmcnt(0)")
            if not sig[0]: lsig(12)
        PH[0] = ""
    PL = opt('pl', '0') == '1'; N0 = int(opt('n0', '4')) if PL else 0
    if PL:
        e(f"s_cmp_eq_u32 s{S_WAVE}, 4"); e("s_cbranch_scc0 K2_p0")
        e("s_mov_b64 exec, 0xc400"); e(f"buffer_load_dword v2, v4, s[20:23], s71 offen {SC}"); e("s_mov_b64 exec, -1")
        lab("K2_p0")
        for r in RL[:N0]: L.extend(r)
        e(f"s_cmp_eq_u32 s{S_WAVE}, 4"); e("s_cbranch_scc0 K2_p1")
        e("s_mov_b64 exec, 0xc400"); e(f"s_waitcnt vmcnt({N0})"); e("v_cmp_ne_u32 vcc, 0, v2")
        e("s_cmp_eq_u32 vcc_lo, 0xc400"); e("s_cselect_b32 s3, 1, 2"); e("s_mov_b64 exec, 1"); e("v_mov_b32 v5, s3"); e("ds_write_b32 v27, v5 offset:24"); e("s_mov_b64 exec, -1")
        lab("K2_p1")
        lwait(24, 1, "p")
        e("s_cmp_eq_u32 s66, 1"); e("s_cbranch_scc0 K2_pe")
        sphase(RL[N0:], NRES - N0)
        e("s_branch K2_sdone")
        lab("K2_pe")
    XD2 = opt('xd2', '0') == '1'
    for r in RL[N0:]: L.extend(r)
    e(f"s_cmp_eq_u32 s{S_WAVE}, 4"); e("s_cbranch_scc1 K2_p4")
    e("s_waitcnt vmcnt(4)")
    lsig(12)
    e("s_branch K2_swait")
    lab("K2_p4")
    KD = opt('kd', '1') == '1'
    if KD:
        e(f"buffer_load_dword v2, v4, s[20:23], s71 offen {SC}")
        e(f"buffer_load_dword v5, v3, s[20:23], s88 offen {SC}")
        e("s_waitcnt vmcnt(6)")
        lsig(12)
        lab("K2_spoll")
        e("s_add_u32 s90, s90, 1")
        e("s_waitcnt vmcnt(0)")
        e("v_and_b32 v2, v2, v5"); e("v_cmp_ne_u32 vcc, 0, v2")
        e("s_cmp_eq_u64 vcc, -1"); e("s_cbranch_scc1 K2_sset")
        e(f"s_sleep {opt('slp','3')}")
        e(f"buffer_load_dword v2, v4, s[20:23], s71 offen {SC}")
        e(f"buffer_load_dword v5, v3, s[20:23], s88 offen {SC}")
        e("s_cmp_lt_u32 s90, 0x100000"); e("s_cbranch_scc1 K2_spoll")
    else:
        e("s_mov_b64 exec, 0xc400")
        e(f"buffer_load_dword v2, v4, s[20:23], s71 offen {SC}")
        lab("K2_spoll")
        e("s_add_u32 s90, s90, 1")
        e("s_waitcnt vmcnt(0)")
        e("v_cmp_ne_u32 vcc, 0, v2")
        e("s_cmp_eq_u32 vcc_lo, 0xc400"); e("s_cbranch_scc1 K2_sset")
        e(f"s_sleep {opt('slp','3')}")
        e(f"buffer_load_dword v2, v4, s[20:23], s71 offen {SC}")
        e("s_cmp_lt_u32 s90, 0x100000"); e("s_cbranch_scc1 K2_spoll")
    lab("K2_sset")
    lsig(20)
    lab("K2_swait")
    lwait(20, 1, "s", 1)
    sphase([], 0)
    lab("K2_sdone")
    PH[0] = "s"
    F8 = opt('f8', '1') == '1'
    FXU, FAD, FOUT, FXR, FWA = 168, 176, 182, 184, 188
    def f8_vo():
        e("v_lshrrev_b32 v5, 3, v0"); e("v_and_b32 v6, 7, v0"); e(f"v_lshlrev_b32 v{FOUT}, 10, v5"); e(f"v_lshl_add_u32 v{FOUT}, v6, 4, v{FOUT}")
        e(f"s_lshl_b32 s77, s{S_MT}, 16"); e(f"s_lshl_b32 s3, s{S_NT}, 7"); e("s_add_u32 s77, s77, s3")
        srd(16, 92, 93, 2097152)
    def f8_ld():
        e(f"buffer_load_dwordx4 {vr(FXR,4)}, v{FOUT}, s[16:19], s77 offen")
        srd(16, 86, 87, 2097152)
    def f8_addr(wa, n, base):
        e("v_lshrrev_b32 v5, 3, v0"); e("v_and_b32 v6, 7, v0"); e("v_lshlrev_b32 v6, 1, v6"); e("v_and_b32 v8, 15, v5"); e("v_xor_b32 v6, v6, v8")
        e("v_lshlrev_b32 v5, 8, v5"); e(f"v_lshl_add_u32 v{FAD}, v6, 4, v5"); e(f"v_xor_b32 v{FAD+1}, 16, v{FAD}")
        for k, b in ((1, 36 * 2048), (2, 72 * 2048)):
            e(f"v_add_u32 v{FAD+2*k}, {b}, v{FAD}"); e(f"v_add_u32 v{FAD+2*k+1}, {b}, v{FAD+1}")
        e("v_and_b32 v5, 31, v1"); e("v_lshrrev_b32 v6, 5, v1"); e(f"v_lshl_add_u32 v6, s{S_UH}, 3, v6"); e("v_and_b32 v8, 15, v1"); e("v_xor_b32 v6, v6, v8")
        e(f"v_lshl_add_u32 v5, v5, 8, s{base}"); e(f"v_lshl_add_u32 v{wa}, v6, 4, v5")
        for i in range(1, n): e(f"v_xor_b32 v{wa+i}, {32*i}, v{wa}")
        e(f"s_mov_b32 s68, {fbits(-LOG2E)}")
    f8_unp = [x for j in range(4) for x in (f"v_lshlrev_b32 v{FXU+2*j}, 16, v{FXR+j}", f"v_and_b32 v{FXU+1+2*j}, s{S_MASK}, v{FXR+j}")]
    NZ = opt('nz', '0') == '1'
    if F8: f8_vo(); f8_ld()
    e(f"s_lshl_b32 s3, s{S_Q}, 13"); e("s_add_u32 s3, s3, 32768"); e("v_add_u32 v3, s3, v10"); e("s_nop 1")
    if LD:
        late()
    st.mark(8)
    PB16 = opt('pb', '1') == '1'
    if PB16:
        e("s_nop 2")
        for r in range(32): e(f"v_cvt_pk_bf16_f32 v{V_PQ+r}, v{V_AS+2*r}, v{V_AS+2*r+1}")
    if NZ: lwait(24, 4, "z", 1)
    else: e("s_barrier")
    XRA = 72 * 2048
    if XD2:
        e(f"s_lshl_b32 s3, s{S_Q}, 11"); e(f"s_add_u32 m0, s3, {XRA}"); e("s_add_u32 s66, s77, 8192")
        e("buffer_load_dwordx4 v15, s[12:15], s77 offen lds")
        e("s_add_u32 m0, m0, 1024"); e("s_nop 0")
        e("buffer_load_dwordx4 v15, s[12:15], s66 offen lds")
    if PB16:
        for r in range(8): e(f"ds_write_b128 v3, {vr(V_PQ+4*r,4)} offset:{1024*r}")
    else:
        e("s_nop 4")
        for r in range(16): e(f"ds_write_b128 v3, {vr(V_AS+4*r,4)} offset:{1024*r}")
    SR = opt('sr', '1') == '1'
    if SR:
        e(f"s_lshl_b32 s3, s{S_TG}, 12"); e(f"s_lshl_b32 s65, s{S_UH}, 11"); e("s_add_u32 s3, s3, s65"); e("v_add_u32 v4, s3, v10")
        if F8:
            e(f"s_lshl_b32 s65, s{S_TG}, 13"); e(f"s_add_u32 s65, s65, {72*2048}"); f8_addr(160, 4, 65)
        else: e(f"s_lshl_b32 s3, s{S_Q}, 12"); e(f"s_add_u32 s3, s3, {72*2048}"); e("v_add_u32 v5, s3, v10")
    e("s_waitcnt vmcnt(0) lgkmcnt(0)")
    if NZ: lsig(28); lwait(28, 4, "z2", 1)
    else: e("s_barrier")
    if SR:
        e("s_setprio 0")
        T0 = V_WO; SS = V_AS
        for k in range(4):
            for r in range(2): e(f"ds_read_b128 {vr(T0+8*k+4*r,4)}, v4 offset:{32768 + 8192*k + 1024*r}")
        for k in range(4):
            e(f"s_waitcnt lgkmcnt({6 - 2*k})")
            d = SS if k == 0 else SS + 16
            for c in range(8): e(f"v_lshlrev_b32 v{d+2*c}, 16, v{T0+8*k+c}"); e(f"v_and_b32 v{d+2*c+1}, s{S_MASK}, v{T0+8*k+c}")
            if k:
                for c in range(16): e(f"v_add_f32 v{SS+c}, v{SS+c}, v{SS+16+c}")
        if F8:
            for r in range(4): e(f"ds_write_b128 v{160+r}, {vr(SS+4*r,4)}")
            for x in f8_unp: e(x)
            e("s_branch K2_FIN8")
        for r in range(4): e(f"ds_write_b128 v5, {vr(SS+4*r,4)} offset:{1024*r}")
        e("s_waitcnt lgkmcnt(0)")
        e("s_barrier")
    if STAMP:
        st.mark(9); st.dump(S_WAVE, "K_END")
    e("s_endpgm")
    PH[0] = ""
    lab("K1_CONS")
    e("s_bfe_u32 s3, s2, 0x20003"); e("s_xor_b32 s3, s3, 1"); e(f"s_xor_b32 s3, s3, s{S_WAVE}"); e(f"s_or_b32 s3, s3, s{S_T}")
    e("s_cmp_eq_u32 s3, 0"); e("s_cbranch_scc0 K1_nozero")
    for j in range(4): e(f"v_mov_b32 v{4+j}, 0")
    e("v_lshlrev_b32 v3, 4, v1")
    e(f"s_mul_i32 s3, s{S_MB}, 3072"); e(f"s_add_u32 s3, s3, {KV_OFF}")
    assert 16 * 3072 >= KV_BYTES
    e(f"s_lshl_b32 s35, s{S_MB}, {FS+4}"); e(f"s_add_u32 s35, s35, {FLG_OFF}"); e(f"v_lshlrev_b32 v2, {FS}, v1")
    e("s_mov_b64 exec, 0xffff"); e(f"buffer_store_dword v4, v2, s[20:23], s35 offen {SC}"); e("s_mov_b64 exec, -1")
    for j in range(3): e(f"buffer_store_dwordx4 v[4:7], v3, s[20:23], s3 offen offset:{1024*j} {SC}")
    e("v_mov_b32 v2, 1")
    e("s_waitcnt vmcnt(0)")
    e("s_mov_b64 exec, 1")
    e(f"buffer_atomic_add v2, off, s[24:27], 0 sc1")
    e("s_mov_b64 exec, -1")
    lab("K1_nozero")
    e("v_and_b32 v3, 31, v1"); e("v_lshrrev_b32 v4, 5, v1")
    e("v_bfe_u32 v5, v3, 4, 1"); e("v_xor_b32 v5, v5, v4")
    e(f"s_lshl_b32 s3, s{S_TG}, 13"); e(f"s_cmp_eq_u32 s{S_TYPE}, 2"); e("s_cselect_b32 s3, 0, s3")
    if B128:
        e("v_bfe_u32 v5, v3, 1, 3"); e("v_xor_b32 v5, v5, v4"); e("v_lshl_add_u32 v6, v3, 7, s3"); e(f"v_lshl_add_u32 v{V_XA}, v5, 4, v6")
        for p in range(1, 4): e(f"v_xor_b32 v{V_XA+p}, {32*p}, v{V_XA}")
    else:
        e("v_lshrrev_b32 v6, 3, v3"); e("v_lshl_add_u32 v6, v6, 10, s3"); e("v_and_b32 v3, 7, v3"); e("v_lshl_add_u32 v6, v3, 5, v6")
        e(f"v_lshl_add_u32 v{V_XA}, v5, 4, v6")
    e(f"s_cmp_eq_u32 s{S_TYPE}, 2"); e(f"s_movk_i32 s3, {SEGB}"); e("s_cselect_b32 s3, 128, s3"); e("s_cselect_b32 s66, 5, 7"); e(f"s_cselect_b32 s67, s{S_Q}, s{S_UH}")
    e("v_bfe_u32 v3, v1, 4, 1"); e(f"v_mul_u32_u24 v3, s3, v3")
    e("v_bfe_u32 v5, v1, 2, 2"); e("v_lshl_add_u32 v5, v4, 3, v5"); e("v_mul_u32_u24 v5, 288, v5")
    e("v_and_b32 v6, 3, v1"); e("v_lshlrev_b32 v6, 3, v6")
    e(f"s_lshl_b32 s3, s67, s66"); e(f"s_add_u32 s3, s3, {WBASE}")
    e(f"v_add3_u32 v{V_WA}, v3, v5, v6"); e(f"v_add_u32 v{V_WA}, s3, v{V_WA}")
    DUM = opt('dum', '0') == '1'
    e("v_mov_b64 v[28:29], 0"); e("v_mov_b64 v[30:31], 0")
    e(f"s_mov_b32 s{S_RST}, 0")
    e(f"v_mov_b32 v27, {LCNT}"); e(f"ds_write_b128 v27, v[28:31]"); e(f"ds_write_b128 v27, v[28:31] offset:16")
    e(f"s_lshl_b32 s3, s{S_MB}, 2"); e(f"s_lshl1_add_u32 s3, s{S_TG}, s3")
    e(f"s_mul_i32 s64, s3, {NKS}"); e(f"s_add_u32 s64, s64, s{S_U0}")
    e(f"s_add_u32 s66, s3, s{S_UH}"); e(f"s_mul_i32 s66, s66, {NKS}"); e(f"s_add_u32 s66, s66, s{S_U0}"); e("s_add_u32 s66, s66, 8"); e("s_lshl_b32 s66, s66, 10")
    e(f"s_lshl2_add_u32 s64, s{S_UH}, s64"); e("s_lshl_b32 s64, s64, 10")
    e(f"s_add_u32 s65, s64, {NKS*1024}")
    if DUM:
        e(f"s_mov_b32 s{S_CNT}, 7"); e("s_mov_b32 s34, 1"); e("s_branch K1_sel")
        lab("K1_ret")
        e("s_mov_b32 s34, 0"); e(f"s_mov_b32 s{S_CNT}, 0"); e(f"s_mov_b32 s{S_RST}, 0")
        for p in range(4 if B128 else 1): e(f"v_xor_b32 v{V_XA+p}, {XST}, v{V_XA+p}")
        e(f"v_subrev_u32 v{V_WA}, s{S_TMP2}, v{V_WA}")
    else:
        e("s_barrier")
    st.mark()
    e("s_cmp_eq_u32 s78, 0"); e("s_cbranch_scc1 K1_w0")
    lab("K1_w0done")
    for r in range(9): e(mfma(V_ACC + 16 * r, 28, 28, "0"))
    e("s_barrier")
    if LW1: e("s_cmp_lg_u32 s78, 0"); e("s_cbranch_scc1 K1_w1done")
    for g in k1_dma()[:KS]:
        for x in g: e(x)
    lab("K1_w1done")
    e(f"s_waitcnt vmcnt({KS})")
    e("s_barrier")
    st.mark()
    e("s_setprio 1")
    lab("K1_sel")
    e(f"s_cmp_eq_u32 s{S_TYPE}, 2"); e("s_cbranch_scc1 K1_S8")
    e(f"s_cmp_eq_u32 s{S_TYPE}, 1"); e("s_cbranch_scc0 K1_N8")
    e(f"s_cmp_eq_u32 s{S_UH}, 1"); e("s_cbranch_scc1 K1_N9b")
    for var in ("N9a", "N9b", "N8", "S8"): k1_cons_loop(var)
    lab("K1_EPI")
    if DUM: e("s_cmp_eq_u32 s34, 1"); e("s_cbranch_scc1 K1_ret")
    st.mark()
    e("s_waitcnt lgkmcnt(0)")
    e("v_lshlrev_b32 v10, 4, v1")
    e(f"s_cmp_eq_u32 s{S_TYPE}, 2"); e("s_cbranch_scc1 K1_EPI_KV")
    e(f"s_cmp_eq_u32 s{S_TYPE}, 3"); e("s_cbranch_scc1 K1_EPI_Q")
    c0 = -2 * 0.7978845608028654 * LOG2E; c1 = c0 * 0.044715
    e(f"v_mov_b32 v12, {fbits(c1)}"); e(f"v_mov_b32 v13, {fbits(c0)}")
    def f_epi(items, tb):
        pr = []
        for k, (acc, soff, imm) in enumerate(items):
            pr += [(acc + 2 * j, acc + 8 + 2 * j, tb + 8 * k + 2 * j) for j in range(4)]
        n = 2 * len(pr); o = tb + 16
        if items[0][0] < V_ACC + 16 * int(opt('skip', '0')):
            for k, (acc, soff, imm) in enumerate(items):
                e(f"buffer_store_dwordx4 {vr(acc,4)}, v10, s[20:23], s{soff} offen offset:{imm} {HSC}")
            return
        for g, u, tt in pr: e(f"v_pk_mul_f32 {vr(tt,2)}, {vr(g,2)}, {vr(g,2)}")
        for g, u, tt in pr: e(f"v_pk_fma_f32 {vr(tt,2)}, {vr(tt,2)}, v[12:13], v[12:13] op_sel:[0,0,1] op_sel_hi:[1,0,1]")
        for g, u, tt in pr: e(f"v_pk_mul_f32 {vr(tt,2)}, {vr(tt,2)}, {vr(g,2)}")
        for j in range(n): e(f"v_exp_f32 v{tb+j}, v{tb+j}")
        for g, u, tt in pr: e(f"v_pk_mul_f32 {vr(g,2)}, {vr(g,2)}, {vr(u,2)}")
        for g, u, tt in pr: e(f"v_pk_add_f32 {vr(tt,2)}, {vr(tt,2)}, 1.0 op_sel_hi:[1,0]")
        for j in range(n): e(f"v_rcp_f32 v{tb+j}, v{tb+j}")
        for g, u, tt in pr: e(f"v_pk_mul_f32 {vr(g,2)}, {vr(g,2)}, {vr(tt,2)}")
        for j, (g, u, tt) in enumerate(pr): e(f"v_cvt_pk_bf16_f32 v{o+j}, v{g}, v{g+1}")
        for k, (acc, soff, imm) in enumerate(items):
            e(f"buffer_store_dwordx4 {vr(o+4*k,4)}, v10, s[20:23], s{soff} offen offset:{imm} {HSC}")
    for a in range(4):
        if a == 0 and opt('f1', '0') == '1':
            f_epi([(V_ACC, 64, 0)], 56); f_epi([(V_ACC + 16, 65, 0)], 32)
        else: f_epi([(V_ACC + 32 * a, 64, 1024 * a), (V_ACC + 32 * a + 16, 65, 1024 * a)], 32 + 24 * (a % 2))
    e(f"s_cmp_eq_u32 s{S_TYPE}, 1"); e("s_cbranch_scc0 K1_JOIN")
    f_epi([(V_ACC + 128, 66, 0)], 32)
    e("s_branch K1_JOIN")
    lab("K1_EPI_Q")
    e(f"s_mov_b32 s68, {fbits(LOG2E)}"); e(f"s_mov_b32 s69, {fbits(1e-6)}")
    e("s_add_u32 s66, s64, 8192"); e("s_add_u32 s67, s65, 8192")
    def phi(acc, t):
        for j in range(8): e(f"v_pk_mul_f32 {vr(t+2*j,2)}, {vr(acc+2*j,2)}, s[68:69] op_sel_hi:[1,0]")
        for j in range(16): e(f"v_exp_f32_e64 v{t+j}, v{t+j} clamp")
        for j in range(16): e(f"v_max_f32 v{acc+j}, s69, v{acc+j}")
        for j in range(8): e(f"v_pk_add_f32 {vr(acc+2*j,2)}, {vr(acc+2*j,2)}, {vr(t+2*j,2)}")
    QD = int(opt('qd', '0')); held = []
    for i in range(8):
        a, f = i >> 1, i & 1
        acc = V_ACC + 16 * i; o = acc
        if i >= int(opt('skip', '0')):
            phi(acc, 32)
            for j in range(8): e(f"v_cvt_pk_bf16_f32 v{o+j}, v{acc+2*j}, v{acc+2*j+1}")
        held += [f"buffer_store_dwordx4 {vr(o,4)}, v10, s[20:23], s{64+f} offen offset:{1024*a} {HSC}",
                 f"buffer_store_dwordx4 {vr(o+4,4)}, v10, s[20:23], s{66+f} offen offset:{1024*a} {HSC}"]
        if i < 8 - QD or i == 7:
            for x in held: e(x)
            held = []
    e("s_branch K1_JOIN")
    lab("K1_EPI_KV")
    e(f"s_mov_b32 s68, {fbits(LOG2E)}"); e(f"s_mov_b32 s69, {fbits(1e-6)}")
    for r in range(4): e(f"v_mov_b32 v{80+r}, s{S_ONES}")
    e("v_and_b32 v3, 3, v1"); e("v_bfe_u32 v4, v1, 2, 1"); e("v_lshl_add_u32 v3, v4, 3, v3"); e("v_bfe_u32 v4, v1, 3, 1"); e("v_lshl_add_u32 v3, v4, 2, v3")
    e("v_lshrrev_b32 v4, 5, v1"); e("v_lshl_add_u32 v3, v4, 6, v3"); e("v_bfe_u32 v4, v1, 4, 1"); e("v_lshlrev_b32 v3, 2, v3")
    e("v_lshl_add_u32 v5, v4, 8, v3"); e("v_lshl_add_u32 v3, v4, 12, v3")
    e(f"s_sub_u32 s3, s{S_T}, 10"); e(f"s_lshl3_add_u32 s3, s3, s{S_Q}"); e("s_lshl_b32 s64, s3, 10"); e(f"s_add_u32 s64, s64, {KV_OFF}")
    e("s_lshl_b32 s65, s3, 6"); e(f"s_add_u32 s65, s65, {KV_OFF + 32768}")
    e("s_mov_b32 s66, 0xffff0000"); e("s_mov_b32 s67, 0xffff0000")
    DK, DZ = 224, V_ACC + 64
    prev = []
    for f in range(4):
        ak = V_ACC + 16 * f; av = V_ACC + 64 + 16 * f; A = 48 + 16 * (f % 2); B = 56 + 16 * (f % 2); t = 32
        for j in range(8): e(f"v_pk_mul_f32 {vr(t+2*j,2)}, {vr(ak+2*j,2)}, s[68:69] op_sel_hi:[1,0]")
        for j in range(16):
            if j % 3 == 0 and prev: e(prev.pop(0))
            e(f"v_exp_f32_e64 v{t+j}, v{t+j} clamp")
        for j in range(16): e(f"v_max_f32 v{ak+j}, s69, v{ak+j}")
        for j in range(8): e(f"v_cvt_pk_bf16_f32 v{B+j}, v{av+2*j}, v{av+2*j+1}")
        for j in range(8): e(f"v_pk_add_f32 {vr(ak+2*j,2)}, {vr(ak+2*j,2)}, {vr(t+2*j,2)}")
        for j in range(8): e(f"v_cvt_pk_bf16_f32 v{A+j}, v{ak+2*j}, v{ak+2*j+1}")
        prev = [mfma(DK, B, A, "0" if f == 0 else None), mfma(DK, B + 4, A + 4), mfma(DZ, 80, A, "0" if f == 0 else None), mfma(DZ, 80, A + 4)]
    if "kmarks" in X: st.mark(10)
    e("s_nop 1")
    for x in prev: e(x)
    e("s_nop 9")
    e("s_mov_b64 exec, s[66:67]")
    for r in range(8): e(f"v_mov_b32 v{DK+r}, v{DK+8+r}")
    e("s_mov_b64 exec, -1")
    for r in range(8):
        e(f"buffer_atomic_add_f32 v{DK+r}, v3, s[20:23], s64 offen offset:{64*(8*(r//4) + r%4)}")
    e("s_mov_b64 exec, 0xffffffff")
    e(f"buffer_atomic_add_f32 v{DZ}, v5, s[20:23], s65 offen")
    e("s_mov_b64 exec, -1")
    lab("K1_JOIN")
    st.mark()
    V_STG, V_TOK, XU, V_SS, V_AY, V_XRES, V_OUT = 32, 120, 168, 184, 200, 232, 11
    NT = 12
    tr_lane(12)
    e(f"s_lshl_b32 s3, s{S_UH}, 6"); e("v_xor_b32 v12, s3, v12")
    for r, (b0, k) in ((14, (54, 8)), (20, (34, 18)), (24, (0, 36)), (28, (72, 4)), (12, (16, 9))):
        e(f"s_mul_i32 s3, s{S_UH}, {k*2048}"); e(f"s_add_u32 s3, s3, {b0*2048}"); e(f"v_add_u32 v{r}, s3, v12"); e(f"v_xor_b32 v{r+1}, 64, v{r}")
    lwait(4, 4, "g")
    for j in range(8):
        for nf in range(2):
            for rd in range(2):
                e(f"ds_read_b64_tr_b16 {vr(V_STG+8*j+4*nf+2*rd,2)}, v{14+nf} offset:{j*2048 + rd*1024}")
    e(f"s_lshl4_add_u32 s64, s{S_MB}, s{S_T}"); e(f"s_lshl_b32 s64, s64, {FS}"); e(f"s_add_u32 s64, s64, {FLG_OFF}")
    e("v_mov_b32 v7, 1")
    e("v_and_b32 v3, 31, v1"); e("v_lshrrev_b32 v4, 5, v1"); e(f"v_lshlrev_b32 v{V_OUT}, 10, v3"); e(f"v_lshl_add_u32 v{V_OUT}, v4, 4, v{V_OUT}")
    e(f"s_lshl_b32 s77, s{S_MT}, 16"); e(f"s_lshl_b32 s3, s{S_NT}, 7"); e("s_add_u32 s77, s77, s3")
    e(f"s_lshl_b32 s3, s{S_TG}, 15"); e("s_add_u32 s77, s77, s3"); e(f"s_lshl_b32 s3, s{S_UH}, 6"); e("s_add_u32 s77, s77, s3")
    srd(16, 92, 93, 2097152)
    e(f"s_lshl1_add_u32 s3, s{S_MT}, s{S_TG}"); e(f"s_mul_i32 s3, s3, {NKS*1024}")
    e("s_add_u32 s8, s38, s3"); e("s_addc_u32 s9, s39, 0"); e(f"s_mov_b32 s10, {86*1024}"); e("s_mov_b32 s11, 0x00020000")
    e(f"s_mul_i32 s79, s{S_UH}, 43"); e(f"s_add_u32 s79, s79, s{S_RY}"); e("s_sub_u32 s3, s79, 86"); e("s_cselect_b32 s79, s79, s3"); e("s_lshl_b32 s79, s79, 10")
    e(f"s_lshl_b32 s65, s{S_TG}, 12"); e(f"s_add_u32 s65, s65, {58*2048}"); e(f"s_lshl_b32 s3, s{S_UH}, 14"); e("s_add_u32 s66, s65, s3"); e("v_add_u32 v16, s66, v10")
    e("s_xor_b32 s3, s3, 0x4000"); e("s_add_u32 s66, s65, s3"); e("v_add_u32 v17, s66, v10")
    e(f"s_lshl_b32 s3, s{S_TG}, 13"); e(f"s_lshl_b32 s65, s{S_UH}, 12"); e("s_add_u32 s3, s3, s65"); e("v_add_u32 v18, s3, v10"); e(f"v_add_u32 v19, {36*2048}, v18")
    if SR: e(f"s_lshl_b32 s3, s{S_WAVE}, 12"); e(f"s_add_u32 s3, s3, {72*2048}"); e("v_add_u32 v18, s3, v10")
    e(f"s_mov_b32 s68, {fbits(-LOG2E)}"); e(f"s_mov_b32 s70, {86*1024}"); e("s_movk_i32 s71, 1024")
    e(f"v_lshlrev_b32 v4, {FS}, v1"); e("s_mov_b32 s90, 0")
    e(f"s_lshr_b32 s72, s{S_MT}, 1"); e(f"s_lshl_b32 s72, s72, {FS+4}"); e(f"s_add_u32 s72, s72, {FLG_OFF}")
    e("s_waitcnt vmcnt(0)")
    if "kmarks" in X: st.mark(13)
    e("s_mov_b64 exec, 1")
    e("ds_add_rtn_u32 v6, v27, v7")
    e("s_waitcnt lgkmcnt(0)")
    e("v_readfirstlane_b32 s66, v6")
    e("s_cmp_eq_u32 s66, 3"); e("s_cbranch_scc0 K2_noflag")
    if KD: e(f"buffer_store_dword v7, off, s[20:23], s64 {SC}")
    else:
        e(f"s_cmp_eq_u32 s{S_TYPE}, 2"); e("s_cbranch_scc1 K2_kvflag")
        e(f"buffer_store_dword v7, off, s[20:23], s64 {SC if 'plainflag' not in X else ''}")
        if "wbl2" in X:
            e(f"s_cmp_eq_u32 s{S_T}, 9"); e("s_cbranch_scc0 K2_noflag"); e("buffer_wbl2 sc1")
        e("s_branch K2_noflag")
        lab("K2_kvflag")
        e("v_mov_b32 v6, 1")
        e(f"buffer_atomic_add v6, off, s[24:27], 0 offset:128 {SC}")
        e("s_waitcnt vmcnt(0)")
        e("v_readfirstlane_b32 s66, v6")
        e("s_and_b32 s66, s66, 63")
        e("s_cmp_eq_u32 s66, 63"); e("s_cbranch_scc0 K2_noflag")
        e("s_mov_b64 exec, 0xffff")
        e(f"v_lshlrev_b32 v6, {FS+4}, v1"); e(f"s_mov_b32 s66, {FLG_OFF + (10 << FS)}")
        e(f"buffer_store_dword v7, v6, s[20:23], s66 offen {SC}")
    lab("K2_noflag")
    e("s_mov_b64 exec, -1")
    st.mark()
    XPRE = True
    FP = opt('fp', '0')
    def xres():
        e(f"buffer_load_dwordx4 {vr(V_XRES,4)}, v{V_OUT}, s[16:19], s77 offen")
        e(f"buffer_load_dwordx4 {vr(V_XRES+4,4)}, v{V_OUT}, s[16:19], s77 offen offset:32")
        srd(16, 86, 87, 2097152)
    if FP == '2': xres()
    e("s_barrier")
    e(f"s_setprio {opt('yp','0')}")
    if XD2:
        srd(16, 86, 87, 2097152)
        e("v_and_b32 v3, 31, v1"); e("v_and_b32 v5, 7, v1"); e(f"s_lshl_b32 s3, s{S_UH}, 2"); e("v_xor_b32 v5, s3, v5")
        e("v_lshlrev_b32 v3, 7, v3"); e("v_lshl_add_u32 v3, v5, 4, v3"); e("v_lshrrev_b32 v5, 5, v1"); e("v_lshl_add_u32 v3, v5, 3, v3")
        e(f"s_lshl_b32 s3, s{S_TG}, 12"); e(f"s_add_u32 s3, s3, {XRA}"); e(f"v_add_u32 v{V_XRES+8}, s3, v3")
        for i in range(1, 4): e(f"v_xor_b32 v{V_XRES+8+i}, {16*i}, v{V_XRES+8}")
        if opt('yd', '1') == '1': lwait(12, 4, "r0", 2)
    elif F8:
        f8_vo(); f8_ld()
        e(f"s_mul_i32 s65, s{S_UH}, {36*2048}"); e(f"s_lshl_b32 s3, s{S_TG}, 13"); e("s_add_u32 s65, s65, s3"); f8_addr(FWA, 8, 65)
        e("s_waitcnt vmcnt(0)")
        for x in f8_unp: e(x)
        if opt('yd', '1') == '1': lwait(12, 4, "r0", 2)
    elif FP == '0': xres(); e("s_waitcnt vmcnt(0)")
    e(f"s_cmp_eq_u32 s{S_WAVE}, 0"); e("s_cbranch_scc0 K2_ywait0")
    e("s_mov_b64 exec, 0x3ff")
    e(f"buffer_load_dword v5, v4, s[20:23], s72 offen {SC}")
    if FP == '1':
        e("s_mov_b64 exec, -1"); xres(); e("s_mov_b64 exec, 0x3ff"); e("s_waitcnt vmcnt(2)")
    else: e("s_waitcnt vmcnt(0)")
    lab("K2_poll")
    e("v_cmp_ne_u32 vcc, 0, v5")
    e("s_cmp_eq_u32 vcc_lo, 0x3ff"); e("s_cbranch_scc1 K2_yset")
    e(f"s_sleep {opt('slp','3')}")
    e(f"buffer_load_dword v5, v4, s[20:23], s72 offen {SC}")
    e("s_add_u32 s90, s90, 1"); e("s_cmp_lt_u32 s90, 0x100000")
    e("s_waitcnt vmcnt(0)")
    e("s_cbranch_scc1 K2_poll")
    lab("K2_yset")
    lsig(16)
    e("s_branch K2_ygo")
    lab("K2_ywait0")
    if FP == '1': xres()
    lwait(16, 1, "y", 1)
    lab("K2_ygo")
    st.mark()
    NS = 43
    PH[0] = "y"
    def tok(j):
        e(f"buffer_load_dwordx4 {vr(V_TOK+4*(j%NT),4)}, v10, s[8:11], s79 offen {SC}")
        if j < NS - 1: e("s_add_u32 s79, s79, s71"); e("s_cmp_eq_u32 s79, s70"); e("s_cselect_b32 s79, 0, s79")
    TD = int(opt('td', '5')); ZP = int(opt('zp', '21')); Z2 = int(opt('z2', '28'))
    TD1 = int(opt('td1', str(TD))); JT = int(opt('jt', '12')); XJ = int(opt('xj', '10'))
    if NZ: ZP = 33; Z2 = 99
    def wslot(j):
        if j <= ZP + 9: return V_STG + 8 * (j % 11)
        return wslot(ZP - 1 + (j - ZP - 10) % 3)
    def wr(j):
        b = wslot(j)
        for nf in range(2):
            for rd in range(2):
                r, j0 = (12, 8) if j < 17 else (20, 17) if j < 19 else (28, 19) if j < 23 else (24, 23) if j < 39 else (14, 39)
                e(f"ds_read_b64_tr_b16 {vr(b+4*nf+2*rd,2)}, v{r+nf} offset:{(j-j0)*2048 + rd*1024}")
    used = {wslot(j) for j in range(ZP + 10, NS)}
    free = [V_STG + 8 * k for k in range(11) if V_STG + 8 * k not in used]
    if PB16: free = [wslot(ZP + 2 + k) for k in range(8)]
    assert Z2 >= ZP + (7 if PB16 else 10) and ZP >= 14 and PB16 and SR
    tq = [f + 4 * h for f in free for h in range(2)][:12]
    sread = [f"ds_read_b128 {vr(V_SS+4*r,4)}, v18 offset:{1024*r}" for r in range(4)]
    for k in range(1, 4):
        sread += [f"ds_read_b128 {vr(tq[4*(k-1)+r],4)}, v{19 if k == 3 else 18} offset:{[0, 32768, 49152, 0][k] + 1024*r}" for r in range(4)]
    sadd = [f"v_add_f32 v{V_SS+4*r+c}, v{V_SS+4*r+c}, v{tq[4*(k-1)+r]+c}" for k in range(1, 4) for r in range(4) for c in range(4)]
    if PB16:
        sread = []
        for k in range(4):
            sread += [f"ds_read_b128 {vr(tq[2*k+r],4)}, v{19 if k == 3 else 18} offset:{[0, 32768, 49152, 0][k] + 1024*r}" for r in range(2)]
        sadd = []
        for k in range(4):
            for c in range(8):
                src = tq[2*k + c//4] + c % 4
                if k == 0: sadd += [f"v_lshlrev_b32 v{V_SS+2*c}, 16, v{src}", f"v_and_b32 v{V_SS+2*c+1}, s{S_MASK}, v{src}"]
                else:
                    t = 2 + (c % 2)
                    sadd += [f"v_lshlrev_b32 v{t}, 16, v{src}", f"v_and_b32 v{src}, s{S_MASK}, v{src}",
                             f"v_add_f32 v{V_SS+2*c}, v{V_SS+2*c}, v{t}", f"v_add_f32 v{V_SS+2*c+1}, v{V_SS+2*c+1}, v{src}"]
    for j in range(TD): tok(j)
    ntok = TD
    for j in range(8, 11): wr(j)
    first_late = min(j for j in range(NS) if (j + 10 >= 39 and j < ZP) or (j >= ZP + 8 and j + 2 >= 39))
    assert NZ or first_late > ZP
    first_late = -1
    def pre(j):
        nonlocal ntok
        def f1():
            nonlocal ntok
            for _ in range(2):
                if ntok < NS and ntok - j <= (TD if j < JT else TD1): tok(ntok); ntok += 1
            if j == XJ and not XPRE:
                xat[0] = ntok
                e(f"buffer_load_dwordx4 {vr(V_XRES,4)}, v{V_OUT}, s[16:19], s77 offen")
                e(f"buffer_load_dwordx4 {vr(V_XRES+4,4)}, v{V_OUT}, s[16:19], s77 offen offset:32")
                srd(16, 86, 87, 2097152)
        def f2():
            if j == 13: lwait(12, 4, "r")
            if j == Z2: e("s_barrier")
            if j == first_late: lwait(8, 4, "l")
            if Z2 <= j < Z2 + 4:
                for x in sread[4*(j-Z2):4*(j-Z2)+4]: e(x)
            if NZ and j == 29: pass
            elif 1 <= j < ZP: wr(j + 10)
            elif j >= ZP + 8 and j + 2 < NS: wr(j + 2)
            if NZ:
                if j == 17: lsig(24)
                if j == 29: lwait(8, 4, "l"); wr(39)
            elif j == ZP: e("s_waitcnt lgkmcnt(0)"); e("s_barrier")
        return capture(f1), capture(f2)
    xat = [None]
    xun = [f"v_permlane32_swap_b32 v{V_XRES+a_}, v{V_XRES+b_}" for a_, b_ in ((0, 2), (1, 3), (4, 6), (5, 7))]
    for j in range(8): xun += [f"v_lshlrev_b32 v{XU+2*j}, 16, v{V_XRES+j}", f"v_and_b32 v{XU+1+2*j}, s{S_MASK}, v{V_XRES+j}"]
    if SR:
        assert not XD2
        sread = []; sadd = []
        if F8: xun = []; assert ZP >= 21
    if XD2:
        sread = sread + [f"ds_read_b64 {vr(V_XRES+2*i,2)}, v{V_XRES+8+i}" for i in range(4)]
        sadd = sadd + xun[4:]; xun = []
    L.extend(pre(0)[0])
    for j in range(NS):
        if "ymarks" in X and j in (1, 8, 16, ZP - 1, ZP, Z2 - 1): st.mark()
        lg = ""
        if NZ and j == ZP + 3: lg = " lgkmcnt(0)"
        elif 8 <= j < ZP: lg = " lgkmcnt(12)"
        elif j >= ZP + 10: lg = f" lgkmcnt({4 * min(2, NS - 1 - j)})"
        elif PB16 and j == Z2 + 3: lg = " lgkmcnt(4)"
        e(f"s_waitcnt vmcnt({ntok - 1 - j + (2 if xat[0] is not None and j < xat[0] else 0)})" + lg)
        adds = []
        if j >= (24 if NZ else ZP) and xun: adds = [xun.pop(0) for _ in range(min(len(xun), 4))]
        if j >= Z2 + (3 if PB16 else 5): adds = [sadd.pop(0) for _ in range(min(len(sadd), int(opt('na', '10'))))]
        A_, B_ = pre(j + 1) if j + 1 < NS else ([], [])
        e(mfma(V_AY + 16, wslot(j) + 4, V_TOK + 4 * (j % NT), "0" if j == 0 else None))
        L.extend(A_)
        for x in adds[:6]: e(x)
        e(mfma(V_AY, wslot(j), V_TOK + 4 * (j % NT), "0" if j == 0 else None))
        L.extend(B_)
        for x in adds[6:]: e(x)
    st.mark()
    for x in sadd: e(x)
    e("s_nop 10")
    if F8:
        for r in (4, 5, 6, 7, 0, 1, 2, 3): e(f"ds_write_b128 v{FWA+r}, {vr(V_AY+4*r,4)}")
        lab("K2_FIN8")
        e("s_waitcnt lgkmcnt(0)")
        if "fmarks" in X: st.mark()
        e("s_barrier")
        if "fmarks" in X: st.mark()
        for k in range(6): e(f"ds_read_b128 {vr(32+4*k,4)}, v{FAD+k}")
        e("s_waitcnt lgkmcnt(2)")
        for j in range(4): e(f"v_pk_add_f32 {vr(32+2*j,2)}, {vr(32+2*j,2)}, {vr(40+2*j,2)}")
        for j in range(4): e(f"v_pk_mul_f32 {vr(40+2*j,2)}, {vr(32+2*j,2)}, s[68:69] op_sel_hi:[1,0]")
        for j in range(8): e(f"v_exp_f32 v{40+j}, v{40+j}")
        e("s_waitcnt lgkmcnt(0)")
        for j in range(4): e(f"v_pk_mul_f32 {vr(32+2*j,2)}, {vr(32+2*j,2)}, {vr(48+2*j,2)}")
        for j in range(4): e(f"v_pk_add_f32 {vr(40+2*j,2)}, {vr(40+2*j,2)}, 1.0 op_sel_hi:[1,0]")
        for j in range(8): e(f"v_rcp_f32 v{40+j}, v{40+j}")
        for j in range(4): e(f"v_pk_fma_f32 {vr(32+2*j,2)}, {vr(32+2*j,2)}, {vr(40+2*j,2)}, {vr(FXU+2*j,2)}")
        for j in range(4): e(f"v_cvt_pk_bf16_f32 v{56+j}, v{32+2*j}, v{33+2*j}")
        e(f"buffer_store_dwordx4 v[56:59], v{FOUT}, s[16:19], s77 offen {opt('osc','sc0_sc1').replace('_',' ')}")
    else:
        for r in range(4): e(f"ds_write_b128 v16, {vr(V_AY+16+4*r,4)} offset:{1024*r}")
        e("s_waitcnt lgkmcnt(0)")
        if "fmarks" in X: st.mark()
        e("s_barrier")
        if "fmarks" in X: st.mark()
        for r in range(4): e(f"ds_read_b128 {vr(32+4*r,4)}, v17 offset:{1024*r}")
        if SR:
            for r in range(4): e(f"ds_read_b128 {vr(V_SS+4*r,4)}, v18 offset:{1024*r}")
        for r in range(4):
            e(f"s_waitcnt lgkmcnt({3-r+(4 if SR else 0)})")
            for j in (2*r, 2*r+1): e(f"v_pk_add_f32 {vr(V_AY+2*j,2)}, {vr(V_AY+2*j,2)}, {vr(32+2*j,2)}")
        for j in range(8): e(f"v_pk_mul_f32 {vr(32+2*j,2)}, {vr(V_AY+2*j,2)}, s[68:69] op_sel_hi:[1,0]")
        for j in range(16): e(f"v_exp_f32 v{32+j}, v{32+j}")
        if SR: e("s_waitcnt lgkmcnt(0)")
        for j in range(8): e(f"v_pk_mul_f32 {vr(V_AY+2*j,2)}, {vr(V_AY+2*j,2)}, {vr(V_SS+2*j,2)}")
        for j in range(8): e(f"v_pk_add_f32 {vr(32+2*j,2)}, {vr(32+2*j,2)}, 1.0 op_sel_hi:[1,0]")
        for h in range(2):
            for j in range(8*h, 8*h+8): e(f"v_rcp_f32 v{32+j}, v{32+j}")
            for j in range(4*h, 4*h+4): e(f"v_pk_fma_f32 {vr(32+2*j,2)}, {vr(32+2*j,2)}, {vr(V_AY+2*j,2)}, {vr(XU+2*j,2)}")
            for j in range(4*h, 4*h+4): e(f"v_cvt_pk_bf16_f32 v{64+j}, v{32+2*j}, v{33+2*j}")
            e("s_nop 1")
            for a_, b_ in ((0, 2), (1, 3)): e(f"v_permlane32_swap_b32 v{64+4*h+a_}, v{64+4*h+b_}")
            e(f"buffer_store_dwordx4 {vr(64+4*h,4)}, v{V_OUT}, s[16:19], s77 offen offset:{32*h}")
    if "fixspan" in X:
        lab("K_fix")
        e("s_memrealtime s[96:97]"); e("s_waitcnt lgkmcnt(0)"); e("s_sub_u32 s96, s96, s94"); e(f"s_cmp_lt_u32 s96, {opt('fix','5000')}"); e("s_cbranch_scc1 K_fix")
    if STAMP:
        st.mark(); e("s_waitcnt vmcnt(0)"); st.mark()
        st.dump(S_WAVE, "K_END")
    lab("K_END")
    e("s_endpgm")

hdr = f"""; Fused block in one launch: phase 1 = LayerNorm + QKV/gate/up GEMM + phi/GEGLU epilogues + kv reduction,
; @launch grid=(256,1,1) block=(512,1,1) lds=163840
.amdgcn_target "amdgcn-amd-amdhsa--gfx950"
.text"""
kernel()
kd = f""".amdhsa_kernel {NAME}_kernel
  .amdhsa_next_free_vgpr 256
  .amdhsa_next_free_sgpr 102
  .amdhsa_accum_offset 256
  .amdhsa_group_segment_fixed_size 0
  .amdhsa_kernarg_size 80
  .amdhsa_user_sgpr_count 2
  .amdhsa_user_sgpr_kernarg_segment_ptr 1
  .amdhsa_system_sgpr_workgroup_id_x 1
.end_amdhsa_kernel"""
open(OUT, "w").write(hdr + "\n" + "\n".join(L) + '\n.section .rodata,"a"\n.p2align 6\n' + kd + "\n")
```

```python
import sys, struct
STAMP = "--stamp" in sys.argv
OUT = [a for a in sys.argv[1:] if not a.startswith("--")]
NAME = "recurrent_scan__linear_attn_block__glu_gated_geglu__prompt"
OUT = OUT[0] if OUT else f"cdna_kernels/{NAME}.s"
X = set(a[2:] for a in sys.argv if a.startswith("--"))
def opt(name, dflt):
    r = [a[len(name)+3:] for a in sys.argv if a.startswith('--' + name + '=')]
    return r[0] if r else dflt

L = []
PH = [""]
def e(s):
    if PH[0] in ("s", "y") and "plainld" in X and s.startswith("buffer_load"): s = s.replace(" sc0 sc1", "")
    if PH[0] == "s" and "nosv" in X and s.split()[0] in ("v_mul_f32", "v_cvt_pk_bf16_f32", "v_rcp_f32", "v_add_f32", "v_mov_b32", "v_permlane16_swap_b32"): return
    if PH[0] == "s" and "nokv" in X and s.startswith("buffer_load") and ", v11," in s: s = s.replace(", v11,", ", v10,")
    if PH[0] == "s":
        if "nosld" in X and s.startswith("buffer_load_dwordx4"): return
        if "nosmf" in X and s.startswith("v_mfma"): return
        if "nosw" in X and s.startswith("ds_write_b128"): return
    if PH[0] == "y":
        if "noyld" in X and s.startswith("buffer_load_dwordx4"): return
        if "noymf" in X and s.startswith("v_mfma"): return
        if "noyrd" in X and s.startswith("ds_read_b64_tr"): return
    L.append("    " + s)
def lab(s): L.append(s + ":")
def vr(b, n): return f"v[{b}:{b+n-1}]"
def fbits(x): return "0x%08x" % struct.unpack("<I", struct.pack("<f", x))[0]

NKS = 118
KV_OFF = 0x800000
KV_BYTES = 32 * 1088
FLG_OFF = KV_OFF + 0x10000
FS = int(opt('fs', '7'))
FLG_BYTES = 256 << FS
WS_USED = FLG_OFF + FLG_BYTES
STAMP_OFF = 0x8000000
LOG2E = 1.4426950408889634
B128 = opt("xl", "b128") == "b128"
SC = "sc0 sc1"
HSC = "" if "plainh" in X else SC

def srd(d, lo, hi, size):
    e(f"s_mov_b32 s{d}, s{lo}"); e(f"s_mov_b32 s{d+1}, s{hi}")
    e(f"s_mov_b32 s{d+2}, {size}"); e(f"s_mov_b32 s{d+3}, 0x00020000")

class Stamps:
    def __init__(self): self.n = 0
    def mark(self, i=None):
        if "fixspan" in X and i is None:
            if self.n in (0, int(opt('fixat', '0'))): e("s_memrealtime s[94:95]"); e("s_waitcnt lgkmcnt(0)")
            self.n += 1
        if STAMP:
            k = self.n if i is None else i
            e("s_memtime s[98:99]"); e("s_memrealtime s[100:101]"); e("s_waitcnt lgkmcnt(0)")
            e(f"v_writelane_b32 v255, s98, {2*k}"); e(f"v_writelane_b32 v255, s100, {2*k+1}")
            if i is None: self.n += 1
    def dump(self, swave, label):
        if not STAMP: return
        e(f"s_cmp_lg_u32 s{swave}, {opt('sw', '0')}"); e(f"s_cbranch_scc1 {label}")
        srd(4, 38, 39, "0x10000000")
        e("s_lshl_b32 s3, s2, 7"); e(f"s_add_u32 s3, s3, {STAMP_OFF}")
        e("v_lshlrev_b32 v3, 2, v1"); e("s_mov_b64 exec, 0xffffffff")
        if "imarks" in X:
            for k in range(1, 9):
                e(f"v_readlane_b32 s98, v254, {k}"); e("s_nop 3"); e(f"v_writelane_b32 v255, s98, {21+k}")
        e(f"buffer_store_dword v255, v3, s[4:7], s3 offen")
        if "dbgspan" in X:
            e("v_lshlrev_b32 v3, 1, v1"); e("v_add_u32 v3, 6, v3"); e("s_mov_b32 exec_lo, 0x000aaaaa"); e("s_mov_b32 exec_hi, 0")
            e("buffer_atomic_umax v255, v3, s[24:27], 0 offen")
            e("v_not_b32 v4, v255"); e("s_mov_b64 exec, 2")
            e("buffer_atomic_umax v4, off, s[24:27], 0 offset:4")
st = Stamps()

XST = 16384; WBASE = 32768; SEGB = 18560; WST = 36992; KVP = 146432; LCNT = 144000; WOA = 38 * 2048
V_VW = 10
V_VX, V_XW, V_DV = 19, 88, 21
TAB = [4, 5, 0, 10, 6, 1, 11, 14, 7, 8, 2, 12, 9, 3, 13, 15]
V_NA = 22; V_ST = 30; V_UT = 40; V_PK = 72; V_XR = 96
V_XA, V_WA = 22, 26
V_SET = [32, 60]
V_ACC = 96
S_WAVE, S_TG, S_UH, S_MB, S_T, S_STR, S_U0, S_CNT = 40, 41, 42, 43, 44, 45, 46, 47
S_DMAW, S_KW, S_KS, S_HFO, S_Q, S_XI, S_MASK, S_ONES = 48, 49, 50, 51, 52, 53, 54, 55
S_RST, S_DST, S_TYPE, S_STR64, S_STR32, S_TMP, S_TMP2 = 56, 57, 58, 59, 60, 61, 62
S_RW, S_KWEND, S_RX, S_GX, S_XW = 72, 73, 63, 60, 79
S_MT, S_NT, S_R2, S_RY = 74, 75, 76, 91

KS = int(opt('ks', '5')); SPL = opt('spl', '0') == '1'
def k1_dma():
    G = []
    for p in range(9):
        g = [f"s_add_u32 m0, s{S_DMAW}, {1024*p}"]
        g.append(f"s_add_u32 s{S_KS}, s{S_KW}, s{S_HFO}" if p in (0, KS) else "s_nop 0")
        g.append(f"buffer_load_dwordx4 v{V_VW+p}, s[8:11], s{S_KS} offen {opt('wf','')} lds")
        G.append(g)
    G[-1] += [f"s_add_u32 s{S_KW}, s{S_KW}, s{S_STR64}", f"s_add_u32 s{S_DST}, s{S_DST}, 1",
              f"s_cmp_eq_u32 s{S_KW}, s{S_KWEND}", f"s_cselect_b32 s{S_KW}, 0, s{S_KW}",
              f"s_cmp_eq_u32 s{S_DST}, 3", f"s_cselect_b32 s{S_TMP}, {-2*WST & 0xffffffff}, s{S_TMP2}",
              f"s_cselect_b32 s{S_DST}, 0, s{S_DST}", f"s_add_u32 s{S_DMAW}, s{S_DMAW}, s{S_TMP}"]
    return G

def k1_reads(s_, p, var):
    b = V_SET[s_]
    if var == "S8":
        x = lambda f: f"ds_read_b128 {vr(b+4*f,4)}, v{V_XA+p} offset:{4096*f}" if B128 else f"ds_read_b128 {vr(b+4*f,4)}, v{V_XA} offset:{4096*f+256*p}"
        w = lambda a: [f"ds_read_b64_tr_b16 {vr(b+16+4*a+2*rd,2)}, v{V_WA} offset:{p*4608+1152*rd+SEGB*a}" for rd in range(2)]
        return [x(0)] + w(0) + w(1) + [x(1), x(2), x(3)]
    offs = [0, 32, 64, 96]
    if var == "N9a": offs.append(256)
    if var == "N9b": offs.append(128)
    def w(a): return [f"ds_read_b64_tr_b16 {vr(b+8+4*a,2)}, v{V_WA} offset:{p*4608+offs[a]}",
                      f"ds_read_b64_tr_b16 {vr(b+10+4*a,2)}, v{V_WA} offset:{p*4608+1152+offs[a]}"]
    x = lambda f: f"ds_read_b128 {vr(b+4*f,4)}, v{V_XA+p} offset:{4096*f}" if B128 else f"ds_read_b128 {vr(b+4*f,4)}, v{V_XA} offset:{4096*f+256*p}"
    r = [x(0)] + w(0) + [x(1)]
    for a in range(1, len(offs)): r += w(a)
    return r

def mfma(d, a, b, c=None):
    return f"v_mfma_f32_32x32x16_bf16 {vr(d,16)}, {vr(a,4)}, {vr(b,4)}, " + (vr(d, 16) if c is None else c)

def k1_mfma(s_, var):
    b = V_SET[s_]
    m = []
    if var == "S8":
        return [mfma(V_ACC + 16 * (4 * a + f), b + 4 * f, b + 16 + 4 * a) for f in range(4) for a in ((1, 0) if (f % 2 and opt('snake', '1') == '1') else (0, 1))]
    for a in range(4):
        for f in ((1, 0) if (a % 2 and opt('snake', '1') == '1') else (0, 1)):
            acc = V_ACC + 16 * (2 * a + f)
            W = b + 8 + 4 * a; X_ = b + 4 * f
            m.append(mfma(acc, X_, W) if var == "S8" else mfma(acc, W, X_))
    if var in ("N9a", "N9b"):
        m.append(mfma(V_ACC + 128, b + 24, b + (0 if var == "N9a" else 4)))
    return m

def k1_unpack(g):
    r = [f"s_set_gpr_idx_on s{S_XI}, gpr_idx(SRC1)", "s_nop 0"]
    for j in range(4 * g, 4 * g + 4):
        r.append(f"v_lshlrev_b32 v{V_UT+2*j}, 16, v{V_XR+j}")
        r.append(f"v_and_b32 v{V_UT+2*j+1}, s{S_MASK}, v{V_XR+j}")
    r.append("s_set_gpr_idx_off")
    return r
def k1_norm(g):
    a = V_NA + 2 * g; j0 = 4 * g
    return [f"v_fma_f32 v{V_UT+2*j0+k}, v{V_UT+2*j0+k}, v{a}, v{a+1}" for k in range(8)] + \
           [f"v_cvt_pk_bf16_f32 v{V_PK+j}, v{V_UT+2*j}, v{V_UT+2*j+1}" for j in range(j0, j0 + 4)]
def k1_xw(g):
    if B128: return [f"ds_write_b128 v{V_XW+g}, {vr(V_PK+4*g,4)}", f"v_xor_b32 v{V_XW+g}, {XST}, v{V_XW+g}"]
    return [f"s_xor_b32 m0, s{S_XW}, {4096*g}", "s_nop 0"] + [f"ds_write_addtid_b32 v{V_PK+4*g+j} offset:{256*j}" for j in range(4)]
def k1_xadv():
    return [f"s_xor_b32 s{S_XW}, s{S_XW}, {XST}", f"s_add_u32 s{S_XI}, s{S_XI}, 16", f"s_and_b32 s{S_XI}, s{S_XI}, 127"]

def layout(body):
    n = len(body)
    for i, it in enumerate(body):
        if it[0] == 'm' and it[2]:
            cnt = 0; j = i; w = None
            while True:
                j = (j - 1) % n
                o = body[j]
                if o[0] == 'w0': break
                if o[0] == 'l':
                    if o[2] in it[2]: w = cnt; break
                    cnt += 1
                if j == i: break
            if w is not None: e(f"s_waitcnt lgkmcnt({min(w, 15)})")
        if it[1].endswith(":"): L.append(it[1])
        else: e(it[1])

def k1_cons_loop(var):
    def need(p):
        if var == "S8": return [[(p, 2)], [(p, 4)], [(p, 5)], [], [(p, 6)], [], [(p, 7)], []]
        return [[(p, 2)], [(p, 3)], [(p, 5)], [], [(p, 7)], [], [(p, 9)], [], [(p, 11)]]
    rs = {'a': [2, 2, 2, 2, 2, 2, 0, 0, 0], 'b': [2, 1, 1, 2, 1, 1, 2, 1, 1] if var in ('N9a', 'N9b') else [2, 1, 1, 1, 2, 1, 1, 1]}[opt('rs', 'a')]
    if var == "S8": rs = [2, 2, 1, 1, 1, 1, 0, 0]
    lab(f"K1_{var}")
    for x in k1_reads(0, 0, var): e(x)
    B = [('x', f"K1_{var}_loop:")]
    def stepx(s_, p, extra):
        mf = k1_mfma(s_, var); rd = k1_reads(s_ ^ 1, p + 1, var); ri = 0
        for i, m in enumerate(mf):
            B.append(('m', m, need(p)[i]))
            for _ in range(rs[i]):
                if ri < len(rd): B.append(('l', rd[ri], (p + 1, ri))); ri += 1
            for x in extra.get(i, []): B.append(('x', x))
    stepx(0, 0, {})
    stepx(1, 1, {6: [f"s_add_u32 s{S_RST}, s{S_RST}, 1", f"s_cmp_eq_u32 s{S_RST}, 3",
                     f"s_cselect_b32 s{S_TMP}, {-2*WST & 0xffffffff}, s{S_TMP2}", f"s_cselect_b32 s{S_RST}, 0, s{S_RST}"]})
    stepx(0, 2, {6: [f"v_xor_b32 v{V_XA+p}, {XST}, v{V_XA+p}" for p in range(1, 4)] if B128 else [],
                 7: [f"v_xor_b32 v{V_XA}, {XST}, v{V_XA}", f"v_add_u32 v{V_WA}, s{S_TMP}, v{V_WA}",
                     f"s_add_u32 s{S_CNT}, s{S_CNT}, 1", f"s_cmp_lt_u32 s{S_CNT}, 8"]})
    m = k1_mfma(1, var); nd = need(3)
    B.append(('m', m[0], nd[0])); B.append(('m', m[1], nd[1]))
    if "imarks" in X: B.append(('x', "s_memtime s[98:99]"))
    B.append(('w0', "s_waitcnt vmcnt(0) lgkmcnt(0)"))
    B.append(('x', "s_barrier"))
    if "imarks" in X:
        if "bw" in X:
            B.append(('x', "s_memtime s[100:101]")); B.append(('x', "s_waitcnt lgkmcnt(0)")); B.append(('x', "s_mul_i32 s98, s98, -1")); B.append(('x', "s_mul_i32 s98, s98, 1"))
            B.append(('x', "v_mov_b32 v253, s98")); B.append(('x', "v_add_u32 v253, s100, v253")); B.append(('x', "s_nop 0")); B.append(('x', "v_readfirstlane_b32 s98, v253")); B.append(('x', "s_nop 3"))
        B.append(('x', f"s_mov_b32 m0, s{S_CNT}")); B.append(('x', "s_nop 0")); B.append(('x', "v_writelane_b32 v254, s98, m0"))
    r0 = k1_reads(0, 0, var); ri = 0
    for i in range(2, len(m)):
        B.append(('m', m[i], []))
        for _ in range(3 if i < 4 else 2):
            if ri < len(r0): B.append(('l', r0[ri], (0, ri))); ri += 1
    assert ri == len(r0)
    B.append(('x', f"s_cbranch_scc1 K1_{var}_loop"))
    layout(B)
    e("s_branch K1_EPI")

def kernel():
    LA = {'2': 1, '4': 2, '8': 3}[opt('a', '4')]
    L.append(f".globl {NAME}_kernel"); L.append(".p2align 8"); L.append(f".type {NAME}_kernel,@function"); lab(f"{NAME}_kernel")
    if STAMP: e("v_mov_b32 v255, 0")
    st.mark()
    e("s_load_dwordx2 s[4:5], s[0:1], 0")
    e("s_load_dwordx4 s[28:31], s[0:1], 8")
    e("s_load_dwordx8 s[80:87], s[0:1], 32")
    e("s_load_dwordx4 s[36:39], s[0:1], 64")
    e("s_cmp_ge_u32 s2, 256"); e("s_cbranch_scc1 K_END")
    e(f"s_and_b32 s3, s2, {(1 << LA) - 1}"); e(f"s_bfe_u32 s64, s2, {((4-LA) << 16) | 3:#x}")
    e(f"s_lshl_b32 s3, s3, {4-LA}"); e(f"s_add_u32 s{S_MB}, s3, s64")
    e(f"s_lshr_b32 s65, s2, {7-LA}")
    e("v_bfe_u32 v3, v0, 3, 5"); e("v_and_b32 v4, 7, v0")
    e(f"s_and_b32 s{S_GX}, s65, {int(opt('rx','3')) & 3}"); e(f"s_and_b32 s{S_RX}, s65, {int(opt('rx','3')) & 4}")
    if B128: e("v_bfe_u32 v5, v0, 4, 3"); e("v_xor_b32 v5, v5, v4")
    else: e("v_lshrrev_b32 v5, 5, v0"); e("v_and_b32 v5, 4, v5"); e("v_xor_b32 v5, v5, v4")
    e(f"v_lshlrev_b32 v{V_VX}, 10, v3"); e(f"v_lshl_add_u32 v{V_VX}, v5, 4, v{V_VX}")
    e(f"s_lshl2_add_u32 s70, s{S_MB}, s{S_GX}"); e("s_lshl_b32 s70, s70, 8"); e(f"s_or_b32 s70, s70, s{S_RX}"); e("s_lshl_b32 s70, s70, 7")
    e("s_mov_b32 s6, 0x200000"); e("s_mov_b32 s7, 0x00020000")
    e("v_cmp_gt_u32 vcc, 0x100, v0"); e("s_cbranch_vccnz K1_cpf")
    def xload(i):
        g, c = divmod(i, 8)
        if c % 4 == 0 and i: e(f"s_xor_b32 s71, s70, {32768*g + 128*c}")
        e(f"buffer_load_dwordx4 {vr(V_XR+16*c+4*g,4)}, v{V_VX}, s[4:7], {'s71' if i >= 4 else 's70'} offen offset:{128*(c%4)} {opt('xf','')}")
    XD = int(opt('xd', '8'))
    e("s_waitcnt lgkmcnt(0)")
    if "emarks" in X: st.mark(10)
    X0 = int(opt('x0', '8'))
    for i in range(X0): xload(i)
    e("s_branch K1_setup")
    lab("K1_cpf")
    e("s_getpc_b64 s[66:67]")
    lab("K1_pc")
    e("s_and_b32 s3, s2, 0xf8")
    e("v_add_lshl_u32 v5, v0, s3, 7"); e(f"v_min_u32 v5, K_END-K1_pc, v5")
    e("v_cmp_gt_u32 vcc, 8, v0"); e("s_and_saveexec_b64 s[68:69], vcc"); e("s_cbranch_execz K1_nocpf")
    e("global_load_dword v21, v5, s[66:67]")
    lab("K1_nocpf")
    e("s_mov_b64 exec, -1")
    lab("K1_setup")
    e("v_lshrrev_b32 v2, 6, v0"); e("v_and_b32 v1, 63, v0")
    e(f"v_readfirstlane_b32 s{S_WAVE}, v2")
    e(f"s_bfe_u32 s3, s2, {((3-LA) << 16) | LA:#x}" if LA < 3 else "s_mov_b32 s3, 0"); e(f"s_lshl_b32 s3, s3, {LA+1}"); e("s_add_u32 s3, s3, s65")
    e(f"s_lshl_b32 s{S_RW}, s2, {3-LA}"); e(f"s_and_b32 s{S_RW}, s{S_RW}, {int(opt('xr','7'))}")
    e("s_lshl_b32 s3, s3, 2")
    tv = sum(t << (4 * i) for i, t in enumerate(TAB))
    e(f"s_mov_b32 s64, {tv & 0xffffffff:#x}"); e(f"s_mov_b32 s65, {tv >> 32:#x}")
    e("s_lshr_b64 s[64:65], s[64:65], s3"); e(f"s_and_b32 s{S_T}, s64, 15")
    e(f"s_and_b32 s{S_Q}, s{S_WAVE}, 3"); e(f"s_and_b32 s{S_TG}, s{S_WAVE}, 1"); e(f"s_lshr_b32 s{S_UH}, s{S_Q}, 1")
    e(f"s_lshl_b32 s{S_U0}, s{S_T}, 3")
    e(f"s_mul_i32 s3, s{S_T}, 9"); e("s_sub_u32 s3, s3, 4")
    e(f"s_cmp_ge_u32 s{S_T}, 4"); e(f"s_cselect_b32 s{S_U0}, s3, s{S_U0}"); e(f"s_cselect_b32 s{S_TYPE}, 1, 0")
    e(f"s_lshl_b32 s64, s{S_U0}, 5")
    e(f"s_lshl2_add_u32 s3, s{S_TG}, s{S_T}"); e("s_sub_u32 s3, s3, 6"); e("s_lshl_b32 s3, s3, 8")
    e(f"s_cmp_ge_u32 s{S_T}, 10"); e("s_cselect_b32 s64, s3, s64")
    e(f"s_cselect_b32 s{S_TYPE}, 2, s{S_TYPE}"); e(f"s_movk_i32 s3, 2752"); e(f"s_cselect_b32 s{S_STR}, 3072, s3")
    e(f"s_lshl1_add_u32 s3, s{S_T}, s{S_TG}"); e("s_sub_u32 s3, s3, 28"); e("s_lshl_b32 s3, s3, 8")
    e(f"s_lshl_b32 s67, s{S_T}, 4"); e(f"s_sub_u32 s67, s67, {14*16-86}")
    e(f"s_cmp_ge_u32 s{S_T}, 14"); e("s_cselect_b32 s64, s3, s64")
    e(f"s_cselect_b32 s{S_TYPE}, 3, s{S_TYPE}"); e(f"s_cselect_b32 s{S_U0}, s67, s{S_U0}")
    e(f"s_lshl_b32 s{S_STR64}, s{S_STR}, 6")
    e(f"s_cmp_eq_u32 s{S_TYPE}, 1"); e("s_cselect_b32 s66, 17, 15")
    if "emarks" in X: st.mark(11)
    e("s_movk_i32 s67, 3641"); e("s_movk_i32 s68, 0x13a")
    for p in range(9):
        src = "v1" if p == 0 else "v6"
        if p: e(f"v_add_u32 v6, 64, {'v1' if p == 1 else 'v6'}")
        e(f"v_mul_u32_u24 v5, s67, {src}"); e("v_lshrrev_b32 v5, 16, v5")
        e("v_mul_u32_u24 v7, 18, v5"); e(f"v_sub_u32 v7, {src}, v7"); e("v_min_u32 v7, s66, v7")
        if not B128:
            e("v_mul_u32_u24 v5, 0x821, v5"); e("v_bfe_u32 v5, v5, 3, 12"); e("v_and_b32 v5, s68, v5")
            e("v_mul_u32_u24 v5, 0x101, v5"); e("v_bfe_u32 v5, v5, 8, 6")
        e(f"v_mul_u32_u24 v5, s{S_STR}, v5"); e(f"v_lshl_add_u32 v{V_VW+p}, v7, 4, v5")
    e("s_waitcnt lgkmcnt(0)")
    e(f"s_cmp_eq_u32 s{S_TG}, 1")
    e("s_cselect_b64 s[8:9], s[82:83], s[80:81]"); e(f"s_cselect_b32 s{S_DMAW}, {SEGB}, 0")
    e(f"s_cmp_ge_u32 s{S_TYPE}, 2")
    e("s_cselect_b64 s[8:9], s[28:29], s[8:9]")
    e(f"s_lshl_b32 s{S_KWEND}, s{S_STR64}, 3")
    e("s_add_u32 s8, s8, s64"); e("s_addc_u32 s9, s9, 0"); e(f"s_sub_u32 s10, s{S_KWEND}, s64"); e("s_mov_b32 s11, 0x00020000")
    e(f"s_mul_i32 s{S_HFO}, s{S_UH}, s{S_STR64}"); e(f"s_lshr_b32 s{S_HFO}, s{S_HFO}, {1 if B128 else 4}")
    e(f"s_mul_i32 s3, s{S_UH}, 9216"); e(f"s_add_u32 s{S_DMAW}, s{S_DMAW}, s3"); e(f"s_add_u32 s{S_DMAW}, s{S_DMAW}, {WBASE}")
    e(f"s_mov_b32 s{S_TMP2}, {WST}"); e(f"s_mov_b32 s{S_CNT}, 0")
    e(f"s_mul_i32 s{S_KW}, s{S_RW}, s{S_STR64}"); e(f"s_mov_b32 s{S_DST}, 0")
    e("s_bfe_u32 s3, s2, 0x20003"); e(f"s_cmp_eq_u32 s3, s{S_WAVE}"); e("s_cselect_b32 s78, 1, 0")
    e("s_cbranch_scc0 K1_notlead")
    lab("K1_w0")
    for g in k1_dma():
        for x in g: e(x)
    e("s_cmp_eq_u32 s78, 0"); e("s_cbranch_scc1 K1_w0done")
    LW1 = opt('lw1', '0') == '1'
    if LW1:
        e("s_add_u32 s78, s78, 1"); e("s_cmp_eq_u32 s78, 2"); e("s_cbranch_scc1 K1_w0")
    lab("K1_notlead")
    e(f"s_mov_b32 s{S_MASK}, 0xffff0000"); e(f"s_mov_b32 s{S_ONES}, 0x3f803f80")
    srd(20, 38, 39, WS_USED); srd(24, 36, 37, 256)
    e("s_mov_b64 s[92:93], s[4:5]")
    B2 = opt('b2', '2') == '2'
    if B2:
        AL = opt('al', '0') == '1'
        e("s_and_b32 s3, s2, 3" if AL else "s_bfe_u32 s3, s2, 0x20001"); e("s_bfe_u32 s66, s2, 0x30003"); e(f"s_lshl3_add_u32 s{S_MT}, s3, s66")
        e("s_bfe_u32 s3, s2, 0x10002" if AL else "s_and_b32 s3, s2, 1"); e(f"s_lshr_b32 s{S_NT}, s2, 6"); e(f"s_lshl2_add_u32 s{S_NT}, s3, s{S_NT}")
    else:
        e("s_and_b32 s3, s2, 7"); e("s_bfe_u32 s66, s2, 0x20003"); e(f"s_lshl2_add_u32 s{S_MT}, s3, s66"); e(f"s_lshr_b32 s{S_NT}, s2, 5")
    e(f"s_mul_i32 s3, s66, {opt('rym','5')}")
    e(f"s_and_b32 s66, s{S_NT}, {opt('rg','0')}")
    e(f"s_mul_i32 s{S_R2}, s66, {8 // (int(opt('rg','0')) + 1)}"); e(f"s_mul_i32 s{S_RY}, s66, {44 // (int(opt('rg','0')) + 1)}"); e(f"s_add_u32 s{S_RY}, s{S_RY}, s3")
    if "emarks" in X: st.mark(12)
    e(f"s_cmp_lt_u32 s{S_WAVE}, 4"); e("s_cbranch_scc1 K1_CONS")
    e("s_setprio 3")
    def tr_lane(dst):
        e("v_lshrrev_b32 v3, 5, v1"); e("v_bfe_u32 v4, v1, 2, 2"); e("v_lshl_add_u32 v3, v3, 2, v4"); e("v_lshlrev_b32 v3, 7, v3")
        e("v_bfe_u32 v4, v1, 3, 1"); e("v_lshl_add_u32 v3, v4, 6, v3")
        e("v_bfe_u32 v4, v1, 4, 1"); e("v_lshl_add_u32 v3, v4, 5, v3")
        e("v_and_b32 v4, 3, v1"); e(f"v_lshl_add_u32 v{dst}, v4, 3, v3")
    def HOIST():
        e(f"s_lshl_b32 s3, s{S_NT}, 7")
        e("s_add_u32 s12, s30, s3"); e("s_addc_u32 s13, s31, 0"); e(f"s_sub_u32 s14, {512*1024}, s3"); e("s_mov_b32 s15, 0x00020000")
        e("s_add_u32 s16, s84, s3"); e("s_addc_u32 s17, s85, 0"); e(f"s_sub_u32 s18, {1376*1024}, s3"); e("s_mov_b32 s19, 0x00020000")
        e(f"s_lshl_b32 s64, s{S_Q}, 10")
        e(f"s_and_b32 s{S_R2}, s{S_NT}, {opt('hx','0')}")
        e(f"s_lshl1_add_u32 s65, s{S_Q}, s{S_R2}"); e("s_lshl_b32 s65, s65, 16")
        e(f"s_add_u32 s68, s{S_RY}, s{S_UH}"); e("s_lshl_b32 s68, s68, 14"); e(f"s_lshl_b32 s3, s{S_TG}, 13"); e("s_add_u32 s68, s68, s3")
        e("s_lshr_b32 s88, s2, 3"); e(f"s_lshl2_add_u32 s88, s88, s{S_Q}"); e("s_lshl_b32 s3, s2, 4"); e("s_add_u32 s88, s88, s3")
        e("s_and_b32 s88, s88, 127"); e("s_lshl_b32 s88, s88, 12")
        if B2:
            e("v_lshrrev_b32 v20, 2, v1"); e("v_lshlrev_b32 v20, 10, v20"); e("v_and_b32 v5, 3, v1"); e("v_lshl_add_u32 v20, v5, 7, v20")
            e(f"s_lshr_b32 s3, s{S_NT}, 2"); e("s_lshl_b32 s3, s3, 9"); e("v_add_u32 v20, s3, v20")
        else: e("v_lshlrev_b32 v20, 7, v1")
        tr_lane(92)
        e("v_add_u32 v92, s64, v92"); e(f"s_lshl_b32 s3, s{S_UH}, 6"); e("v_xor_b32 v92, s3, v92"); e("v_xor_b32 v93, 64, v92")
    def capture(fn):
        n0 = len(L); fn(); r = L[n0:]; del L[n0:]; return r
    e(f"s_add_u32 s3, s{S_RW}, 1"); e("s_and_b32 s3, s3, 7"); e(f"s_mul_i32 s{S_KW}, s3, s{S_STR64}")
    e(f"s_mov_b32 s{S_DST}, 1"); e(f"s_add_u32 s{S_DMAW}, s{S_DMAW}, {WST}")
    e(f"s_lshl2_add_u32 s{S_XW}, s{S_GX}, s{S_Q}"); e(f"s_lshl_b32 s{S_XW}, s{S_XW}, 10")
    if B128:
        e(f"v_lshl_add_u32 v{V_XW}, v1, 4, s{S_XW}")
        for g in range(1, 4): e(f"v_xor_b32 v{V_XW+g}, {4096*g}, v{V_XW}")
    e(f"s_sub_u32 s{S_XI}, s{S_RW}, s{S_RX}"); e(f"s_and_b32 s{S_XI}, s{S_XI}, 7"); e(f"s_lshl_b32 s{S_XI}, s{S_XI}, 4")
    e("v_lshrrev_b32 v5, 3, v1"); e("v_bfe_u32 v6, v1, 4, 1"); e("v_lshlrev_b32 v6, 2, v6"); e("v_xor_b32 v6, v6, v4")
    e("v_lshlrev_b32 v5, 10, v5"); e(f"v_lshl_add_u32 v{V_DV}, v6, 4, v5")
    for r in range(4): e(f"v_mov_b64 {vr(V_ST+2*r,2)}, 0")
    e(f"s_mov_b32 s32, {fbits(1/512)}"); e(f"s_mov_b32 s33, {fbits(1e-5)}")
    HOIST()
    WB = int(opt('wb', '24')); WB2 = int(opt('wb2', '32'))
    G4 = range(4)
    def fin(g):
        m, q = V_ST + 2 * g, V_ST + 2 * g + 1
        c = []
        for dpp in ("quad_perm:[1,0,3,2]", "quad_perm:[2,3,0,1]", "row_half_mirror"):
            c.append([f"v_add_f32_dpp v{r}, v{r}, v{r} {dpp} row_mask:0xf bank_mask:0xf" for r in (m, q)])
        c += [[f"v_mul_f32 v{m}, s32, v{m}", f"v_mul_f32 v{q}, s32, v{q}", f"v_fma_f32 v{q}, -v{m}, v{m}, v{q}", f"v_max_f32 v{q}, 0, v{q}",
               f"v_cvt_pk_bf16_f32 v{q}, v{m}, v{q}", f"v_lshlrev_b32 v{m}, 16, v{q}", f"v_and_b32 v{q}, s{S_MASK}, v{q}",
               f"v_add_f32 v{q}, s33, v{q}", f"v_cvt_pk_bf16_f32 v{q}, v{q}, v{q}", f"v_and_b32 v{q}, s{S_MASK}, v{q}", f"v_sqrt_f32 v{q}, v{q}"],
              [f"v_cvt_pk_bf16_f32 v{q}, v{q}, v{q}", f"v_and_b32 v{q}, s{S_MASK}, v{q}", f"v_rcp_f32 v{V_NA+2*g}, v{q}"],
              [f"v_mul_f32_e64 v{V_NA+2*g+1}, -v{m}, v{V_NA+2*g}"]]
        return c
    def mvw(gs):
        r = [f"s_set_gpr_idx_on s{S_XI}, gpr_idx(SRC0)", "s_nop 0"]
        for g in gs: r += [f"v_mov_b32 v{V_PK+4*g+h}, v{V_XR+4*g+h}" for h in range(4)]
        return r + ["s_set_gpr_idx_off"]
    def pre_u(g, c):
        r = []
        for j in range(4):
            x = V_XR + 16 * c + 4 * g + j
            r += [f"v_lshlrev_b32 v{V_UT+2*j}, 16, v{x}", f"v_and_b32 v{V_UT+2*j+1}, s{S_MASK}, v{x}"]
        return r
    def pre_n(g, c):
        a_ = V_NA + 2 * g
        return [f"v_pk_fma_f32 {vr(V_UT+2*j,2)}, {vr(V_UT+2*j,2)}, {vr(a_,2)}, {vr(a_,2)} op_sel:[0,0,1] op_sel_hi:[1,0,1]" for j in range(4)] + \
               [f"v_cvt_pk_bf16_f32 v{V_XR+16*c+4*g+j}, v{V_UT+2*j}, v{V_UT+2*j+1}" for j in range(4)]
    def chain(g):
        r = []
        for k, pc in enumerate(fin(g)):
            if k: r.append("s_nop 0")
            r += pc
        return r
    if "emarks" in X: st.mark(13)
    NPRE = int(opt('npre', '0'))
    pend = []
    nis = X0
    for i in range(32):
        if pend:
            for x in pend.pop(0): e(x)
        e(f"s_waitcnt vmcnt({nis - 1 - i})")
        for _ in range(2):
            if nis < 32 and nis - i <= XD:
                xload(nis); nis += 1
                if nis == WB: e("s_barrier")
                if nis == WB2: e("s_barrier")
        if "pmarks" in X and i in (0, 8, 16, 31): st.mark({0: 1, 8: 2, 16: 3, 31: 4}[i])
        g, c = divmod(i, 8)
        for j in range(4):
            r = V_XR + 16 * c + 4 * g + j
            e(f"v_dot2c_f32_bf16 v{V_ST+2*g}, s{S_ONES}, v{r}")
            e(f"v_dot2c_f32_bf16 v{V_ST+2*g+1}, v{r}, v{r}")
        if c == 7 and g < NPRE:
            assert not pend
            pend = [pre_u(g, cc) + (chain(g) if cc == 0 else []) + pre_n(g, cc) for cc in range(8)]
            pend[7] = pend[7] + mvw([g]) + k1_xw(g)
            if g == 0 and opt('front', '1') == '1': pend = [sum(pend, [])]
        elif c == 7 and g < 3:
            pend = [k1_unpack(g)] + fin(g); pend[-1] = pend[-1] + k1_norm(g) + k1_xw(g)
    for x in k1_unpack(3) + chain(3) + k1_norm(3) + k1_xw(3): e(x)
    for x in k1_xadv(): e(x)
    e("s_setprio 0")
    e("s_waitcnt lgkmcnt(0)")
    if "pmarks" in X: st.mark(5)
    e("s_barrier")
    if "pmarks" in X: st.mark(6)
    D = k1_dma()
    if LW1: e("s_bfe_u32 s3, s2, 0x20003"); e(f"s_cmp_eq_u32 s3, s{S_Q}"); e("s_cbranch_scc1 K1_pw1")
    if not SPL:
        for g in D[KS:]:
            for x in g[:3]: e(x)
        lab("K1_pw1")
        for x in D[8][3:]: e(x)
    if "lmarks" in X:
        e("s_memtime s[98:99]"); e("s_waitcnt lgkmcnt(0)"); e("s_mov_b32 s97, s98"); e("s_mov_b32 s94, 0"); e("s_mov_b32 s95, 0"); e("s_mov_b32 s96, 0")
    PFN = int(opt('pfn', '0')); PF0 = int(opt('pf0', '1')); PFA = opt('pfa', '0') == '1'
    if PFN:
        NSLOT = 128 if PFA else 80
        NL = -(-15104 // (NSLOT * PFN))
        while 11008 % NL: NL += 1
        NI = 11008 // NL; NTOT = NSLOT * PFN
        assert NL <= 64 and (NTOT - NI) * NL >= 4096, (NL, NI, NTOT)
        if PFA: e("s_lshr_b32 s88, s2, 3")
        else:
            e("s_lshr_b32 s3, s2, 5"); e("s_cmp_gt_u32 s3, 4"); e("s_subb_u32 s3, s3, 2")
            e("s_bfe_u32 s88, s2, 0x20003"); e("s_lshl2_add_u32 s88, s3, s88")
        e(f"s_lshl2_add_u32 s88, s88, s{S_Q}")
        e("s_and_b32 s3, s2, 7"); e(f"s_mul_i32 s3, s3, {NTOT // 8}"); e("s_add_u32 s88, s88, s3")
        e(f"s_cmp_eq_u32 s{S_TYPE}, {9 if PFA else 1}"); e(f"s_cselect_b32 s89, 99, {PF0}")
        e("v_lshlrev_b32 v20, 7, v1"); e("s_mov_b32 s15, 0x00020000")
    lab("K1_PROD_loop")
    if PFN:
        e(f"s_sub_u32 s3, s{S_CNT}, s89"); e(f"s_cmp_lt_u32 s3, {PFN}"); e("s_cbranch_scc0 K1_nopf")
        e(f"s_sub_u32 s3, s88, {NTOT}"); e("s_cselect_b32 s88, s88, s3")
        e(f"s_sub_u32 s3, s88, {NI}"); e("s_cselect_b32 s3, s88, s3")
        e("s_cselect_b64 s[12:13], s[84:85], s[30:31]"); e(f"s_mov_b32 s66, {512*1024}"); e(f"s_cselect_b32 s66, {1376*1024}, s66")
        e(f"s_mul_i32 s3, s3, {NL*128}"); e(f"s_add_u32 s14, s3, {NL*128}"); e("s_min_u32 s14, s14, s66"); e(f"s_add_u32 s88, s88, {NSLOT}")
        e("buffer_load_dword v2, v20, s[12:15], s3 offen")
        lab("K1_nopf")
    def weave(mem):
        N = [k1_norm(g) for g in range(4)]
        mem = list(mem)
        def dma(v):
            if not mem:
                for x in v: e(x)
                return
            pre, op = mem.pop(0)
            for x in pre: e(x)
            TH = int(opt('th', '99'))
            if TH < 99:
                e(f"s_waitcnt vmcnt({TH})"); v = [None] + list(v)
            elif v: e(v[0])
            elif len(pre) < 2 or "m0" in pre[-1]: e("s_nop 0")
            e(op)
            for x in v[1:]: e(x)
        if opt('wv', '0') == '0':
            for g in range(4):
                dma([])
                if g < NPRE:
                    for x in mvw([g]): e(x)
                    dma([])
                else:
                    for x in k1_unpack(g): e(x)
                    dma(N[g])
                for x in k1_xw(g): e(x)
            dma(k1_xadv())
        elif opt('wv', '0') == '3':
            seq = []
            for g in range(4):
                if g < NPRE: seq += [("a", mvw([g]))]
                else: seq += [("a", k1_unpack(g))] + [("v", [x]) for x in N[g]]
                seq += [("w", k1_xw(g))]
            tot = sum(len(x[1]) for x in seq); nd = len(mem); done = 0; k = 0; held = []
            dma([]); k = 1
            for i, (t, ins) in enumerate(seq):
                if t == "w": held.append(ins); done += len(ins); continue
                if mem and done >= tot * k / nd and t == "v":
                    for h in held:
                        for x in h: e(x)
                    held = []
                    dma(ins); k += 1
                else:
                    if mem and done >= tot * k / nd:
                        for h in held:
                            for x in h: e(x)
                        held = []
                        dma([]); k += 1
                    for x in ins: e(x)
                done += len(ins)
            for x in k1_xadv(): e(x)
            for h in held:
                for x in h: e(x)
            while mem: dma([])
        elif opt('wv', '0') == '2':
            for g in range(4):
                dma([]);
                if g == 0: dma([])
                u = k1_unpack(g)
                for x in u: e(x)
                dma(N[g][:11]) if False else None
                for x in N[g][:11]: e(x)
                e(k1_xw(g)[0]); e(N[g][11]); [e(x) for x in k1_xw(g)[2:]]
                dma([])
            for x in k1_xadv(): e(x)
        else:
            def unp(gs):
                r = [f"s_set_gpr_idx_on s{S_XI}, gpr_idx(SRC1)", "s_nop 0"]
                for g in gs:
                    for j in range(4 * g, 4 * g + 4):
                        if g < NPRE: r.append(f"v_or_b32 v{V_PK+j}, 0, v{V_XR+j}")
                        else: r += [f"v_lshlrev_b32 v{V_UT+2*j}, 16, v{V_XR+j}", f"v_and_b32 v{V_UT+2*j+1}, s{S_MASK}, v{V_XR+j}"]
                return r + ["s_set_gpr_idx_off"]
            def xw(g, v):
                w = k1_xw(g)
                e(w[0]); e(v[0] if v else "s_nop 0")
                for x in w[2:]: e(x)
                for x in v[1:]: e(x)
            xa = k1_xadv()
            dma([])
            for half in range(2):
                for x in unp([2 * half, 2 * half + 1]): e(x)
                for g in (2 * half, 2 * half + 1):
                    n = N[g] if g >= NPRE else []
                    dma(n[:6]); dma(n[6:11])
                    if n: e(k1_xw(g)[0]); e(n[11]); [e(x) for x in k1_xw(g)[2:]]
                    else: xw(g, [])
            for x in xa: e(x)
        assert not mem
    DM = [([x for x in g[:2] if x != "s_nop 0"], g[2]) for g in D]
    if SPL: weave(DM[KS:] + [(D[8][3:] + DM[0][0], DM[0][1])] + DM[1:KS])
    else:
        weave(DM)
        for x in D[8][3:]: e(x)
    e(f"s_add_u32 s{S_CNT}, s{S_CNT}, 1")
    def acc(k):
        if "lmarks" in X:
            e("s_memtime s[98:99]"); e("s_waitcnt lgkmcnt(0)"); e("s_sub_u32 s3, s98, s97"); e("s_mov_b32 s97, s98"); e(f"s_add_u32 s{k}, s{k}, s3")
    acc(94)
    e(f"s_waitcnt vmcnt({KS if SPL else 9}) lgkmcnt(0)")
    acc(95)
    e("s_barrier")
    acc(96)
    e(f"s_cmp_lt_u32 s{S_CNT}, 6")
    e("s_cbranch_scc1 K1_PROD_loop")
    if "lmarks" in X:
        for k in range(3): e(f"v_writelane_b32 v255, s{94+k}, {24+k}")
    if SPL:
        for g in D[KS:]:
            for x in g[:3]: e(x)
    V_KF, V_PO, V_O, V_PQ, V_WO, V_AS = 28, 36, 44, 76, 124, 188
    def wo_batch():
        for p in range(16):
            e(f"s_add_u32 m0, s64, {(0 if p < 8 else 36*2048) + 4096*(p%8)}")
            e(f"s_xor_b32 s66, s65, {8192*p}")
            e(f"buffer_load_dwordx4 v{V_DV}, s[12:15], s66 offen lds")
    def rounds(sig, pi, n):
        for i in range(n):
            e(f"s_add_u32 s66, s68, {(pi + 2*i) * 16384}")
            if sig + 2*i == 24:
                e(f"s_mul_i32 s69, s{S_UH}, {34*16384}"); e("s_add_u32 s66, s66, s69")
            e(f"s_sub_u32 s69, s66, {86*16384}")
            e(f"s_cselect_b32 s66, s66, s69")
            e(f"s_add_u32 m0, s64, {(sig + 2*i) * 2048}")
            e("s_nop 0")
            e(f"buffer_load_dwordx4 v{V_DV}, s[16:19], s66 offen lds")
    def early(sig, n, pd=None):
        for i in range(n):
            sg = sig + 2 * i
            pi = sg + 23 if sg < 16 else sg - 8 if sg < 25 else sg + 26 if sg < 34 else sg - 17 if sg < 36 else sg + 30 if sg < 52 else sg + 8 if sg < 54 else sg - 53 if sg < 76 else sg - 14
            if pd is not None: e(f"s_waitcnt vmcnt({pd})")
            rounds(sg, pi, 1)
    def lsig(off):
        e("s_mov_b64 exec, 1"); e(f"ds_add_u32 v27, v7 offset:{off}"); e("s_mov_b64 exec, -1")
    def lwait(off, n, tag, slp=0):
        lab(f"K_lw{tag}")
        if slp: e(f"s_sleep {slp}")
        e(f"ds_read_b32 v6, v27 offset:{off}"); e("s_waitcnt lgkmcnt(0)")
        e("v_readfirstlane_b32 s66, v6"); e(f"s_cmp_lt_u32 s66, {n}"); e(f"s_cbranch_scc1 K_lw{tag}")
    def wo_read(h0):
        for i in range(4):
            for nf in range(2):
                for rd in range(2):
                    e(f"ds_read_b64_tr_b16 {vr(V_WO+8*(h0+i)+4*nf+2*rd,2)}, v{92+nf} offset:{i*8192 + rd*4096}")
        e("s_waitcnt lgkmcnt(0)")
    e(f"buffer_load_dword v2, off, s[24:27], 0 {SC}")
    e("s_mov_b64 s[8:9], s[30:31]"); e("s_add_u32 s10, s88, 4096")
    if PFN: e("s_mov_b32 s10, 0")
    e("buffer_load_dword v20, v20, s[8:11], s88 offen")
    R5 = [(54 + 2*i, 2*i) for i in range(4)] + [(62 + 2*i, 43 + 2*i) for i in range(4)]
    RR = [capture(lambda: rounds(sg, pi, 1)) for sg, pi in R5]
    weave([([x.strip() for x in r[:4]], r[5].strip()) for r in RR])
    S3 = opt('s3', '7')
    if S3 == '5': early(72, 4)
    e(f"s_waitcnt vmcnt({13 if S3 == '5' else 9}) lgkmcnt(0)")
    e("s_setprio 0")
    e("s_barrier")
    e("s_mov_b32 s90, 0")
    lab("K1_zpoll")
    e("v_readfirstlane_b32 s66, v2")
    e("s_cmp_ge_u32 s66, 16"); e("s_cbranch_scc1 K1_zdone")
    e("s_sleep 4")
    e(f"buffer_load_dword v2, off, s[24:27], 0 {SC}")
    e("s_add_u32 s90, s90, 1"); e("s_cmp_lt_u32 s90, 0x100000")
    e("s_waitcnt vmcnt(0)")
    e("s_cbranch_scc1 K1_zpoll")
    lab("K1_zdone")
    early(16, 9)
    if S3 == '6': early(72, 4)
    e("s_barrier")
    if "tmarks" in X: st.mark(1)
    e(f"v_mov_b32 v27, {LCNT}"); e("v_mov_b32 v7, 1")
    NE = int(opt('ne', '0'))
    wo_batch()
    early(34, 1); early(52, 1)
    if S3 == '7': early(72, 4)
    X7 = 4 if S3 == '7' else 0
    e(f"s_waitcnt vmcnt({10 + X7})")
    if "tmarks" in X: st.mark(2)
    lsig(4)
    wo_read(0)
    e(f"v_add_u32 v92, {36*2048}, v92"); e(f"v_add_u32 v93, {36*2048}, v93")
    early(0, NE)
    e(f"s_waitcnt vmcnt({2 + NE + X7})")
    wo_read(4)
    e(f"v_lshlrev_b32 v10, 4, v1")
    e(f"s_mul_i32 s3, s{S_MT}, {2*NKS}"); e(f"s_lshl_b32 s65, s{S_Q}, 3"); e("s_add_u32 s3, s3, s65"); e("s_add_u32 s3, s3, 86"); e("s_lshl_b32 s70, s3, 10")
    e(f"s_lshl_b32 s65, s{S_R2}, 12"); e("s_xor_b32 s3, s65, 4096")
    e("s_add_u32 s67, s70, s3"); e("s_add_u32 s70, s70, s65"); e(f"s_add_u32 s72, s70, {NKS*1024}"); e(f"s_add_u32 s73, s67, {NKS*1024}")
    e(f"s_mul_i32 s66, s{S_TG}, {NKS*1024}"); e("s_add_u32 s70, s70, s66"); e("s_add_u32 s67, s67, s66"); e("s_sub_u32 s72, s72, s66"); e("s_sub_u32 s73, s73, s66")
    e(f"s_lshl_b32 s4, s{S_Q}, 13"); e(f"s_add_u32 s4, s4, {KV_OFF}"); e("s_add_u32 s5, s4, s3"); e("s_add_u32 s4, s4, s65")
    e(f"s_lshl_b32 s6, s{S_Q}, 9"); e(f"s_add_u32 s6, s6, {KV_OFF + 32768}")
    e("v_lshrrev_b32 v3, 4, v1"); e("v_xor_b32 v3, 1, v3"); e("v_lshlrev_b32 v3, 4, v3")
    e("v_and_b32 v4, 15, v1"); e("v_lshl_add_u32 v11, v4, 6, v3")
    e("v_and_b32 v4, 3, v1"); e("v_lshl_add_u32 v14, v4, 6, v3"); e("v_bfe_u32 v4, v1, 3, 1"); e(f"v_xor_b32 v4, s{S_R2}, v4"); e("v_lshl_add_u32 v14, v4, 8, v14")
    e(f"s_lshr_b32 s71, s{S_MT}, 1"); e(f"s_lshl_b32 s71, s71, {FS+4}"); e(f"s_add_u32 s71, s71, {FLG_OFF}")
    e(f"s_mov_b32 s89, {fbits(1e-6)}")
    e("s_mov_b32 s90, 0")
    e("v_lshrrev_b32 v3, 2, v1"); e("v_and_b32 v5, 3, v1"); e("v_lshl_add_u32 v3, v3, 4, v5"); e(f"v_lshlrev_b32 v3, {FS}, v3")
    e("v_and_b32 v4, 15, v1"); e(f"v_lshlrev_b32 v4, {FS}, v4"); e(f"s_mov_b32 s88, {FLG_OFF + (10 << FS)}")
    e("v_lshrrev_b32 v5, 3, v1"); e("v_and_b32 v6, 7, v1"); e("v_xor_b32 v6, v6, v5"); e("v_lshlrev_b32 v5, 10, v5"); e("v_lshl_add_u32 v15, v6, 4, v5")
    srd(12, 92, 93, 2097152)
    e(f"s_lshl2_add_u32 s77, s{S_MT}, s{S_Q}"); e("s_lshl_b32 s77, s77, 14"); e(f"s_lshl_b32 s3, s{S_NT}, 7"); e("s_add_u32 s77, s77, s3")
    e("s_waitcnt vmcnt(0)")
    if "tmarks" in X: st.mark(3)
    e("s_barrier")
    if "tmarks" in X: st.mark(4)
    if opt('vp', '1') != '0': e(f"s_setprio {opt('vp', '1')}")
    LD = False
    RL = []
    for i in range(8):
        if i >= NE: RL.append(capture(lambda: early(2 * i, 1)))
        RL.append(capture(lambda: early(36 + 2 * i, 1)))
    NRES = len(RL)
    for i in range(2):
        RL.append(capture(lambda: rounds(54 + 2 * i, 39 + 2 * i, 1))); RL.append(capture(lambda: rounds(62 + 2 * i, 82 + 2 * i, 1)))
    V_KR = V_PQ + 32; V_Z = 16
    def pq(i):
        e(f"buffer_load_dwordx4 {vr(V_KR+4*(i%4),4)}, v11, s[20:23], s{4 if i < 4 else 5} offen offset:{1024*(i%4)} {SC}")
        e(f"buffer_load_dwordx4 {vr(V_PQ+8*(i%4),4)}, v10, s[20:23], s{70 if i < 4 else 67} offen offset:{1024*(i%4)} {SC}")
        e(f"buffer_load_dwordx4 {vr(V_PQ+8*(i%4)+4,4)}, v10, s[20:23], s{72 if i < 4 else 73} offen offset:{1024*(i%4)} {SC}")
    def kf(i):
        f = V_KF + 4 * (i % 2); r = V_KR + 4 * (i % 4)
        return [f"v_cvt_pk_bf16_f32 v{f}, v{r}, v{r+1}", f"v_cvt_pk_bf16_f32 v{f+1}, v{r+2}, v{r+3}",
                f"v_mov_b32 v{f+2}, v{V_Z}", f"v_mov_b32 v{f+3}, v{V_Z+1}", "s_nop 0",
                f"v_permlane16_swap_b32 v{f+2}, v{f}", f"v_permlane16_swap_b32 v{f+3}, v{f+1}"]
    def omf(k): return mfma(V_O + 16 * (k % 2), V_KF + 4 * ((k // 2) % 2), V_PQ + 8 * ((k // 2) % 4) + 4 * (k % 2), "0")
    def smf(k, nf): return mfma(V_AS + 32 * (k % 2) + 16 * nf, V_WO + 8 * (k // 2) + 4 * nf, V_PO + 4 * (k % 2), "0" if k < 2 else None)
    def valu(k):
        o = V_O + 16 * (k % 2); d = o + k // 2
        return [f"v_add_f32 v{d}, s89, v{d}", f"v_rcp_f32 v{d}, v{d}", "s_nop 0"] + \
               [f"v_mul_f32 v{o+8+j}, v{d}, v{o+8+j}" for j in range(8)] + \
               [f"v_cvt_pk_bf16_f32 v{V_PO+4*(k%2)+j}, v{o+8+2*j}, v{o+9+2*j}" for j in range(4)]
    def sphase(rl, nres):
        rl = list(rl); ops = []
        def ld(i): pq(i); ops.extend([("k", i), ("p", i, 0), ("p", i, 1)])
        def dm(n):
            for _ in range(n):
                if rl: L.extend(rl.pop(0)); ops.append(("d", len([o for o in ops if o[0] == "d"])))
        sig = [nres == 0]
        def wait(tag):
            i = ops.index(tag); e(f"s_waitcnt vmcnt({len(ops) - 1 - i})")
            if not sig[0] and ("d", nres - 1) in ops[:i]: lsig(12); sig[0] = True
        st.mark(7)
        e(f"s_setprio {opt('sp','1')}")
        PH[0] = "s"
        e(f"buffer_load_dwordx4 {vr(V_Z,4)}, v14, s[20:23], s6 offen {SC}")
        SD = int(opt('sd', '3')); DPS = int(opt('dps', '2'))
        for i in range(SD): ld(i)
        nh = SD
        wait(("k", 0))
        if opt('nz', '0') == '1': lsig(8)
        e(f"v_cvt_pk_bf16_f32 v{V_Z}, v{V_Z}, v{V_Z+1}"); e(f"v_cvt_pk_bf16_f32 v{V_Z+1}, v{V_Z+2}, v{V_Z+3}")
        for x in kf(0): e(x)
        wait(("p", 0, 1)); e("s_nop 0")
        e(omf(0)); e(omf(1))
        ld(nh); nh += 1
        wait(("k", 1))
        for x in kf(1): e(x)
        for x in valu(0): e(x)
        for k in range(16):
            v = valu(k + 1) if k < 15 else []
            h = k // 2 + 1
            if k + 2 < 16:
                if k % 2 == 0: wait(("p", h, 1))
                e(omf(k + 2))
                if k % 2 == 1 and nh < 8: ld(nh); nh += 1
                elif k % 2 == 0: dm(2 * DPS)
            else: e("s_nop 0")
            for x in v[:4] if v else ["s_nop 0"]: e(x)
            e(smf(k, 0))
            for x in v[4:10]: e(x)
            e(smf(k, 1))
            if k % 2 == 1 and h + 1 < 8:
                wait(("k", h + 1))
                for x in kf(h + 1): e(x)
            for x in v[10:]: e(x)
        assert not rl
        if not sig[0] or ops[-1][0] == "d":
            e("s_waitcnt vmcnt(0)")
            if not sig[0]: lsig(12)
        PH[0] = ""
    PL = opt('pl', '0') == '1'; N0 = int(opt('n0', '4')) if PL else 0
    if "nowait" in X:
        N0 = int(opt('n0', '0'))
        for r in RL[:N0]: L.extend(r)
        sphase(RL[N0:], NRES - N0)
        e("s_branch K2_sdone")
    if PL:
        e(f"s_cmp_eq_u32 s{S_WAVE}, 4"); e("s_cbranch_scc0 K2_p0")
        e("s_mov_b64 exec, 0xc400"); e(f"buffer_load_dword v2, v4, s[20:23], s71 offen {SC}"); e("s_mov_b64 exec, -1")
        lab("K2_p0")
        for r in RL[:N0]: L.extend(r)
        e(f"s_cmp_eq_u32 s{S_WAVE}, 4"); e("s_cbranch_scc0 K2_p1")
        e("s_mov_b64 exec, 0xc400"); e(f"s_waitcnt vmcnt({N0})"); e("v_cmp_ne_u32 vcc, 0, v2")
        e("s_cmp_eq_u32 vcc_lo, 0xc400"); e("s_cselect_b32 s3, 1, 2"); e("s_mov_b64 exec, 1"); e("v_mov_b32 v5, s3"); e("ds_write_b32 v27, v5 offset:24"); e("s_mov_b64 exec, -1")
        lab("K2_p1")
        lwait(24, 1, "p")
        e("s_cmp_eq_u32 s66, 1"); e("s_cbranch_scc0 K2_pe")
        sphase(RL[N0:], NRES - N0)
        e("s_branch K2_sdone")
        lab("K2_pe")
    XD2 = opt('xd2', '0') == '1'
    for r in RL[N0:]: L.extend(r)
    e(f"s_cmp_eq_u32 s{S_WAVE}, 4"); e("s_cbranch_scc1 K2_p4")
    e("s_waitcnt vmcnt(4)")
    lsig(12)
    e("s_branch K2_swait")
    lab("K2_p4")
    KD = opt('kd', '1') == '1'
    if KD:
        e(f"buffer_load_dword v2, v4, s[20:23], s71 offen {SC}")
        e(f"buffer_load_dword v5, v3, s[20:23], s88 offen {SC}")
        e("s_waitcnt vmcnt(6)")
        lsig(12)
        if opt('jp', '1') == '1':
            e("s_waitcnt vmcnt(1)")
            e("v_cmp_ne_u32 vcc, 0, v2"); e("s_and_b32 s66, vcc_lo, 0x3ff"); e("s_cmp_eq_u32 s66, 0x3ff"); e("s_cselect_b32 s66, 1, 2")
            e("s_mov_b64 exec, 1"); e("v_mov_b32 v6, s66"); e("ds_write_b32 v27, v6 offset:16"); e("s_mov_b64 exec, -1")
        lab("K2_spoll")
        e("s_add_u32 s90, s90, 1")
        e("s_waitcnt vmcnt(0)")
        e("v_cmp_ne_u32 vcc, 0, v2"); e("s_or_b32 s66, vcc_lo, 0xffff3fff"); e("v_cmp_ne_u32 vcc, 0, v5")
        e("s_and_b32 s66, s66, vcc_lo"); e("s_and_b32 s66, s66, vcc_hi")
        e("s_cmp_eq_u32 s66, -1"); e("s_cbranch_scc1 K2_sset")
        e(f"s_sleep {opt('slp','3')}")
        e(f"buffer_load_dword v2, v4, s[20:23], s71 offen {SC}")
        e(f"buffer_load_dword v5, v3, s[20:23], s88 offen {SC}")
        e("s_cmp_lt_u32 s90, 0x100000"); e("s_cbranch_scc1 K2_spoll")
    else:
        e("s_mov_b64 exec, 0xc400")
        e(f"buffer_load_dword v2, v4, s[20:23], s71 offen {SC}")
        lab("K2_spoll")
        e("s_add_u32 s90, s90, 1")
        e("s_waitcnt vmcnt(0)")
        e("v_cmp_ne_u32 vcc, 0, v2")
        e("s_cmp_eq_u32 vcc_lo, 0xc400"); e("s_cbranch_scc1 K2_sset")
        e(f"s_sleep {opt('slp','3')}")
        e(f"buffer_load_dword v2, v4, s[20:23], s71 offen {SC}")
        e("s_cmp_lt_u32 s90, 0x100000"); e("s_cbranch_scc1 K2_spoll")
    lab("K2_sset")
    lsig(20)
    lab("K2_swait")
    lwait(20, 1, "s", 1)
    sphase([], 0)
    lab("K2_sdone")
    PH[0] = "s"
    F8 = opt('f8', '1') == '1'
    FXU, FAD, FOUT, FXR, FWA = 168, 176, 182, 184, 188
    def f8_vo():
        e("v_lshrrev_b32 v5, 3, v0"); e("v_and_b32 v6, 7, v0"); e(f"v_lshlrev_b32 v{FOUT}, 10, v5"); e(f"v_lshl_add_u32 v{FOUT}, v6, 4, v{FOUT}")
        e(f"s_lshl_b32 s77, s{S_MT}, 16"); e(f"s_lshl_b32 s3, s{S_NT}, 7"); e("s_add_u32 s77, s77, s3")
        srd(16, 92, 93, 2097152)
    def f8_ld():
        e(f"buffer_load_dwordx4 {vr(FXR,4)}, v{FOUT}, s[16:19], s77 offen")
        srd(16, 86, 87, 2097152)
    def f8_addr(wa, n, base):
        e("v_lshrrev_b32 v5, 3, v0"); e("v_and_b32 v6, 7, v0"); e("v_lshlrev_b32 v6, 1, v6"); e("v_and_b32 v8, 15, v5"); e("v_xor_b32 v6, v6, v8")
        e("v_lshlrev_b32 v5, 8, v5"); e(f"v_lshl_add_u32 v{FAD}, v6, 4, v5"); e(f"v_xor_b32 v{FAD+1}, 16, v{FAD}")
        for k, b in ((1, 36 * 2048), (2, 72 * 2048)):
            e(f"v_add_u32 v{FAD+2*k}, {b}, v{FAD}"); e(f"v_add_u32 v{FAD+2*k+1}, {b}, v{FAD+1}")
        e("v_and_b32 v5, 31, v1"); e("v_lshrrev_b32 v6, 5, v1"); e(f"v_lshl_add_u32 v6, s{S_UH}, 3, v6"); e("v_and_b32 v8, 15, v1"); e("v_xor_b32 v6, v6, v8")
        e(f"v_lshl_add_u32 v5, v5, 8, s{base}"); e(f"v_lshl_add_u32 v{wa}, v6, 4, v5")
        for i in range(1, n): e(f"v_xor_b32 v{wa+i}, {32*i}, v{wa}")
        e(f"s_mov_b32 s68, {fbits(-LOG2E)}")
    f8_unp = [x for j in range(4) for x in (f"v_lshlrev_b32 v{FXU+2*j}, 16, v{FXR+j}", f"v_and_b32 v{FXU+1+2*j}, s{S_MASK}, v{FXR+j}")]
    NZ = opt('nz', '0') == '1'
    if F8: f8_vo(); f8_ld()
    PB16 = True; SR = True; XRA = 0
    e(f"s_lshl_b32 s3, s{S_Q}, 13"); e("s_add_u32 s3, s3, 32768"); e("v_add_u32 v4, s3, v10")
    e("v_xor_b32 v2, 0x4000, v4"); e("v_xor_b32 v3, 0x2000, v4"); e("v_xor_b32 v9, 0x6000, v4")
    st.mark(8)
    for r in range(24): e(f"v_cvt_pk_bf16_f32 v{V_PQ+r}, v{V_AS+16+2*r}, v{V_AS+16+2*r+1}")
    if NZ: lwait(24, 4, "z", 1)
    else: e("s_barrier")
    for r in range(6): e(f"ds_write_b128 v{[2, 3, 9][r//2]}, {vr(V_PQ+4*r,4)} offset:{1024*r}")
    e(f"s_lshl_b32 s65, s{S_TG}, 13"); e(f"s_add_u32 s65, s65, {72*2048}"); f8_addr(160, 4, 65)
    e("s_waitcnt vmcnt(0) lgkmcnt(0)")
    Z2L = NZ or opt('z2l', '1') == '1'
    if Z2L: lsig(28); lwait(28, 4, "z2")
    else: e("s_barrier")
    if SR:
        e(f"s_setprio {opt('rp', '1')}")
        T0 = V_WO; SS = V_AS
        for r in range(6): e(f"ds_read_b128 {vr(T0+4*r,4)}, v4 offset:{1024*r}")
        for k in range(3):
            e(f"s_waitcnt lgkmcnt({4 - 2*k})")
            for c in range(8): e(f"v_lshlrev_b32 v{SS+16+2*c}, 16, v{T0+8*k+c}"); e(f"v_and_b32 v{SS+16+2*c+1}, s{S_MASK}, v{T0+8*k+c}")
            for c in range(16): e(f"v_add_f32 v{SS+c}, v{SS+c}, v{SS+16+c}")
        if F8:
            for r in range(4): e(f"ds_write_b128 v{160+r}, {vr(SS+4*r,4)}")
            for x in f8_unp: e(x)
            e("s_branch K2_FIN8")
        for r in range(4): e(f"ds_write_b128 v5, {vr(SS+4*r,4)} offset:{1024*r}")
        e("s_waitcnt lgkmcnt(0)")
        e("s_barrier")
    if STAMP:
        st.mark(9); st.dump(S_WAVE, "K_END")
    e("s_endpgm")
    PH[0] = ""
    lab("K1_CONS")
    e("s_bfe_u32 s3, s2, 0x20003"); e("s_xor_b32 s3, s3, 1"); e(f"s_xor_b32 s3, s3, s{S_WAVE}"); e(f"s_or_b32 s3, s3, s{S_T}")
    e("s_cmp_eq_u32 s3, 0"); e("s_cbranch_scc0 K1_nozero")
    for j in range(4): e(f"v_mov_b32 v{4+j}, 0")
    e("v_lshlrev_b32 v3, 4, v1")
    e(f"s_mul_i32 s3, s{S_MB}, 3072"); e(f"s_add_u32 s3, s3, {KV_OFF}")
    assert 16 * 3072 >= KV_BYTES
    e(f"s_lshl_b32 s35, s{S_MB}, {FS+4}"); e(f"s_add_u32 s35, s35, {FLG_OFF}"); e(f"v_lshlrev_b32 v2, {FS}, v1")
    e("s_mov_b64 exec, 0xffff"); e(f"buffer_store_dword v4, v2, s[20:23], s35 offen {SC}"); e("s_mov_b64 exec, -1")
    for j in range(3): e(f"buffer_store_dwordx4 v[4:7], v3, s[20:23], s3 offen offset:{1024*j} {SC}")
    e("v_mov_b32 v2, 1")
    e("s_waitcnt vmcnt(0)")
    e("s_mov_b64 exec, 1")
    e(f"buffer_atomic_add v2, off, s[24:27], 0 sc1")
    e("s_mov_b64 exec, -1")
    lab("K1_nozero")
    e("v_and_b32 v3, 31, v1"); e("v_lshrrev_b32 v4, 5, v1")
    e("v_bfe_u32 v5, v3, 4, 1"); e("v_xor_b32 v5, v5, v4")
    e(f"s_lshl_b32 s3, s{S_TG}, 13"); e(f"s_cmp_eq_u32 s{S_TYPE}, 2"); e("s_cselect_b32 s3, 0, s3")
    if B128:
        e("v_bfe_u32 v5, v3, 1, 3"); e("v_xor_b32 v5, v5, v4"); e("v_lshl_add_u32 v6, v3, 7, s3"); e(f"v_lshl_add_u32 v{V_XA}, v5, 4, v6")
        for p in range(1, 4): e(f"v_xor_b32 v{V_XA+p}, {32*p}, v{V_XA}")
    else:
        e("v_lshrrev_b32 v6, 3, v3"); e("v_lshl_add_u32 v6, v6, 10, s3"); e("v_and_b32 v3, 7, v3"); e("v_lshl_add_u32 v6, v3, 5, v6")
        e(f"v_lshl_add_u32 v{V_XA}, v5, 4, v6")
    e(f"s_cmp_eq_u32 s{S_TYPE}, 2"); e(f"s_movk_i32 s3, {SEGB}"); e("s_cselect_b32 s3, 128, s3"); e("s_cselect_b32 s66, 5, 7"); e(f"s_cselect_b32 s67, s{S_Q}, s{S_UH}")
    e("v_bfe_u32 v3, v1, 4, 1"); e(f"v_mul_u32_u24 v3, s3, v3")
    e("v_bfe_u32 v5, v1, 2, 2"); e("v_lshl_add_u32 v5, v4, 3, v5"); e("v_mul_u32_u24 v5, 288, v5")
    e("v_and_b32 v6, 3, v1"); e("v_lshlrev_b32 v6, 3, v6")
    e(f"s_lshl_b32 s3, s67, s66"); e(f"s_add_u32 s3, s3, {WBASE}")
    e(f"v_add3_u32 v{V_WA}, v3, v5, v6"); e(f"v_add_u32 v{V_WA}, s3, v{V_WA}")
    DUM = opt('dum', '0') == '1'
    MP = opt('mp', '0')
    def mpf():
        MM = opt('mm', 'a'); LP = {'a': 5, 'b': 6, 'c': 7}[MM]; NLN = {'a': 43, 'b': 22, 'c': 11}[MM]
        if MM == 'a': e(f"s_cmp_eq_u32 s{S_TYPE}, 0"); e("s_cbranch_scc0 K1_nomp"); e(f"s_mov_b32 s3, s{S_T}")
        if MM == 'b':
            e(f"s_bitcmp1_b32 s{S_TYPE}, 0"); e("s_cbranch_scc1 K1_nomp"); e(f"s_mul_i32 s3, s{S_TYPE}, 3"); e(f"s_sub_u32 s3, s{S_T}, s3")
        if MM == 'c': e(f"s_mov_b32 s3, s{S_T}")
        e(f"s_lshl4_add_u32 s3, s3, s{S_MB}"); e(f"s_lshl2_add_u32 s3, s3, s{S_Q}")
        e(f"s_lshr_b32 s32, s3, {LP}"); e(f"s_and_b32 s33, s3, {(1 << LP) - 1}")
        e("s_cmp_ge_u32 s32, 4"); e("s_cselect_b64 s[12:13], s[82:83], s[80:81]")
        e("s_and_b32 s32, s32, 3"); e("s_lshl1_add_u32 s32, s32, 1"); e(f"s_mul_i32 s32, s32, {64*2752}"); e(f"s_add_u32 s35, s32, {64*2752}")
        e(f"s_mul_i32 s33, s33, {NLN*128}"); e("s_add_u32 s32, s32, s33"); e(f"s_add_u32 s14, s32, {NLN*128}"); e("s_min_u32 s14, s14, s35"); e("s_mov_b32 s15, 0x00020000")
        e("v_lshlrev_b32 v2, 7, v1"); e("buffer_load_dword v2, v2, s[12:15], s32 offen")
        lab("K1_nomp")
    if MP == '1': mpf()
    e("v_mov_b64 v[28:29], 0"); e("v_mov_b64 v[30:31], 0")
    e(f"s_mov_b32 s{S_RST}, 0")
    e(f"v_mov_b32 v27, {LCNT}"); e(f"ds_write_b128 v27, v[28:31]"); e(f"ds_write_b128 v27, v[28:31] offset:16"); e(f"ds_write_b128 v27, v[28:31] offset:32")
    e(f"s_lshl_b32 s3, s{S_MB}, 2"); e(f"s_lshl1_add_u32 s3, s{S_TG}, s3")
    e(f"s_mul_i32 s64, s3, {NKS}"); e(f"s_add_u32 s64, s64, s{S_U0}")
    e(f"s_add_u32 s66, s3, s{S_UH}"); e(f"s_mul_i32 s66, s66, {NKS}"); e(f"s_add_u32 s66, s66, s{S_U0}"); e("s_add_u32 s66, s66, 8"); e("s_lshl_b32 s66, s66, 10")
    e(f"s_lshl2_add_u32 s64, s{S_UH}, s64"); e("s_lshl_b32 s64, s64, 10")
    e(f"s_add_u32 s65, s64, {NKS*1024}")
    if DUM:
        e(f"s_mov_b32 s{S_CNT}, 7"); e("s_mov_b32 s34, 1"); e("s_branch K1_sel")
        lab("K1_ret")
        e("s_mov_b32 s34, 0"); e(f"s_mov_b32 s{S_CNT}, 0"); e(f"s_mov_b32 s{S_RST}, 0")
        for p in range(4 if B128 else 1): e(f"v_xor_b32 v{V_XA+p}, {XST}, v{V_XA+p}")
        e(f"v_subrev_u32 v{V_WA}, s{S_TMP2}, v{V_WA}")
    else:
        e("s_barrier")
    st.mark()
    if MP == '2': mpf()
    e("s_cmp_eq_u32 s78, 0"); e("s_cbranch_scc1 K1_w0")
    lab("K1_w0done")
    if MP == '3': mpf()
    for r in range(9): e(mfma(V_ACC + 16 * r, 28, 28, "0"))
    e("s_barrier")
    if LW1: e("s_cmp_lg_u32 s78, 0"); e("s_cbranch_scc1 K1_w1done")
    for g in k1_dma()[:KS]:
        for x in g: e(x)
    lab("K1_w1done")
    e(f"s_waitcnt vmcnt({KS})")
    e("s_barrier")
    st.mark()
    e(f"s_setprio {opt('cp','1')}")
    lab("K1_sel")
    e(f"s_cmp_eq_u32 s{S_TYPE}, 2"); e("s_cbranch_scc1 K1_S8")
    e(f"s_cmp_eq_u32 s{S_TYPE}, 1"); e("s_cbranch_scc0 K1_N8")
    e(f"s_cmp_eq_u32 s{S_UH}, 1"); e("s_cbranch_scc1 K1_N9b")
    for var in ("N9a", "N9b", "N8", "S8"): k1_cons_loop(var)
    lab("K1_EPI")
    if DUM: e("s_cmp_eq_u32 s34, 1"); e("s_cbranch_scc1 K1_ret")
    st.mark()
    e("s_waitcnt lgkmcnt(0)")
    e("v_lshlrev_b32 v10, 4, v1")
    e(f"s_cmp_eq_u32 s{S_TYPE}, 2"); e("s_cbranch_scc1 K1_EPI_KV")
    e(f"s_cmp_eq_u32 s{S_TYPE}, 3"); e("s_cbranch_scc1 K1_EPI_Q")
    c0 = -2 * 0.7978845608028654 * LOG2E; c1 = c0 * 0.044715
    e(f"v_mov_b32 v12, {fbits(c1)}"); e(f"v_mov_b32 v13, {fbits(c0)}")
    def f_epi(items, tb):
        pr = []
        for k, (acc, soff, imm) in enumerate(items):
            pr += [(acc + 2 * j, acc + 8 + 2 * j, tb + 8 * k + 2 * j) for j in range(4)]
        n = 2 * len(pr); o = tb + 16
        if items[0][0] < V_ACC + 16 * int(opt('skip', '0')):
            for k, (acc, soff, imm) in enumerate(items):
                e(f"buffer_store_dwordx4 {vr(acc,4)}, v10, s[20:23], s{soff} offen offset:{imm} {HSC}")
            return
        for g, u, tt in pr: e(f"v_pk_mul_f32 {vr(tt,2)}, {vr(g,2)}, {vr(g,2)}")
        for g, u, tt in pr: e(f"v_pk_fma_f32 {vr(tt,2)}, {vr(tt,2)}, v[12:13], v[12:13] op_sel:[0,0,1] op_sel_hi:[1,0,1]")
        for g, u, tt in pr: e(f"v_pk_mul_f32 {vr(tt,2)}, {vr(tt,2)}, {vr(g,2)}")
        for j in range(n): e(f"v_exp_f32 v{tb+j}, v{tb+j}")
        for g, u, tt in pr: e(f"v_pk_mul_f32 {vr(g,2)}, {vr(g,2)}, {vr(u,2)}")
        for g, u, tt in pr: e(f"v_pk_add_f32 {vr(tt,2)}, {vr(tt,2)}, 1.0 op_sel_hi:[1,0]")
        for j in range(n): e(f"v_rcp_f32 v{tb+j}, v{tb+j}")
        for g, u, tt in pr: e(f"v_pk_mul_f32 {vr(g,2)}, {vr(g,2)}, {vr(tt,2)}")
        for j, (g, u, tt) in enumerate(pr): e(f"v_cvt_pk_bf16_f32 v{o+j}, v{g}, v{g+1}")
        for k, (acc, soff, imm) in enumerate(items):
            e(f"buffer_store_dwordx4 {vr(o+4*k,4)}, v10, s[20:23], s{soff} offen offset:{imm} {HSC}")
    for a in range(4):
        if a == 0 and opt('f1', '0') == '1':
            f_epi([(V_ACC, 64, 0)], 56); f_epi([(V_ACC + 16, 65, 0)], 32)
        else: f_epi([(V_ACC + 32 * a, 64, 1024 * a), (V_ACC + 32 * a + 16, 65, 1024 * a)], 32 + 24 * (a % 2))
    e(f"s_cmp_eq_u32 s{S_TYPE}, 1"); e("s_cbranch_scc0 K1_JOIN")
    f_epi([(V_ACC + 128, 66, 0)], 32)
    e("s_branch K1_JOIN")
    lab("K1_EPI_Q")
    e(f"s_mov_b32 s68, {fbits(LOG2E)}"); e(f"s_mov_b32 s69, {fbits(1e-6)}")
    e("s_add_u32 s66, s64, 8192"); e("s_add_u32 s67, s65, 8192")
    def phi(acc, t):
        for j in range(8): e(f"v_pk_mul_f32 {vr(t+2*j,2)}, {vr(acc+2*j,2)}, s[68:69] op_sel_hi:[1,0]")
        for j in range(16): e(f"v_exp_f32_e64 v{t+j}, v{t+j} clamp")
        for j in range(16): e(f"v_max_f32 v{acc+j}, s69, v{acc+j}")
        for j in range(8): e(f"v_pk_add_f32 {vr(acc+2*j,2)}, {vr(acc+2*j,2)}, {vr(t+2*j,2)}")
    QD = int(opt('qd', '0')); held = []
    for i in range(8):
        a, f = i >> 1, i & 1
        acc = V_ACC + 16 * i; o = acc
        if i >= int(opt('skip', '0')):
            phi(acc, 32)
            for j in range(8): e(f"v_cvt_pk_bf16_f32 v{o+j}, v{acc+2*j}, v{acc+2*j+1}")
        held += [f"buffer_store_dwordx4 {vr(o,4)}, v10, s[20:23], s{64+f} offen offset:{1024*a} {HSC}",
                 f"buffer_store_dwordx4 {vr(o+4,4)}, v10, s[20:23], s{66+f} offen offset:{1024*a} {HSC}"]
        if i < 8 - QD or i == 7:
            for x in held: e(x)
            held = []
    e("s_branch K1_JOIN")
    lab("K1_EPI_KV")
    e(f"s_mov_b32 s68, {fbits(LOG2E)}"); e(f"s_mov_b32 s69, {fbits(1e-6)}")
    for r in range(4): e(f"v_mov_b32 v{80+r}, s{S_ONES}")
    e("v_and_b32 v3, 3, v1"); e("v_bfe_u32 v4, v1, 2, 1"); e("v_lshl_add_u32 v3, v4, 3, v3"); e("v_bfe_u32 v4, v1, 3, 1"); e("v_lshl_add_u32 v3, v4, 2, v3")
    e("v_lshrrev_b32 v4, 5, v1"); e("v_lshl_add_u32 v3, v4, 6, v3"); e("v_bfe_u32 v4, v1, 4, 1"); e("v_lshlrev_b32 v3, 2, v3")
    e("v_lshl_add_u32 v5, v4, 8, v3"); e("v_lshl_add_u32 v3, v4, 12, v3")
    e(f"s_sub_u32 s3, s{S_T}, 10"); e(f"s_lshl3_add_u32 s3, s3, s{S_Q}"); e("s_lshl_b32 s64, s3, 10"); e(f"s_add_u32 s64, s64, {KV_OFF}")
    e("s_lshl_b32 s65, s3, 6"); e(f"s_add_u32 s65, s65, {KV_OFF + 32768}")
    e("s_mov_b32 s66, 0xffff0000"); e("s_mov_b32 s67, 0xffff0000")
    DK, DZ = 224, V_ACC + 64
    prev = []
    for f in range(4):
        ak = V_ACC + 16 * f; av = V_ACC + 64 + 16 * f; A = 48 + 16 * (f % 2); B = 56 + 16 * (f % 2); t = 32
        for j in range(8): e(f"v_pk_mul_f32 {vr(t+2*j,2)}, {vr(ak+2*j,2)}, s[68:69] op_sel_hi:[1,0]")
        for j in range(16):
            if j % 3 == 0 and prev: e(prev.pop(0))
            e(f"v_exp_f32_e64 v{t+j}, v{t+j} clamp")
        for j in range(16): e(f"v_max_f32 v{ak+j}, s69, v{ak+j}")
        for j in range(8): e(f"v_cvt_pk_bf16_f32 v{B+j}, v{av+2*j}, v{av+2*j+1}")
        for j in range(8): e(f"v_pk_add_f32 {vr(ak+2*j,2)}, {vr(ak+2*j,2)}, {vr(t+2*j,2)}")
        for j in range(8): e(f"v_cvt_pk_bf16_f32 v{A+j}, v{ak+2*j}, v{ak+2*j+1}")
        prev = [mfma(DK, B, A, "0" if f == 0 else None), mfma(DK, B + 4, A + 4), mfma(DZ, 80, A, "0" if f == 0 else None), mfma(DZ, 80, A + 4)]
    if "kmarks" in X: st.mark(10)
    e("s_nop 1")
    for x in prev: e(x)
    e("s_nop 9")
    e("s_mov_b64 exec, s[66:67]")
    for r in range(8): e(f"v_mov_b32 v{DK+r}, v{DK+8+r}")
    e("s_mov_b64 exec, -1")
    for r in range(8):
        e(f"buffer_atomic_add_f32 v{DK+r}, v3, s[20:23], s64 offen offset:{64*(8*(r//4) + r%4)}")
    e("s_mov_b64 exec, 0xffffffff")
    e(f"buffer_atomic_add_f32 v{DZ}, v5, s[20:23], s65 offen")
    e("s_mov_b64 exec, -1")
    lab("K1_JOIN")
    st.mark()
    V_STG, V_TOK, XU, V_SS, V_AY, V_XRES, V_OUT = 32, 120, 168, 184, 200, 232, 11
    NT = 12
    tr_lane(12)
    e(f"s_lshl_b32 s3, s{S_UH}, 6"); e("v_xor_b32 v12, s3, v12")
    for r, (b0, k) in ((14, (54, 8)), (20, (34, 18)), (24, (0, 36)), (28, (72, 4)), (12, (16, 9))):
        e(f"s_mul_i32 s3, s{S_UH}, {k*2048}"); e(f"s_add_u32 s3, s3, {b0*2048}"); e(f"v_add_u32 v{r}, s3, v12"); e(f"v_xor_b32 v{r+1}, 64, v{r}")
    lwait(4, 4, "g")
    for j in range(8):
        for nf in range(2):
            for rd in range(2):
                e(f"ds_read_b64_tr_b16 {vr(V_STG+8*j+4*nf+2*rd,2)}, v{14+nf} offset:{j*2048 + rd*1024}")
    e(f"s_lshl4_add_u32 s64, s{S_MB}, s{S_T}"); e(f"s_lshl_b32 s64, s64, {FS}"); e(f"s_add_u32 s64, s64, {FLG_OFF}")
    e("v_mov_b32 v7, 1")
    e("v_and_b32 v3, 31, v1"); e("v_lshrrev_b32 v4, 5, v1"); e(f"v_lshlrev_b32 v{V_OUT}, 10, v3"); e(f"v_lshl_add_u32 v{V_OUT}, v4, 4, v{V_OUT}")
    e(f"s_lshl_b32 s77, s{S_MT}, 16"); e(f"s_lshl_b32 s3, s{S_NT}, 7"); e("s_add_u32 s77, s77, s3")
    e(f"s_lshl_b32 s3, s{S_TG}, 15"); e("s_add_u32 s77, s77, s3"); e(f"s_lshl_b32 s3, s{S_UH}, 6"); e("s_add_u32 s77, s77, s3")
    srd(16, 92, 93, 2097152)
    e(f"s_lshl1_add_u32 s3, s{S_MT}, s{S_TG}"); e(f"s_mul_i32 s3, s3, {NKS*1024}")
    e("s_add_u32 s8, s38, s3"); e("s_addc_u32 s9, s39, 0"); e(f"s_mov_b32 s10, {86*1024}"); e("s_mov_b32 s11, 0x00020000")
    e(f"s_mul_i32 s79, s{S_UH}, 43"); e(f"s_add_u32 s79, s79, s{S_RY}"); e("s_sub_u32 s3, s79, 86"); e("s_cselect_b32 s79, s79, s3"); e("s_lshl_b32 s79, s79, 10")
    e(f"s_lshl_b32 s65, s{S_TG}, 12"); e(f"s_add_u32 s65, s65, {58*2048}"); e(f"s_lshl_b32 s3, s{S_UH}, 14"); e("s_add_u32 s66, s65, s3"); e("v_add_u32 v16, s66, v10")
    e("s_xor_b32 s3, s3, 0x4000"); e("s_add_u32 s66, s65, s3"); e("v_add_u32 v17, s66, v10")
    e(f"s_lshl_b32 s3, s{S_TG}, 13"); e(f"s_lshl_b32 s65, s{S_UH}, 12"); e("s_add_u32 s3, s3, s65"); e("v_add_u32 v18, s3, v10"); e(f"v_add_u32 v19, {36*2048}, v18")
    if SR: e(f"s_lshl_b32 s3, s{S_WAVE}, 12"); e(f"s_add_u32 s3, s3, {72*2048}"); e("v_add_u32 v18, s3, v10")
    e(f"s_mov_b32 s68, {fbits(-LOG2E)}"); e(f"s_mov_b32 s70, {86*1024}"); e("s_movk_i32 s71, 1024")
    e(f"v_lshlrev_b32 v4, {FS}, v1"); e("s_mov_b32 s90, 0")
    e(f"s_lshr_b32 s72, s{S_MT}, 1"); e(f"s_lshl_b32 s72, s72, {FS+4}"); e(f"s_add_u32 s72, s72, {FLG_OFF}")
    e("s_waitcnt vmcnt(0)")
    if "kmarks" in X: st.mark(13)
    e("s_mov_b64 exec, 1")
    e("ds_add_rtn_u32 v6, v27, v7")
    e("s_waitcnt lgkmcnt(0)")
    e("v_readfirstlane_b32 s66, v6")
    e("s_cmp_eq_u32 s66, 3"); e("s_cbranch_scc0 K2_noflag")
    if KD: e(f"buffer_store_dword v7, off, s[20:23], s64 {SC}")
    else:
        e(f"s_cmp_eq_u32 s{S_TYPE}, 2"); e("s_cbranch_scc1 K2_kvflag")
        e(f"buffer_store_dword v7, off, s[20:23], s64 {SC if 'plainflag' not in X else ''}")
        if "wbl2" in X:
            e(f"s_cmp_eq_u32 s{S_T}, 9"); e("s_cbranch_scc0 K2_noflag"); e("buffer_wbl2 sc1")
        e("s_branch K2_noflag")
        lab("K2_kvflag")
        e("v_mov_b32 v6, 1")
        e(f"buffer_atomic_add v6, off, s[24:27], 0 offset:128 {SC}")
        e("s_waitcnt vmcnt(0)")
        e("v_readfirstlane_b32 s66, v6")
        e("s_and_b32 s66, s66, 63")
        e("s_cmp_eq_u32 s66, 63"); e("s_cbranch_scc0 K2_noflag")
        e("s_mov_b64 exec, 0xffff")
        e(f"v_lshlrev_b32 v6, {FS+4}, v1"); e(f"s_mov_b32 s66, {FLG_OFF + (10 << FS)}")
        e(f"buffer_store_dword v7, v6, s[20:23], s66 offen {SC}")
    lab("K2_noflag")
    e("s_mov_b64 exec, -1")
    st.mark()
    XPRE = True
    FP = opt('fp', '0')
    def xres():
        e(f"buffer_load_dwordx4 {vr(V_XRES,4)}, v{V_OUT}, s[16:19], s77 offen")
        e(f"buffer_load_dwordx4 {vr(V_XRES+4,4)}, v{V_OUT}, s[16:19], s77 offen offset:32")
        srd(16, 86, 87, 2097152)
    if FP == '2': xres()
    e("s_barrier")
    e(f"s_setprio {opt('yp','0')}")
    if XD2:
        srd(16, 86, 87, 2097152)
        e("v_and_b32 v3, 31, v1"); e("v_and_b32 v5, 7, v1"); e(f"s_lshl_b32 s3, s{S_UH}, 2"); e("v_xor_b32 v5, s3, v5")
        e("v_lshlrev_b32 v3, 7, v3"); e("v_lshl_add_u32 v3, v5, 4, v3"); e("v_lshrrev_b32 v5, 5, v1"); e("v_lshl_add_u32 v3, v5, 3, v3")
        e(f"s_lshl_b32 s3, s{S_TG}, 12"); e(f"s_add_u32 s3, s3, {XRA}"); e(f"v_add_u32 v{V_XRES+8}, s3, v3")
        for i in range(1, 4): e(f"v_xor_b32 v{V_XRES+8+i}, {16*i}, v{V_XRES+8}")
        if opt('yd', '1') == '1': lwait(12, 4, "r0", 2)
    elif F8:
        f8_vo(); f8_ld()
        e(f"s_mul_i32 s65, s{S_UH}, {36*2048}"); e(f"s_lshl_b32 s3, s{S_TG}, 13"); e("s_add_u32 s65, s65, s3"); f8_addr(FWA, 8, 65)
        if "nowait" in X: e("s_branch K2_ygo")
        e("s_waitcnt vmcnt(0)")
        for x in f8_unp: e(x)
        if opt('jp', '1') == '1':
            lwait(16, 1, "j", 1); e("s_cmp_eq_u32 s66, 2"); e("s_cbranch_scc0 K2_ygo")
        elif opt('yd', '1') == '1': lwait(12, 4, "r0", 2)
    elif FP == '0': xres(); e("s_waitcnt vmcnt(0)")
    e(f"s_cmp_eq_u32 s{S_WAVE}, 0"); e("s_cbranch_scc0 K2_ywait0")
    e("s_mov_b64 exec, 0x3ff")
    e(f"buffer_load_dword v5, v4, s[20:23], s72 offen {SC}")
    if FP == '1':
        e("s_mov_b64 exec, -1"); xres(); e("s_mov_b64 exec, 0x3ff"); e("s_waitcnt vmcnt(2)")
    else: e("s_waitcnt vmcnt(0)")
    lab("K2_poll")
    e("v_cmp_ne_u32 vcc, 0, v5")
    e("s_cmp_eq_u32 vcc_lo, 0x3ff"); e("s_cbranch_scc1 K2_yset")
    e(f"s_sleep {opt('slp','3')}")
    e(f"buffer_load_dword v5, v4, s[20:23], s72 offen {SC}")
    e("s_add_u32 s90, s90, 1"); e("s_cmp_lt_u32 s90, 0x100000")
    e("s_waitcnt vmcnt(0)")
    e("s_cbranch_scc1 K2_poll")
    lab("K2_yset")
    lsig(16)
    e("s_branch K2_ygo")
    lab("K2_ywait0")
    if FP == '1': xres()
    lwait(16, 3 if opt('jp', '1') == '1' else 1, "y", 1)
    lab("K2_ygo")
    st.mark()
    NS = 43
    PH[0] = "y"
    def tok(j):
        e(f"buffer_load_dwordx4 {vr(V_TOK+4*(j%NT),4)}, v10, s[8:11], s79 offen {SC}")
        if j < NS - 1: e("s_add_u32 s79, s79, s71"); e("s_cmp_eq_u32 s79, s70"); e("s_cselect_b32 s79, 0, s79")
    TD = int(opt('td', '5')); ZP = int(opt('zp', '21')); Z2 = int(opt('z2', '28'))
    TD1 = int(opt('td1', str(TD))); JT = int(opt('jt', '12')); XJ = int(opt('xj', '10'))
    if NZ: ZP = 33; Z2 = 99
    def wslot(j):
        if j <= ZP + 9: return V_STG + 8 * (j % 11)
        return wslot(ZP - 1 + (j - ZP - 10) % 3)
    def wr(j):
        b = wslot(j)
        for nf in range(2):
            for rd in range(2):
                r, j0 = (12, 8) if j < 17 else (20, 17) if j < 19 else (28, 19) if j < 23 else (24, 23) if j < 39 else (14, 39)
                e(f"ds_read_b64_tr_b16 {vr(b+4*nf+2*rd,2)}, v{r+nf} offset:{(j-j0)*2048 + rd*1024}")
    used = {wslot(j) for j in range(ZP + 10, NS)}
    free = [V_STG + 8 * k for k in range(11) if V_STG + 8 * k not in used]
    if PB16: free = [wslot(ZP + 2 + k) for k in range(8)]
    assert Z2 >= ZP + (7 if PB16 else 10) and ZP >= 14 and PB16 and SR
    tq = [f + 4 * h for f in free for h in range(2)][:12]
    sread = [f"ds_read_b128 {vr(V_SS+4*r,4)}, v18 offset:{1024*r}" for r in range(4)]
    for k in range(1, 4):
        sread += [f"ds_read_b128 {vr(tq[4*(k-1)+r],4)}, v{19 if k == 3 else 18} offset:{[0, 32768, 49152, 0][k] + 1024*r}" for r in range(4)]
    sadd = [f"v_add_f32 v{V_SS+4*r+c}, v{V_SS+4*r+c}, v{tq[4*(k-1)+r]+c}" for k in range(1, 4) for r in range(4) for c in range(4)]
    if PB16:
        sread = []
        for k in range(4):
            sread += [f"ds_read_b128 {vr(tq[2*k+r],4)}, v{19 if k == 3 else 18} offset:{[0, 32768, 49152, 0][k] + 1024*r}" for r in range(2)]
        sadd = []
        for k in range(4):
            for c in range(8):
                src = tq[2*k + c//4] + c % 4
                if k == 0: sadd += [f"v_lshlrev_b32 v{V_SS+2*c}, 16, v{src}", f"v_and_b32 v{V_SS+2*c+1}, s{S_MASK}, v{src}"]
                else:
                    t = 2 + (c % 2)
                    sadd += [f"v_lshlrev_b32 v{t}, 16, v{src}", f"v_and_b32 v{src}, s{S_MASK}, v{src}",
                             f"v_add_f32 v{V_SS+2*c}, v{V_SS+2*c}, v{t}", f"v_add_f32 v{V_SS+2*c+1}, v{V_SS+2*c+1}, v{src}"]
    for j in range(TD): tok(j)
    ntok = TD
    for j in range(8, 11): wr(j)
    first_late = min(j for j in range(NS) if (j + 10 >= 39 and j < ZP) or (j >= ZP + 8 and j + 2 >= 39))
    assert NZ or first_late > ZP
    first_late = -1
    def pre(j):
        nonlocal ntok
        def f1():
            nonlocal ntok
            for _ in range(2):
                if ntok < NS and ntok - j <= (TD if j < JT else TD1): tok(ntok); ntok += 1
            if j == XJ and not XPRE:
                xat[0] = ntok
                e(f"buffer_load_dwordx4 {vr(V_XRES,4)}, v{V_OUT}, s[16:19], s77 offen")
                e(f"buffer_load_dwordx4 {vr(V_XRES+4,4)}, v{V_OUT}, s[16:19], s77 offen offset:32")
                srd(16, 86, 87, 2097152)
        def f2():
            if j == 13: lwait(12, 4, "r")
            if j == Z2 and not Z2L: e("s_barrier")
            if j == first_late: lwait(8, 4, "l")
            if Z2 <= j < Z2 + 4:
                for x in sread[4*(j-Z2):4*(j-Z2)+4]: e(x)
            if NZ and j == 29: pass
            elif 1 <= j < ZP: wr(j + 10)
            elif j >= ZP + 8 and j + 2 < NS: wr(j + 2)
            if NZ:
                if j == 25: lsig(32)
                if j == 35: lwait(32, 4, "p")
                if j == 14: lsig(24)
                if j == 29: lwait(8, 4, "l"); wr(39)
            elif j == ZP: e("s_waitcnt lgkmcnt(0)"); e("s_barrier")
        return capture(f1), capture(f2)
    xat = [None]
    xun = [f"v_permlane32_swap_b32 v{V_XRES+a_}, v{V_XRES+b_}" for a_, b_ in ((0, 2), (1, 3), (4, 6), (5, 7))]
    for j in range(8): xun += [f"v_lshlrev_b32 v{XU+2*j}, 16, v{V_XRES+j}", f"v_and_b32 v{XU+1+2*j}, s{S_MASK}, v{V_XRES+j}"]
    if SR:
        assert not XD2
        sread = []; sadd = []
        if F8: xun = []; assert ZP >= 21
    if XD2:
        sread = sread + [f"ds_read_b64 {vr(V_XRES+2*i,2)}, v{V_XRES+8+i}" for i in range(4)]
        sadd = sadd + xun[4:]; xun = []
    L.extend(pre(0)[0])
    for j in range(NS):
        if "ymarks" in X and j in (1, 8, 16, ZP - 1, ZP, Z2 - 1): st.mark()
        lg = ""
        if NZ and j == ZP + 3: lg = " lgkmcnt(0)"
        elif 8 <= j < ZP: lg = " lgkmcnt(12)"
        elif j >= ZP + 10: lg = f" lgkmcnt({4 * min(2, NS - 1 - j)})"
        elif PB16 and j == Z2 + 3: lg = " lgkmcnt(4)"
        e(f"s_waitcnt vmcnt({ntok - 1 - j + (2 if xat[0] is not None and j < xat[0] else 0)})" + lg)
        adds = []
        if j >= (24 if NZ else ZP) and xun: adds = [xun.pop(0) for _ in range(min(len(xun), 4))]
        if j >= Z2 + (3 if PB16 else 5): adds = [sadd.pop(0) for _ in range(min(len(sadd), int(opt('na', '10'))))]
        A_, B_ = pre(j + 1) if j + 1 < NS else ([], [])
        e(mfma(V_AY + 16, wslot(j) + 4, V_TOK + 4 * (j % NT), "0" if j == 0 else None))
        L.extend(A_)
        for x in adds[:6]: e(x)
        e(mfma(V_AY, wslot(j), V_TOK + 4 * (j % NT), "0" if j == 0 else None))
        L.extend(B_)
        for x in adds[6:]: e(x)
    st.mark()
    for x in sadd: e(x)
    e("s_nop 10")
    if F8:
        for r in (4, 5, 6, 7, 0, 1, 2, 3): e(f"ds_write_b128 v{FWA+r}, {vr(V_AY+4*r,4)}")
        lab("K2_FIN8")
        e("s_waitcnt lgkmcnt(0)")
        if "fmarks" in X: st.mark()
        e("s_barrier")
        if "fmarks" in X: st.mark()
        for k in range(6): e(f"ds_read_b128 {vr(32+4*k,4)}, v{FAD+k}")
        e("s_waitcnt lgkmcnt(2)")
        for j in range(4): e(f"v_pk_add_f32 {vr(32+2*j,2)}, {vr(32+2*j,2)}, {vr(40+2*j,2)}")
        for j in range(4): e(f"v_pk_mul_f32 {vr(40+2*j,2)}, {vr(32+2*j,2)}, s[68:69] op_sel_hi:[1,0]")
        for j in range(8): e(f"v_exp_f32 v{40+j}, v{40+j}")
        e("s_waitcnt lgkmcnt(0)")
        for j in range(4): e(f"v_pk_mul_f32 {vr(32+2*j,2)}, {vr(32+2*j,2)}, {vr(48+2*j,2)}")
        for j in range(4): e(f"v_pk_add_f32 {vr(40+2*j,2)}, {vr(40+2*j,2)}, 1.0 op_sel_hi:[1,0]")
        for j in range(8): e(f"v_rcp_f32 v{40+j}, v{40+j}")
        for j in range(4): e(f"v_pk_fma_f32 {vr(32+2*j,2)}, {vr(32+2*j,2)}, {vr(40+2*j,2)}, {vr(FXU+2*j,2)}")
        for j in range(4): e(f"v_cvt_pk_bf16_f32 v{56+j}, v{32+2*j}, v{33+2*j}")
        e(f"buffer_store_dwordx4 v[56:59], v{FOUT}, s[16:19], s77 offen {opt('osc','sc0_sc1').replace('_',' ')}")
    else:
        for r in range(4): e(f"ds_write_b128 v16, {vr(V_AY+16+4*r,4)} offset:{1024*r}")
        e("s_waitcnt lgkmcnt(0)")
        if "fmarks" in X: st.mark()
        e("s_barrier")
        if "fmarks" in X: st.mark()
        for r in range(4): e(f"ds_read_b128 {vr(32+4*r,4)}, v17 offset:{1024*r}")
        if SR:
            for r in range(4): e(f"ds_read_b128 {vr(V_SS+4*r,4)}, v18 offset:{1024*r}")
        for r in range(4):
            e(f"s_waitcnt lgkmcnt({3-r+(4 if SR else 0)})")
            for j in (2*r, 2*r+1): e(f"v_pk_add_f32 {vr(V_AY+2*j,2)}, {vr(V_AY+2*j,2)}, {vr(32+2*j,2)}")
        for j in range(8): e(f"v_pk_mul_f32 {vr(32+2*j,2)}, {vr(V_AY+2*j,2)}, s[68:69] op_sel_hi:[1,0]")
        for j in range(16): e(f"v_exp_f32 v{32+j}, v{32+j}")
        if SR: e("s_waitcnt lgkmcnt(0)")
        for j in range(8): e(f"v_pk_mul_f32 {vr(V_AY+2*j,2)}, {vr(V_AY+2*j,2)}, {vr(V_SS+2*j,2)}")
        for j in range(8): e(f"v_pk_add_f32 {vr(32+2*j,2)}, {vr(32+2*j,2)}, 1.0 op_sel_hi:[1,0]")
        for h in range(2):
            for j in range(8*h, 8*h+8): e(f"v_rcp_f32 v{32+j}, v{32+j}")
            for j in range(4*h, 4*h+4): e(f"v_pk_fma_f32 {vr(32+2*j,2)}, {vr(32+2*j,2)}, {vr(V_AY+2*j,2)}, {vr(XU+2*j,2)}")
            for j in range(4*h, 4*h+4): e(f"v_cvt_pk_bf16_f32 v{64+j}, v{32+2*j}, v{33+2*j}")
            e("s_nop 1")
            for a_, b_ in ((0, 2), (1, 3)): e(f"v_permlane32_swap_b32 v{64+4*h+a_}, v{64+4*h+b_}")
            e(f"buffer_store_dwordx4 {vr(64+4*h,4)}, v{V_OUT}, s[16:19], s77 offen offset:{32*h}")
    if "fixspan" in X:
        lab("K_fix")
        e("s_memrealtime s[96:97]"); e("s_waitcnt lgkmcnt(0)"); e("s_sub_u32 s96, s96, s94"); e(f"s_cmp_lt_u32 s96, {opt('fix','5000')}"); e("s_cbranch_scc1 K_fix")
    if STAMP:
        st.mark(); e("s_waitcnt vmcnt(0)"); st.mark()
        st.dump(S_WAVE, "K_END")
    lab("K_END")
    e("s_endpgm")

hdr = f"""; Fused block in one launch: phase 1 = LayerNorm + QKV/gate/up GEMM + phi/GEGLU epilogues + kv reduction,
; hand-off through d_ws, phase 2 = down/out projections + linear-attention normalisation + gated residual.
; @launch grid=(256,1,1) block=(512,1,1) lds=163840
.amdgcn_target "amdgcn-amd-amdhsa--gfx950"
.text"""
kernel()
kd = f""".amdhsa_kernel {NAME}_kernel
  .amdhsa_next_free_vgpr 256
  .amdhsa_next_free_sgpr 102
  .amdhsa_accum_offset 256
  .amdhsa_group_segment_fixed_size 0
  .amdhsa_kernarg_size 80
  .amdhsa_user_sgpr_count 2
  .amdhsa_user_sgpr_kernarg_segment_ptr 1
  .amdhsa_system_sgpr_workgroup_id_x 1
.end_amdhsa_kernel"""
open(OUT, "w").write(hdr + "\n" + "\n".join(L) + '\n.section .rodata,"a"\n.p2align 6\n' + kd + "\n")
```
